```python
import torch

def _softmax(x, axis=-1):
    return torch.softmax(x, dim=axis)

def _gelu(x):
    return torch.nn.functional.gelu(x, approximate='tanh')

def _silu(x):
    return torch.nn.functional.silu(x)

def _sigmoid(x):
    return torch.sigmoid(x)

def _layernorm(x, axis=-1, eps=1e-05):
    m = x.mean(dim=axis, keepdim=True)
    v = x.var(dim=axis, keepdim=True, unbiased=False)
    return (x - m) / torch.sqrt(v + eps)

def _scatter_add(tgt, idx, src, axis=0):
    return tgt.clone().index_add_(axis, idx, src)

def _segment_sum(src, seg, n):
    out = torch.zeros((n,) + src.shape[1:], dtype=src.dtype)
    return out.index_add_(0, seg, src)

def _pad(x, pw):
    flat = tuple((v for pair in reversed(pw) for v in pair))
    return torch.nn.functional.pad(x, flat)
kernel_name = 'adaLN_cond__mha_block__glu_gated_swiglu__prompt'

def setup_inputs():

    _w = lambda a: (lambda t: t.to(torch.bfloat16) if t.is_floating_point() else t)(torch.as_tensor(a))

    def _A_setup():
        B, S, D, H = (1, 2048, 512, 32)
        return {'x': _w((lambda *s: torch.randn(*s, dtype=torch.bfloat16) * 0.05)(B, S, D)), 'wqkv': _w((lambda *s: torch.randn(*s, dtype=torch.bfloat16) * 0.05)(D, 3 * D)), 'wo': _w((lambda *s: torch.randn(*s, dtype=torch.bfloat16) * 0.05)(D, D))}
    _A_in = _A_setup()

    def _B_setup():
        B, S, D, F = (1, 2048, 512, 1376)
        return {'x': _w((lambda *s: torch.randn(*s, dtype=torch.bfloat16) * 0.05)(B, S, D)), 'w1': _w((lambda *s: torch.randn(*s, dtype=torch.bfloat16) * 0.8)(D, F) * (2.0 / D) ** 0.5), 'w3': _w((lambda *s: torch.randn(*s, dtype=torch.bfloat16) * 0.8)(D, F) * (2.0 / D) ** 0.5), 'w2': _w((lambda *s: torch.randn(*s, dtype=torch.bfloat16) * 0.8)(F, D) * (2.0 / F) ** 0.5)}
    _B_in = _B_setup()
    return {'A_x': _A_in['x'], 'A_wqkv': _A_in['wqkv'], 'A_wo': _A_in['wo'], 'B_x': _B_in['x'], 'B_w1': _B_in['w1'], 'B_w3': _B_in['w3'], 'B_w2': _B_in['w2'], 'c': _w((lambda *s: torch.randn(*s, dtype=torch.bfloat16) * 0.2)(1, 512) * 8.0), 'w_mod': _w((lambda *s: torch.randn(*s, dtype=torch.bfloat16) * 0.2)(512, 6 * 512) * 512 ** (-0.5) * 8.0)}

def reference(A_x, A_wqkv, A_wo, B_x, B_w1, B_w3, B_w2, c, w_mod):

    def _A_ref(x, wqkv, wo):
        B, S, D = x.shape
        H = 32
        Dh = D // H
        qkv = (lambda x, *d: x.permute(*d))((x @ wqkv).reshape(B, S, 3, H, Dh), 2, 0, 3, 1, 4)
        q, k, v = (qkv[0], qkv[1], qkv[2])
        scores = torch.einsum('bhqd,bhkd->bhqk', q, k) * Dh ** (-0.5)
        p = _softmax(scores, axis=-1)
        o = torch.einsum('bhqk,bhkd->bhqd', p, v)
        return (lambda x, *d: x.permute(*d))(o, 0, 2, 1, 3).reshape(B, S, D) @ wo

    def _B_ref(x, w1, w3, w2):
        gate = torch.einsum('bsd,df->bsf', x, w1)
        up = torch.einsum('bsd,df->bsf', x, w3)
        h = _silu(gate) * up
        out = torch.einsum('bsf,fd->bsd', h, w2)
        return out
    x = A_x
    mod = (_silu(c) @ w_mod).reshape(c.shape[0], 6, 1, -1)
    sa, ca, ga, sb, cb, gb = (mod[:, 0].clone(), mod[:, 1].clone(), mod[:, 2].clone(), mod[:, 3].clone(), mod[:, 4].clone(), mod[:, 5].clone())
    h = _layernorm(x, axis=-1) * (1 + ca) + sa
    x = x + ga * _A_ref(h, A_wqkv, A_wo)
    h = _layernorm(x, axis=-1) * (1 + cb) + sb
    x = x + gb * _B_ref(h, B_w1, B_w3, B_w2)
    return x
```

```python
import re

REG_RE = re.compile(r'^(-|\|)?(abs\()?([vas])(\d+)\)?\|?$')
RNG_RE = re.compile(r'^(-|\|)?(abs\()?([vas])\[(\d+):(\d+)\]\)?\|?$')

def regs_of(tok):
    tok = tok.strip()
    m = RNG_RE.match(tok)
    if m:
        return [(m.group(3), i) for i in range(int(m.group(4)), int(m.group(5)) + 1)]
    m = REG_RE.match(tok)
    if m:
        return [(m.group(3), int(m.group(4)))]
    if tok == 'vcc': return [('s', 'vcc')]
    if tok == 'exec': return [('s', 'exec')]
    if tok == 'm0': return [('s', 'm0')]
    return []

def split_ops(s):
    out, depth, cur = [], 0, ''
    for ch in s:
        if ch == '[': depth += 1
        if ch == ']': depth -= 1
        if ch == ',' and depth == 0:
            out.append(cur.strip()); cur = ''
        else:
            cur += ch
    if cur.strip(): out.append(cur.strip())
    return out

TRANS = ('v_exp_', 'v_log_', 'v_rcp_', 'v_rsq_', 'v_sqrt_', 'v_sin_', 'v_cos_')

class Ins:
    def __init__(self, text):
        self.text = text
        t = text.split(';')[0].strip()
        self.is_label = t.endswith(':')
        self.is_dir = t.startswith('.')
        self.op = ''
        self.defs, self.uses = [], []
        self.kind = 'other'
        self.ws = 1
        self.srcC = []
        self.dpp = False
        self.passes = 0
        if self.is_label or self.is_dir or not t:
            self.kind = 'none'; self.ws = 0
            if self.is_label: self.label = t[:-1]
            return
        parts = t.split(None, 1)
        self.op = op = parts[0]
        rest = parts[1] if len(parts) > 1 else ''
        ops = split_ops(rest)
        mods = ''
        if ops:
            last = ops[-1].split(None, 1)
            ops[-1] = last[0]
            mods = last[1] if len(last) > 1 else ''
        self.ops = ops; self.mods = mods
        R = [regs_of(o) for o in ops]
        flat = lambda L: [x for l in L for x in l]
        if op == 's_nop':
            self.kind = 'nop'; self.ws = int(ops[0], 0) + 1
        elif op.startswith('v_mfma'):
            self.kind = 'mfma'
            self.defs = R[0]; self.uses = flat(R[1:]); self.srcC = R[3]; self.srcAB = R[1] + R[2]
            self.passes = 8 if '32x32' in op else 4
            if '32x32x2_f32' in op: self.passes = 16
            if '16x16x4_f32' in op: self.passes = 8
        elif op.startswith('v_'):
            self.kind = 'valu'
            self.trans = op.startswith(TRANS)
            if any(k in mods for k in ('row_', 'quad_perm', 'wave_')): self.dpp = True
            if op.startswith('v_permlane'):
                self.defs = R[0] + R[1]; self.uses = R[0] + R[1]
            elif op.startswith('v_cmp'):
                self.defs = R[0]; self.uses = flat(R[1:])
            elif op.startswith(('v_add_co', 'v_addc_co', 'v_sub_co')):
                self.defs = R[0] + R[1]; self.uses = flat(R[2:])
            else:
                self.defs = R[0]; self.uses = flat(R[1:])
                if op.startswith(('v_fmac', 'v_mac', 'v_pk_fmac', 'v_dot2c')) or self.dpp or 'op_sel' in mods and 'pk' not in op:
                    self.uses += R[0]
                if op.startswith('v_cndmask') and len(ops) == 3:
                    self.uses.append(('s', 'vcc'))
                if op.startswith('v_writelane'): self.uses += R[0]
        elif op.startswith('buffer_load') or op.startswith('global_load'):
            self.kind = 'vmem'
            if ' lds' in (' ' + mods) or 'load_lds' in op:
                self.uses = flat(R) + [('s', 'm0')]; self.ldsdma = True
            else:
                self.defs = R[0]; self.uses = flat(R[1:])
        elif op.startswith('buffer_store') or op.startswith('buffer_atomic'):
            self.kind = 'vmem'; self.uses = flat(R); self.sdata = R[0]
            self.wide = op.endswith(('x3', 'x4'))
        elif op.startswith('global_store') or op.startswith('global_atomic'):
            self.kind = 'vmem'; self.uses = flat(R); self.sdata = R[1]
            self.wide = op.endswith(('x3', 'x4'))
        elif op.startswith('ds_read') or op.startswith('ds_bpermute') or op.startswith('ds_swizzle'):
            self.kind = 'ds'; self.defs = R[0]; self.uses = flat(R[1:])
        elif op.startswith('ds_'):
            self.kind = 'ds'; self.uses = flat(R)
        elif op.startswith('s_'):
            self.kind = 'salu'
            if op in ('s_waitcnt', 's_barrier', 's_endpgm', 's_setprio', 's_branch', 's_sleep') or op.startswith('s_cbranch'):
                self.kind = 'ctl'
                if op.startswith('s_cbranch_vcc'): self.uses = [('s', 'vcc')]
                if op.startswith('s_cbranch_exec'): self.uses = [('s', 'exec')]
            elif op.startswith('s_cmp') or op.startswith('s_bitcmp'):
                self.uses = flat(R)
            elif op.startswith('s_load') or op.startswith('s_memtime') or op.startswith('s_memrealtime'):
                self.defs = R[0]; self.uses = flat(R[1:])
            elif 'saveexec' in op:
                self.defs = R[0] + [('s', 'exec')]; self.uses = flat(R[1:]) + [('s', 'exec')]
            else:
                self.defs = R[0]; self.uses = flat(R[1:])
        else:
            raise ValueError('unknown op ' + text)

def need(p, c):
    n = 0
    pd = set(p.defs); cu = set(c.uses); cd = set(c.defs)
    isv = lambda r: r[0] in 'va'
    if p.kind == 'valu':
        vd = {r for r in pd if isv(r)}
        sd = {r for r in pd if r[0] == 's'}
        if c.kind == 'mfma' and vd & cu: n = max(n, 2)
        if c.kind == 'valu':
            if vd & cu:
                if getattr(p, 'trans', False) and not getattr(c, 'trans', False): n = max(n, 1)
                if c.dpp: n = max(n, 2)
                if c.op.startswith('v_permlane'): n = max(n, 2)
                if c.op.startswith(('v_readlane', 'v_readfirstlane')): n = max(n, 1)
            if sd & cu:
                n = max(n, 4 if c.op.startswith(('v_readlane', 'v_writelane')) else 2)
        if c.kind in ('vmem', 'ds') and getattr(p, 'trans', False) and vd & cu: n = max(n, 1)
        if c.kind == 'vmem' and sd & cu: n = max(n, 5)
        if c.kind in ('salu', 'ctl') and sd & cu: n = max(n, 2)
        if ('s', 'exec') in sd: n = max(n, 5)
    if p.kind == 'mfma':
        P = p.passes
        tab_c = {2: 4, 4: 6, 8: 10, 16: 18}[P]
        tab_ab = {2: 5, 4: 8, 8: 12, 16: 20}[P]
        if c.kind == 'mfma':
            if pd & set(c.srcC):
                if not (p.defs == c.srcC and p.passes == c.passes): n = max(n, tab_c)
            if pd & set(c.srcAB): n = max(n, tab_ab)
            if pd & cd and not (pd & set(c.srcC)): n = max(n, tab_c)
        elif c.kind in ('valu', 'vmem', 'ds'):
            if pd & (cu | cd): n = max(n, tab_ab)
        if c.kind == 'valu' and set(p.srcC) & cd:
            n = max(n, {2: 1, 4: 3, 8: 7, 16: 15}[P])
    if p.kind == 'vmem' and getattr(p, 'wide', False):
        if set(p.sdata) & cd:
            n = max(n, 2 if c.kind == 'valu' else 1)
    if p.kind == 'salu':
        if ('s', 'm0') in pd and getattr(c, 'ldsdma', False): n = max(n, 1)
    return n

WINDOW = 24

class Kernel:
    def __init__(self, name):
        self.name = name
        self.lines = []
        self.autonops = 0
    def __call__(self, text):
        for l in text.split('\n'):
            l = l.strip()
            if l: self.lines.append(l)
    def label(self, n): self.lines.append(n + ':')
    def comment(self, c): self.lines.append('; ' + c)

    def resolve(self, verbose=False, strict_regions=()):
        ins = [Ins(l) if not l.startswith(';') else None for l in self.lines]
        out = []
        hist = []
        for l, i in zip(self.lines, ins):
            if i is None or i.kind == 'none':
                out.append(i if i is not None else l); continue
            req = 0
            dist = 0
            for p in reversed(hist[-WINDOW:]):
                r = need(p, i) - dist
                req = max(req, r)
                dist += p.ws
                if dist >= 21: break
            if req > 0:
                nop = Ins(f's_nop {req - 1}')
                nop.auto = True
                out.append(nop); hist.append(nop); self.autonops += 1
                if verbose: print(f'[{self.name}] auto nop {req} before: {l}')
            out.append(i); hist.append(i)
            if i.op in ('s_branch', 's_endpgm'):
                hist = []
        real = [x for x in out if isinstance(x, Ins)]
        labels = {x.label: k for k, x in enumerate(real) if x.is_label}
        for k, x in enumerate(real):
            if x.kind == 'ctl' and (x.op == 's_branch' or x.op.startswith('s_cbranch')):
                tgt = x.ops[0]
                if tgt not in labels: continue
                tail = [y for y in real[max(0, k - WINDOW):k + 1] if y.kind != 'none']
                head = [y for y in real[labels[tgt]:labels[tgt] + WINDOW + 8] if y.kind != 'none']
                dist_h = 0
                for c in head:
                    dist = dist_h
                    for p in reversed(tail):
                        r = need(p, c) - dist
                        if r > 0:
                            raise RuntimeError(f'[{self.name}] hazard across branch {x.text} -> {tgt}: "{p.text}" -> "{c.text}" short by {r}')
                        dist += p.ws
                        if dist >= 21: break
                    dist_h += c.ws
                    if dist_h >= 21: break
                    if c.op in ('s_branch', 's_endpgm'): break
        return [x.text if isinstance(x, Ins) else x for x in out]
```

```python
from gen_common import *

def gen_k1():
    k = Kernel('k1_prep_kernel')
    NWG = 278
    k(f's_cmp_ge_u32 s2, {NWG}')
    k('s_cbranch_scc1 K1_END')
    k(f's_load_dwordx4 s[4:7], s[0:1], {KA_X}')
    k(f's_load_dwordx2 s[8:9], s[0:1], {KA_WO}')
    k(f's_load_dwordx2 s[10:11], s[0:1], {KA_W2}')
    k(f's_load_dwordx4 s[12:15], s[0:1], {KA_C}')
    k(f's_load_dwordx2 s[16:17], s[0:1], {KA_WS}')
    k('v_lshrrev_b32 v1, 6, v0')
    k('v_and_b32 v2, 63, v0')
    k('v_readfirstlane_b32 s18, v1')
    k('s_cmp_ge_u32 s2, 96')
    k('s_cbranch_scc0 K1_QKV')
    k('s_cmp_ge_u32 s2, 160')
    k('s_cbranch_scc0 K1_XHAT')
    k('s_cmp_ge_u32 s2, 192')
    k('s_cbranch_scc0 K1_WO')
    k('s_sub_u32 s25, s2, 192')
    k('s_waitcnt lgkmcnt(0)')
    srd(k, 20, 10, 0, 1376*1024)
    srd(k, 28, 16, WS_W2, SZ_W2)
    k('s_movk_i32 s24, 1024')
    k('s_mov_b32 s26, 0')
    k('s_mov_b32 s27, 4')
    k(f's_mov_b32 s32, {86*1024}')
    k('s_lshl_b32 s33, s25, 10')
    k('s_lshl_b32 s34, s25, 5')
    k(f's_add_u32 s35, s34, {4*1024}')
    k(f's_add_u32 s34, s34, {3*1024}')
    k('s_cmp_lt_u32 s25, 32')
    k('s_cselect_b32 s36, 2, 0')
    k('s_branch K1_PREP')
    k.label('K1_WO')
    k('s_sub_u32 s25, s2, 160')
    k('s_waitcnt lgkmcnt(0)')
    srd(k, 20, 8, 0, 512*1024)
    srd(k, 28, 16, WS_WO, SZ_WO)
    k('s_movk_i32 s24, 1024')
    k('s_mov_b32 s26, 0')
    k('s_mov_b32 s27, 4')
    k(f's_mov_b32 s32, {32*1024}')
    k('s_lshl_b32 s33, s25, 10')
    k('s_lshl_b32 s34, s25, 5')
    k(f's_add_u32 s35, s34, {5*1024}')
    k(f's_add_u32 s34, s34, {2*1024}')
    k('s_mov_b32 s36, 2')
    k('s_branch K1_PREP')
    k.label('K1_QKV')
    k('s_and_b32 s25, s2, 31')
    k('s_lshr_b32 s19, s2, 5')
    k('s_waitcnt lgkmcnt(0)')
    srd(k, 20, 6, 0, 512*3072)
    srd(k, 28, 16, WS_WQKV, SZ_WQKV)
    k('s_movk_i32 s24, 3072')
    k('s_lshl_b32 s26, s19, 10')
    k('s_mov_b32 s27, 8')
    k(f's_mov_b32 s32, {T_STRIDE}')
    k('s_mul_i32 s33, s25, 3072')
    k('s_add_u32 s33, s33, s26')
    k('s_lshl_b32 s34, s25, 5')
    k(f's_add_u32 s35, s34, 0')
    k(f's_add_u32 s34, s34, {1*1024}')
    k('s_mov_b32 s36, 1')
    k.label('K1_PREP')
    srd(k, 40, 12, 0, 1024)
    srd(k, 44, 14, 0, 512*6144)
    srd(k, 48, 16, WS_MOD, SZ_MOD)
    VC, VA, VB = 8, 16, 32
    k('s_cmp_eq_u32 s36, 0')
    k('s_cbranch_scc1 K1_NOGEMV_LD')
    k('v_lshrrev_b32 v3, 2, v0')
    k('v_and_b32 v4, 3, v0')
    k('v_lshlrev_b32 v5, 1, v3')
    k('v_mul_u32_u24 v6, 6144, v3')
    k('v_lshl_add_u32 v6, v4, 3, v6')
    for m in range(8):
        k(f'buffer_load_ushort v{VC+m}, v5, s[40:43], 0 offen offset:{128*m}')
    k('s_mov_b32 s38, s34')
    k('s_mov_b32 s39, s35')
    for m in range(8):
        k(f'buffer_load_dwordx2 {vr(VA+2*m,2)}, v6, s[44:47], s38 offen')
        k(f'buffer_load_dwordx2 {vr(VB+2*m,2)}, v6, s[44:47], s39 offen')
        if m < 7:
            k(f's_add_u32 s38, s38, {64*6144}')
            k(f's_add_u32 s39, s39, {64*6144}')
    k.label('K1_NOGEMV_LD')
    VR = 48
    k('v_and_b32 v3, 31, v2')
    k('v_lshrrev_b32 v4, 5, v2')
    k('s_mul_i32 s38, s27, s24')
    k('v_mul_lo_u32 v7, v4, s38')
    k('v_lshl_add_u32 v7, v3, 3, v7')
    k('s_lshl_b32 s39, s18, 8')
    k('s_add_u32 s39, s39, s26')
    k('v_add_u32 v7, s39, v7')
    k('s_lshl_b32 s38, s25, 4')
    k('s_mul_i32 s38, s38, s24')
    k('s_sub_u32 s39, 8, s27')
    k('s_mul_i32 s39, s39, s24')
    for j in range(8):
        k(f'buffer_load_dwordx2 {vr(VR+2*j,2)}, v7, s[20:23], s38 offen')
        if j < 7:
            k('s_add_u32 s38, s38, s24')
        if j == 3:
            k('s_add_u32 s38, s38, s39')
    k('v_lshrrev_b32 v5, 3, v3')
    k('s_lshl_b32 s38, s18, 2')
    k('v_add_u32 v5, s38, v5')
    k('v_mul_lo_u32 v64, v5, s32')
    k('v_and_b32 v5, 7, v3')
    k('v_lshlrev_b32 v5, 6, v5')
    k('v_add_u32 v65, v64, v5')
    k('v_lshl_add_u32 v64, v4, 9, v65')
    SC = 66
    k('s_cmp_eq_u32 s36, 0')
    k('s_cbranch_scc1 K1_ONES')
    k('s_waitcnt vmcnt(24)')
    for m in range(8):
        k(f'v_lshlrev_b32 v{VC+m}, 16, v{VC+m}')
    for m in range(8):
        k(f'v_mul_f32 v{82+m}, {hex(f2u(-LOG2E))}, v{VC+m}')
    for m in range(8):
        k(f'v_exp_f32 v{82+m}, v{82+m}')
    for m in range(8):
        k(f'v_add_f32 v{82+m}, 1.0, v{82+m}')
    for m in range(8):
        k(f'v_rcp_f32 v{82+m}, v{82+m}')
    for m in range(8):
        k(f'v_mul_f32 v{VC+m}, v{VC+m}, v{82+m}')
    for m in range(8):
        k(f'v_cvt_pk_bf16_f32 v{VC+m}, v{VC+m}, v{VC+m}')
    for m in range(8):
        k(f'v_lshlrev_b32 v{VC+m}, 16, v{VC+m}')
    ACC = 82
    for e in range(8):
        k(f'v_mov_b32 v{ACC+e}, 0')
    k('s_waitcnt vmcnt(8)')
    for m in range(8):
        for (base, acc) in ((VA, ACC), (VB, ACC+4)):
            a0, a1 = base+2*m, base+2*m+1
            k(f'v_lshlrev_b32 v90, 16, v{a0}')
            k(f'v_and_b32 v91, 0xffff0000, v{a0}')
            k(f'v_lshlrev_b32 v92, 16, v{a1}')
            k(f'v_and_b32 v93, 0xffff0000, v{a1}')
            for e in range(4):
                k(f'v_fmac_f32 v{acc+e}, v{90+e}, v{VC+m}')
    for rot in (8, 4):
        for e in range(8):
            k(f'v_add_f32_dpp v{ACC+e}, v{ACC+e}, v{ACC+e} row_ror:{rot} row_mask:0xf bank_mask:0xf')
    k('v_lshrrev_b32 v90, 4, v0')
    k('v_lshlrev_b32 v90, 7, v90')
    k('v_and_b32 v91, 3, v0')
    k('v_lshl_add_u32 v90, v91, 5, v90')
    k(f'ds_write_b128 v90, {vr(ACC,4)}')
    k(f'ds_write_b128 v90, {vr(ACC+4,4)} offset:16')
    k('s_waitcnt lgkmcnt(0)')
    k('s_barrier')
    k('v_and_b32 v90, 31, v0')
    k('v_bfe_u32 v91, v90, 2, 2')
    k('v_lshlrev_b32 v91, 5, v91')
    k('v_lshrrev_b32 v92, 4, v90')
    k('v_lshl_add_u32 v91, v92, 4, v91')
    k('v_and_b32 v93, 3, v90')
    k('v_lshl_add_u32 v91, v93, 2, v91')
    for p in range(16):
        k(f'ds_read_b32 v{96+p}, v91 offset:{128*p}')
    k('s_waitcnt lgkmcnt(0)')
    for st in (8, 4, 2, 1):
        for p in range(st):
            k(f'v_add_f32 v{96+p}, v{96+p}, v{96+p+st}')
    k('v_cvt_pk_bf16_f32 v96, v96, v96')
    k('v_lshlrev_b32 v96, 16, v96')
    k('s_cmp_eq_u32 s36, 1')
    k('s_cbranch_scc1 K1_SCALE')
    k('v_cmp_gt_u32 vcc, 16, v90')
    k('v_mov_b32 v94, s35')
    k('v_mov_b32 v95, s34')
    k('v_cndmask_b32 v94, v94, v95, vcc')
    k('v_and_b32 v93, 15, v90')
    k('v_lshlrev_b32 v94, 1, v94')
    k('v_lshl_add_u32 v94, v93, 2, v94')
    k('buffer_store_dword v96, v94, s[48:51], 0 offen')
    k.label('K1_ONES')
    for j in range(8):
        k(f'v_mov_b32 v{SC+j}, 1.0')
        k(f'v_mov_b32 v{SC+8+j}, 0')
    k('s_branch K1_XFORM')
    k.label('K1_SCALE')
    k(f's_mov_b32 s38, {hex(QSCALE)}')
    k('s_cmp_eq_u32 s19, 0')
    k('s_cselect_b32 s38, s38, 1.0')
    k('v_add_f32 v97, 1.0, v96')
    k('v_cvt_pk_bf16_f32 v97, v97, v97')
    k('v_lshlrev_b32 v97, 16, v97')
    k('v_cmp_gt_u32 vcc, 16, v90')
    k('v_cndmask_b32 v96, v96, v97, vcc')
    k('v_mul_f32 v96, s38, v96')
    k('s_lshl_b32 s39, s18, 7')
    k('s_add_u32 s39, s39, 2048')
    k('v_lshl_add_u32 v91, v90, 2, s39')
    k('ds_write_b32 v91, v96')
    k('v_lshlrev_b32 v91, 5, v4')
    k('v_add_u32 v91, s39, v91')
    k('s_waitcnt lgkmcnt(0)')
    k(f'ds_read_b128 {vr(SC,4)}, v91')
    k(f'ds_read_b128 {vr(SC+4,4)}, v91 offset:16')
    k(f'ds_read_b128 {vr(SC+8,4)}, v91 offset:64')
    k(f'ds_read_b128 {vr(SC+12,4)}, v91 offset:80')
    k('s_waitcnt lgkmcnt(0)')
    k.label('K1_XFORM')
    k('s_waitcnt vmcnt(0)')
    F = 96
    for j in range(8):
        k(f'v_lshlrev_b32 v{F+4*j+0}, 16, v{VR+2*j}')
        k(f'v_and_b32 v{F+4*j+1}, 0xffff0000, v{VR+2*j}')
        k(f'v_lshlrev_b32 v{F+4*j+2}, 16, v{VR+2*j+1}')
        k(f'v_and_b32 v{F+4*j+3}, 0xffff0000, v{VR+2*j+1}')
    BP = 84
    for c in range(4):
        k(f'v_mul_f32 v{BP+c}, v{F+c}, v{SC+8}')
    for j in range(1, 8):
        for c in range(4):
            k(f'v_fmac_f32 v{BP+c}, v{F+4*j+c}, v{SC+8+j}')
    for j in range(8):
        for c in range(4):
            k(f'v_mul_f32 v{F+4*j+c}, v{F+4*j+c}, v{SC+j}')
    OUT = 8
    for c in range(4):
        for d in range(4):
            k(f'v_cvt_pk_bf16_f32 v{OUT+4*c+d}, v{F+8*d+c}, v{F+8*d+4+c}')
    for c in range(4):
        k(f'buffer_store_dwordx4 {vr(OUT+4*c,4)}, v64, s[28:31], s33 offen offset:{16*c}')
    k('s_cmp_eq_u32 s36, 1')
    k('s_cbranch_scc0 K1_END')
    for c in range(4):
        k(f'v_mov_b32 v{88+c}, v{BP+c}')
    for c in range(4):
        k(f'v_permlane32_swap_b32 v{BP+c}, v{88+c}')
    for c in range(4):
        k(f'v_add_f32 v{BP+c}, v{BP+c}, v{88+c}')
    for c in range(4):
        k(f'v_cvt_pk_bf16_f32 v{BP+c}, v{BP+c}, v{BP+c}')
    k('s_lshr_b32 s38, s25, 4')
    k('s_add_u32 s38, s38, 32')
    k('s_mul_i32 s38, s38, 3072')
    k('s_add_u32 s38, s38, s26')
    k('s_bfe_u32 s39, s25, 0x10003')
    k('s_lshl_b32 s39, s39, 9')
    k('s_add_u32 s38, s38, s39')
    k('s_and_b32 s39, s25, 7')
    k('s_lshl_b32 s39, s39, 1')
    k('s_add_u32 s38, s38, s39')
    for c in range(4):
        k(f'buffer_store_short v{BP+c}, v65, s[28:31], s38 offen offset:{16*c}')
    k('s_endpgm')

    k.label('K1_XHAT')
    k('s_sub_u32 s25, s2, 96')
    k('s_waitcnt lgkmcnt(0)')
    srd(k, 20, 4, 0, 2048*1024)
    srd(k, 28, 16, WS_XH, SZ_XH)
    k('v_and_b32 v3, 31, v2')
    k('v_lshrrev_b32 v4, 5, v2')
    k('v_lshlrev_b32 v5, 10, v3')
    k('v_lshl_add_u32 v5, v4, 4, v5')
    k('s_lshl_b32 s26, s18, 8')
    k('v_add_u32 v5, s26, v5')
    k('s_lshl_b32 s27, s25, 15')
    X = 8
    for s in range(8):
        k(f'buffer_load_dwordx4 {vr(X+4*s,4)}, v5, s[20:23], s27 offen offset:{32*s}')
    F = 48
    k('v_mov_b32 v40, 0')
    k('v_mov_b32 v41, 0')
    k('v_mov_b32 v42, 0')
    k('v_mov_b32 v43, 0')
    for s in range(8):
        k(f's_waitcnt vmcnt({7-s})')
        for d in range(4):
            k(f'v_lshlrev_b32 v{F+8*s+2*d}, 16, v{X+4*s+d}')
            k(f'v_and_b32 v{F+8*s+2*d+1}, 0xffff0000, v{X+4*s+d}')
        for d in range(4):
            k(f'v_add_f32 v40, v40, v{F+8*s+2*d}')
            k(f'v_add_f32 v41, v41, v{F+8*s+2*d+1}')
            k(f'v_fmac_f32 v42, v{F+8*s+2*d}, v{F+8*s+2*d}')
            k(f'v_fmac_f32 v43, v{F+8*s+2*d+1}, v{F+8*s+2*d+1}')
    k('v_add_f32 v40, v40, v41')
    k('v_add_f32 v41, v42, v43')
    k('v_lshlrev_b32 v44, 3, v0')
    k('ds_write_b64 v44, v[40:41]')
    k('v_lshlrev_b32 v45, 3, v3')
    k('s_waitcnt lgkmcnt(0)')
    k('s_barrier')
    for i in range(8):
        k(f'ds_read_b64 {vr(112+2*i,2)}, v45 offset:{256*i}')
    k('s_waitcnt lgkmcnt(0)')
    for st in (4, 2, 1):
        for i in range(st):
            k(f'v_add_f32 v{112+2*i}, v{112+2*i}, v{112+2*(i+st)}')
            k(f'v_add_f32 v{113+2*i}, v{113+2*i}, v{113+2*(i+st)}')
    k(f'v_mul_f32 v40, {hex(f2u(1/512))}, v112')
    k(f'v_mul_f32 v41, {hex(f2u(1/512))}, v113')
    k('v_fma_f32 v41, -v40, v40, v41')
    k('v_max_f32 v41, 0, v41')
    k(f'v_add_f32 v41, {hex(f2u(1e-5))}, v41')
    k('v_rsq_f32 v41, v41')
    k('v_mul_f32 v40, v40, v41')
    k('v_sub_f32 v40, 0, v40')
    for i in range(64):
        k(f'v_fma_f32 v{F+i}, v{F+i}, v41, v40')
    for i in range(32):
        k(f'v_cvt_pk_bf16_f32 v{X+i}, v{F+2*i}, v{F+2*i+1}')
    k('v_lshlrev_b32 v5, 4, v2')
    k('s_lshl_b32 s26, s18, 13')
    k('s_add_u32 s27, s27, s26')
    k('s_add_u32 s26, s27, 4096')
    for s in range(8):
        k(f'buffer_store_dwordx4 {vr(X+4*s,4)}, v5, s[28:31], s{27 if s<4 else 26} offen offset:{1024*(s&3)}')
    k.label('K1_END')
    k('s_endpgm')
    kernels.append((k, NWG, 256, 4096, 128, 128, 64))
```

```python
from gen_common import *

class VM:
    def __init__(self, k): self.k = k; self.q = []
    def issue(self, tag, n=1):
        for _ in range(n): self.q.append(tag)
    def wait(self, tag):
        idx = max((i for i, t in enumerate(self.q) if t == tag), default=-1)
        if idx < 0: return
        n = len(self.q) - 1 - idx
        assert n <= 63
        self.k(f's_waitcnt vmcnt({n})')
        self.q = self.q[idx+1:]
    def waitall(self):
        self.k('s_waitcnt vmcnt(0)'); self.q = []

MF = 'v_mfma_f32_32x32x16_bf16'

def gen_k2():
    k = Kernel('k2_qkv_kernel')
    k('s_cmp_ge_u32 s2, 256')
    k('s_cbranch_scc1 K2_END')
    k(f's_load_dwordx2 s[4:5], s[0:1], {KA_WS}')
    k('v_lshrrev_b32 v1, 6, v0')
    k('v_and_b32 v2, 63, v0')
    k('v_readfirstlane_b32 s18, v1')
    k('s_and_b32 s6, s2, 7')
    k('s_lshr_b32 s7, s2, 3')
    k('s_lshr_b32 s20, s6, 1')
    k('s_lshl_b32 s20, s20, 2')
    k('s_and_b32 s21, s7, 3')
    k('s_add_u32 s20, s20, s21')
    k('s_and_b32 s21, s6, 1')
    k('s_lshl_b32 s21, s21, 3')
    k('s_lshr_b32 s22, s7, 2')
    k('s_add_u32 s21, s21, s22')
    k('s_lshl_b32 s20, s20, 2')
    k('s_add_u32 s20, s20, s18')
    k('v_lshlrev_b32 v3, 4, v2')
    k('s_lshl_b32 s24, s20, 15')
    k(f's_mul_i32 s25, s21, {T_STRIDE}')
    k('s_mul_i32 s26, s18, 3072')
    k('s_add_u32 s25, s25, s26')
    k('s_waitcnt lgkmcnt(0)')
    srd(k, 8, 4, WS_XH, SZ_XH)
    srd(k, 12, 4, WS_WQKV, SZ_WQKV)
    srd(k, 28, 4, WS_Q, 3*SZ_Q)
    vm = VM(k)
    XR, WR, ACC, ONES = 64, 16, 192, 40
    def issue_chunk(c):
        k('s_mov_b32 m0, s26')
        k('s_add_u32 s26, s26, 12288')
        for i in range(3):
            k(f'buffer_load_dwordx4 v3, s[12:15], s25 offen offset:{1024*i} lds')
        k('s_add_u32 s25, s25, 12288')
        vm.issue(('c', c), 3)
        if c < 8:
            for i in range(4):
                s = 4*c + i
                k(f'buffer_load_dwordx4 {vr(XR+4*s,4)}, v3, s[8:11], s24 offen offset:{1024*i}')
            k('s_add_u32 s24, s24, 4096')
            vm.issue(('c', c), 4)
    PF = 4
    for c in range(PF): issue_chunk(c)
    for i in range(4): k(f'v_mov_b32 v{ONES+i}, 0x3f803f80')
    def rd(s):
        st = s & 1
        for u in range(3):
            k(f'ds_read_b128 {vr(WR+12*st+4*u,4)}, v3 offset:{(s*3+u)*1024}' if (s*3+u)*1024 < 65536 else
              f'ds_read_b128 {vr(WR+12*st+4*u,4)}, v4 offset:{(s*3+u)*1024-65536}')
    k('v_add_u32 v4, 0x10000, v3')
    vm.wait(('c', 0)); k('s_barrier')
    rd(0)
    NST = 34
    for c in range(9):
        if c + 1 < 9:
            vm.wait(('c', c+1)); k('s_barrier')
        if c + PF < 9: issue_chunk(c + PF)
        for s in range(4*c, min(4*c+4, NST)):
            st = s & 1
            if s + 1 < NST:
                rd(s+1); k('s_waitcnt lgkmcnt(3)')
            else:
                k('s_waitcnt lgkmcnt(0)')
            xf = vr(XR+4*s, 4) if s < 32 else vr(ONES, 4)
            for u in range(3):
                acc = vr(ACC+16*u, 16); w = vr(WR+12*st+4*u, 4)
                cin = acc if s > 0 else '0'
                if u < 2: k(f'{MF} {acc}, {w}, {xf}, {cin}')
                else:     k(f'{MF} {acc}, {xf}, {w}, {cin}')
    k('s_lshl_b32 s24, s21, 17')
    k('s_lshl_b32 s25, s20, 10')
    k('s_add_u32 s24, s24, s25')
    k('s_add_u32 s25, s24, 0x10000')
    k(f's_add_u32 s26, s24, {SZ_Q}')
    k(f's_add_u32 s27, s25, {SZ_Q}')
    k(f's_add_u32 s22, s24, {2*SZ_Q}')
    k('v_bfe_u32 v5, v2, 4, 1')
    k('v_lshlrev_b32 v5, 16, v5')
    k('v_lshrrev_b32 v6, 5, v2')
    k('v_lshl_add_u32 v5, v6, 8, v5')
    k('v_and_b32 v6, 15, v2')
    k('v_lshl_add_u32 v5, v6, 4, v5')
    for u in range(3):
        for d in range(8):
            k(f'v_cvt_pk_bf16_f32 v{XR+8*u+d}, v{ACC+16*u+2*d}, v{ACC+16*u+2*d+1}')
    k(f'buffer_store_dwordx4 {vr(XR,4)}, v3, s[28:31], s24 offen')
    k(f'buffer_store_dwordx4 {vr(XR+4,4)}, v3, s[28:31], s25 offen')
    k(f'buffer_store_dwordx4 {vr(XR+8,4)}, v3, s[28:31], s26 offen')
    k(f'buffer_store_dwordx4 {vr(XR+12,4)}, v3, s[28:31], s27 offen')
    k(f'buffer_store_dwordx4 {vr(XR+16,4)}, v5, s[28:31], s22 offen')
    k(f'buffer_store_dwordx4 {vr(XR+20,4)}, v5, s[28:31], s22 offen offset:512')
    k.label('K2_END')
    k('s_endpgm')
    kernels.append((k, 256, 256, 9*12288, 240, 240, 40))

def gen_k3():
    k = Kernel('k3_attn_kernel')
    k('s_cmp_ge_u32 s2, 256')
    k('s_cbranch_scc1 K3_END')
    k(f's_load_dwordx2 s[4:5], s[0:1], {KA_WS}')
    k('v_lshrrev_b32 v1, 6, v0')
    k('v_and_b32 v2, 63, v0')
    k('v_readfirstlane_b32 s18, v1')
    k('s_and_b32 s6, s2, 7')
    k('s_lshr_b32 s7, s2, 3')
    k('s_lshl_b32 s20, s6, 2')
    k('s_lshr_b32 s21, s7, 3')
    k('s_add_u32 s20, s20, s21')
    k('s_and_b32 s21, s7, 7')
    k('s_lshl_b32 s21, s21, 3')
    k('s_add_u32 s21, s21, s18')
    k('v_lshlrev_b32 v3, 4, v2')
    k('s_lshl_b32 s22, s20, 16')
    k('s_lshl_b32 s23, s21, 10')
    k('s_add_u32 s23, s23, s22')
    k('s_lshl_b32 s24, s18, 10')
    k('s_add_u32 s25, s22, s24')
    k(f's_add_u32 s25, s25, {SZ_Q}')
    k(f's_add_u32 s26, s25, {SZ_Q}')
    k('s_waitcnt lgkmcnt(0)')
    srd(k, 8, 4, WS_Q, 3*SZ_Q)
    srd(k, 12, 4, WS_O, SZ_Q)
    QF, KF, VF, S0, S1, O, CN, P = 4, 8, 16, 32, 48, 64, 80, 96
    k(f'buffer_load_dwordx4 {vr(QF,4)}, v3, s[8:11], s23 offen')
    for c in range(8):
        k('s_mov_b32 m0, s24')
        k('s_add_u32 s27, s24, 0x10000')
        k('buffer_load_dwordx4 v3, s[8:11], s25 offen lds')
        k('s_mov_b32 m0, s27')
        k('s_add_u32 s24, s24, 8192')
        k('buffer_load_dwordx4 v3, s[8:11], s26 offen lds')
        if c < 7:
            k('s_add_u32 s25, s25, 8192')
            k('s_add_u32 s26, s26, 8192')
    k('v_mov_b32 v104, 0x3f803f80')
    k('v_mov_b32 v105, 0x3f803f80')
    k('v_lshlrev_b32 v106, 3, v0')
    k('v_add_u32 v106, 0x20000, v106')
    k('ds_write_b64 v106, v[104:105]')
    k('ds_write_b64 v106, v[104:105] offset:1024')
    k('v_lshrrev_b32 v107, 5, v2')
    k('v_lshlrev_b32 v107, 8, v107')
    k('v_and_b32 v108, 15, v2')
    k('v_lshl_add_u32 v107, v108, 4, v107')
    k('v_bfe_u32 v108, v2, 4, 1')
    k('v_lshlrev_b32 v109, 16, v108')
    k('v_add_u32 v107, v107, v109')
    k('v_add_u32 v110, 0x10000, v107')
    k('v_sub_u32 v111, 1, v108')
    k('v_lshlrev_b32 v111, 12, v111')
    k('s_mov_b32 s30, 1')
    k('s_waitcnt vmcnt(14) lgkmcnt(0)')
    k('s_barrier')
    bufs = [S0, S1, O, CN]
    for i in range(4):
        k(f'ds_read_b128 {vr(VF+4*i,4)}, v3 offset:{1024*i}')
    k('s_waitcnt lgkmcnt(0)')
    for i in range(4):
        k(f'{MF} {vr(bufs[i],16)}, {vr(VF+4*i,4)}, {vr(QF,4)}, 0')
    k(f'v_max3_f32 v104, v{S0}, v{S0+1}, v{S0+2}')
    rest = [S0+i for i in range(3,16)] + [b+i for b in bufs[1:] for i in range(16)]
    while len(rest) >= 2:
        k(f'v_max3_f32 v104, v104, v{rest[0]}, v{rest[1]}'); rest = rest[2:]
    if rest: k(f'v_max_f32 v104, v104, v{rest[0]}')
    k('v_mov_b32 v105, v104')
    k('v_permlane32_swap_b32 v104, v105')
    k('v_max_f32 v104, v104, v105')
    k(f'v_add_f32 v104, {hex(f2u(40.0))}, v104')
    k.label('K3_RUN')
    for i in range(16): k(f'v_sub_f32 v{CN+i}, 0, v104')
    for i in range(16): k(f'v_mov_b32 v{O+i}, 0')
    for i in range(4): k(f'v_mov_b32 v{P+4+i}, 0')
    for i in range(8): k(f'v_mov_b32 v{VF+8+i}, 0')
    k('v_mov_b32 v112, v3')
    k('v_mov_b32 v113, v110')
    k(f'ds_read_b128 {vr(KF,4)}, v112')
    k(f'ds_read_b128 {vr(KF+4,4)}, v112 offset:1024')
    k(f'ds_read_b128 {vr(VF,4)}, v113')
    k(f'ds_read_b128 {vr(VF+4,4)}, v113 offset:512')
    k('s_waitcnt lgkmcnt(3)')
    k(f'{MF} {vr(S0,16)}, {vr(KF,4)}, {vr(QF,4)}, {vr(CN,16)}')
    k('s_mov_b32 s31, 0')
    k('s_nop 7')
    k.label('K3_LOOP')
    for u in range(4):
        cur, nxt = (S0, S1) if u % 2 == 0 else (S1, S0)
        kc, kn = KF + 4*(u & 1), KF + 4*((u+1) & 1)
        vc, vn = VF + 8*(u & 1), VF + 8*((u+1) & 1)
        k('s_waitcnt lgkmcnt(0)')
        k(f'{MF} {vr(nxt,16)}, {vr(kn,4)}, {vr(QF,4)}, {vr(CN,16)}')
        k(f'{MF} {vr(O,16)}, {vr(vn+4,4)}, {vr(P+4,4)}, {vr(O,16)}')
        k(f'ds_read_b128 {vr(kc,4)}, v112 offset:{1024*(u+2)}')
        k(f'ds_read_b128 {vr(vn,4)}, v113 offset:{1024*(u+1)}')
        k(f'ds_read_b128 {vr(vn+4,4)}, v113 offset:{1024*(u+1)+512}')
        for i in range(8): k(f'v_exp_f32 v{cur+i}, v{cur+i}')
        for d in range(4): k(f'v_cvt_pk_bf16_f32 v{P+d}, v{cur+2*d}, v{cur+2*d+1}')
        for i in range(8, 10): k(f'v_exp_f32 v{cur+i}, v{cur+i}')
        k(f'{MF} {vr(O,16)}, {vr(vc,4)}, {vr(P,4)}, {vr(O,16)}')
        for i in range(10, 16): k(f'v_exp_f32 v{cur+i}, v{cur+i}')
        for d in range(4): k(f'v_cvt_pk_bf16_f32 v{P+4+d}, v{cur+8+2*d}, v{cur+8+2*d+1}')
    k('v_add_u32 v112, 0x1000, v112')
    k('v_add_u32 v113, v113, v111')
    k('s_add_u32 s31, s31, 1')
    k('s_cmp_eq_u32 s30, 1')
    k('s_cbranch_scc0 K3_NOBAR')
    k('s_mov_b32 s30, 0')
    k('s_waitcnt vmcnt(0)')
    k('s_barrier')
    k.label('K3_NOBAR')
    k('s_cmp_lt_u32 s31, 16')
    k('s_cbranch_scc1 K3_LOOP')
    k('s_waitcnt lgkmcnt(0)')
    k(f'{MF} {vr(O,16)}, {vr(VF+8+4,4)}, {vr(P+4,4)}, {vr(O,16)}')
    k('s_nop 15')
    k(f'v_mul_f32 v104, 0, v{O+8}')
    for r in range(8): k(f'v_fmac_f32 v104, 0, v{O+r}')
    k(f'v_mov_b32 v105, {hex(f2u(2.0**64))}')
    k('v_cmp_u_f32 vcc, v104, v104')
    k(f'v_cmp_nlt_f32 s[34:35], v{O+8}, v105')
    k('s_or_b64 s[34:35], vcc, s[34:35]')
    k('s_cbranch_scc0 K3_FIN')
    k('s_cmp_eq_u32 s33, 0x1234')
    k('s_cbranch_scc1 K3_FIN')
    k('s_mov_b32 s33, 0x1234')
    k('v_mov_b32 v112, v3')
    k(f'v_mov_b32 v104, 0xff800000')
    k('s_mov_b32 s31, 0')
    k.label('K3_MAXL')
    k(f'ds_read_b128 {vr(KF,4)}, v112')
    k('s_waitcnt lgkmcnt(0)')
    k(f'{MF} {vr(S0,16)}, {vr(KF,4)}, {vr(QF,4)}, 0')
    k('v_add_u32 v112, 0x400, v112')
    for i in range(0, 16, 2): k(f'v_max3_f32 v104, v104, v{S0+i}, v{S0+i+1}')
    k('s_add_u32 s31, s31, 1')
    k('s_cmp_lt_u32 s31, 64')
    k('s_cbranch_scc1 K3_MAXL')
    k('v_mov_b32 v105, v104')
    k('v_permlane32_swap_b32 v104, v105')
    k('v_max_f32 v104, v104, v105')
    k('s_branch K3_RUN')
    k.label('K3_FIN')
    k(f'v_rcp_f32 v104, v{O+8}')
    for r in range(8): k(f'v_mul_f32 v{O+r}, v{O+r}, v104')
    for d in range(4): k(f'v_cvt_pk_bf16_f32 v{P+d}, v{O+2*d}, v{O+2*d+1}')
    k('s_lshl_b32 s22, s21, 15')
    k('s_lshl_b32 s23, s20, 10')
    k('s_add_u32 s22, s22, s23')
    k(f'buffer_store_dwordx4 {vr(P,4)}, v3, s[12:15], s22 offen')
    k.label('K3_END')
    k('s_endpgm')
    idx = k.lines.index('s_mov_b32 s30, 1')
    k.lines.insert(idx, 's_mov_b32 s33, 0')
    kernels.append((k, 256, 512, 131072 + 5120, 128, 128, 40))

def gen_splitk(name, which):
    k = Kernel(name)
    L = name[:2].upper()
    if which == 'wo':
        NS, RING, TSTR, WSTR = 8, 8, 32*1024, 32*1024
        wsT, szT, wsW, szW = WS_O, SZ_Q, WS_WO, SZ_WO
    else:
        NS, RING, TSTR, WSTR = 22, 12, 86*1024, 86*1024
        wsT, szT, wsW, szW = WS_HM, SZ_HM, WS_W2, SZ_W2
    k('s_cmp_ge_u32 s2, 256')
    k(f's_cbranch_scc1 {L}_END')
    k(f's_load_dwordx2 s[4:5], s[0:1], {KA_WS}')
    if which == 'wo': k(f's_load_dwordx2 s[6:7], s[0:1], {KA_X}')
    else:             k(f's_load_dwordx2 s[6:7], s[0:1], {KA_OUT}')
    k('v_lshrrev_b32 v1, 6, v0')
    k('v_and_b32 v2, 63, v0')
    k('v_readfirstlane_b32 s18, v1')
    k('s_and_b32 s19, s2, 7')
    k('s_lshr_b32 s20, s2, 3')
    k('s_lshl_b32 s21, s19, 2')
    k('s_lshr_b32 s22, s20, 3')
    k('s_add_u32 s21, s21, s22')
    k('s_and_b32 s22, s20, 7')
    k('s_lshl_b32 s21, s21, 1')
    k('s_lshl_b32 s22, s22, 1')
    k('s_lshr_b32 s23, s18, 1')
    k('s_and_b32 s24, s18, 1')
    k('s_add_u32 s25, s21, s23')
    k('s_xor_b32 s23, s23, 1')
    k('s_add_u32 s26, s21, s23')
    k('s_add_u32 s27, s22, s24')
    k('s_xor_b32 s24, s24, 1')
    k('s_add_u32 s28, s22, s24')
    k(f's_mul_i32 s29, s18, {NS*1024}')
    k(f's_mul_i32 s40, s25, {TSTR}')
    k(f's_mul_i32 s41, s26, {TSTR}')
    k(f's_mul_i32 s42, s27, {WSTR}')
    k(f's_mul_i32 s43, s28, {WSTR}')
    for i in range(4): k(f's_add_u32 s{40+i}, s{40+i}, s29')
    k('v_lshlrev_b32 v3, 4, v2')
    k('v_and_b32 v4, 31, v2')
    k('v_lshrrev_b32 v5, 5, v2')
    k('s_waitcnt lgkmcnt(0)')
    srd(k, 8, 4, wsT, szT)
    srd(k, 12, 4, wsW, szW)
    srd(k, 32, 4, WS_MOD, SZ_MOD)
    srd(k, 36, 4, WS_X1, SZ_Q)
    srd(k, 44, 6, 0, 2048*1024)
    vm = VM(k)
    G = 208
    RES = 224
    gidx = 2 if which == 'wo' else 5
    k('s_lshl_b32 s30, s27, 7')
    k(f's_add_u32 s30, s30, {gidx*2048}')
    k('v_lshlrev_b32 v6, 4, v5')
    for q in range(4):
        k(f'buffer_load_dwordx4 {vr(G+4*q,4)}, v6, s[32:35], s30 offen offset:{32*q}')
    vm.issue('epi', 4)
    if which == 'wo':
        k('v_lshlrev_b32 v7, 10, v4')
        k('v_lshl_add_u32 v7, v5, 3, v7')
        k('s_lshl_b32 s31, s25, 15')
        k('s_lshl_b32 s48, s27, 6')
        k('s_add_u32 s31, s31, s48')
        for q in range(4):
            k(f'buffer_load_dwordx2 {vr(RES+2*q,2)}, v7, s[44:47], s31 offen offset:{16*q}')
        vm.issue('epi', 4)
    else:
        k('s_lshl_b32 s31, s25, 15')
        k('s_lshl_b32 s48, s27, 11')
        k('s_add_u32 s31, s31, s48')
        k(f'buffer_load_dwordx4 {vr(RES,4)}, v3, s[36:39], s31 offen')
        k(f'buffer_load_dwordx4 {vr(RES+4,4)}, v3, s[36:39], s31 offen offset:1024')
        vm.issue('epi', 2)
    RB = 16
    if which == 'down':
        k('s_cmp_eq_u32 s18, 3')
        k('s_cselect_b32 s49, 0x40000000, 0')
    def issue_step(s):
        slot = RB + 16*(s % RING)
        if which == 'down' and s == 20:
            for i in range(4): k(f's_add_u32 s{40+i}, s{40+i}, s49')
        off = 1024*(s & 3)
        k(f'buffer_load_dwordx4 {vr(slot,4)}, v3, s[8:11], s40 offen offset:{off}')
        k(f'buffer_load_dwordx4 {vr(slot+8,4)}, v3, s[12:15], s42 offen offset:{off}')
        k(f'buffer_load_dwordx4 {vr(slot+4,4)}, v3, s[8:11], s41 offen offset:{off}')
        k(f'buffer_load_dwordx4 {vr(slot+12,4)}, v3, s[12:15], s43 offen offset:{off}')
        if (s & 3) == 3:
            for i in range(4): k(f's_add_u32 s{40+i}, s{40+i}, 4096')
        vm.issue(('s', s), 4)
    for s in range(min(RING, NS)): issue_step(s)
    for s in range(NS):
        slot = RB + 16*(s % RING)
        vm.wait(('s', s))
        T0, T1, W0, W1 = vr(slot,4), vr(slot+4,4), vr(slot+8,4), vr(slot+12,4)
        for i, (w_, t_) in enumerate(((W0, T0), (W1, T0), (W0, T1), (W1, T1))):
            c = ar(16*i, 16) if s > 0 else '0'
            k(f'{MF} {ar(16*i,16)}, {w_}, {t_}, {c}')
        if s + RING < NS: issue_step(s + RING)
    for i in range(1, 4):
        k(f's_xor_b32 s48, s18, {i}')
        k('s_mul_i32 s48, s48, 12288')
        k(f's_add_u32 s48, s48, {(i-1)*4096}')
        k(f'v_add_u32 v{8+i}, s48, v3')
    for i in range(1, 4):
        for q in range(4):
            k(f'ds_write_b128 v{8+i}, {ar(16*i+4*q,4)} offset:{1024*q}')
    k('s_mul_i32 s48, s18, 12288')
    k('v_add_u32 v8, s48, v3')
    k('s_waitcnt lgkmcnt(0)')
    k('s_barrier')
    R0 = 16
    for j in range(12):
        k(f'ds_read_b128 {vr(R0+4*j,4)}, v8 offset:{1024*j}')
    A = 64
    for r in range(16): k(f'v_accvgpr_read_b32 v{A+r}, a{r}')
    k('s_waitcnt lgkmcnt(0)')
    for i in range(3):
        for r in range(16):
            k(f'v_add_f32 v{A+r}, v{A+r}, v{R0+16*i+r}')
    vm.waitall()
    for d in range(8):
        k(f'v_lshlrev_b32 v{R0+2*d}, 16, v{RES+d}')
        k(f'v_and_b32 v{R0+2*d+1}, 0xffff0000, v{RES+d}')
    for r in range(16):
        k(f'v_fma_f32 v{A+r}, v{A+r}, v{G+r}, v{R0+r}')
    for d in range(8):
        k(f'v_cvt_pk_bf16_f32 v{R0+d}, v{A+2*d}, v{A+2*d+1}')
    if which == 'wo':
        k('s_lshl_b32 s31, s25, 15')
        k('s_lshl_b32 s48, s27, 11')
        k('s_add_u32 s31, s31, s48')
        k(f'buffer_store_dwordx4 {vr(R0,4)}, v3, s[36:39], s31 offen')
        k(f'buffer_store_dwordx4 {vr(R0+4,4)}, v3, s[36:39], s31 offen offset:1024')
        for d in range(8):
            k(f'v_lshlrev_b32 v{A+2*d}, 16, v{R0+d}')
            k(f'v_and_b32 v{A+2*d+1}, 0xffff0000, v{R0+d}')
        k(f'v_add_f32 v8, v{A}, v{A+1}')
        k(f'v_mul_f32 v9, v{A}, v{A}')
        k(f'v_fmac_f32 v9, v{A+1}, v{A+1}')
        for r in range(2, 16):
            k(f'v_add_f32 v8, v8, v{A+r}')
            k(f'v_fmac_f32 v9, v{A+r}, v{A+r}')
        k('v_mov_b32 v10, v8')
        k('v_mov_b32 v11, v9')
        k('v_permlane32_swap_b32 v8, v10')
        k('v_permlane32_swap_b32 v9, v11')
        k('v_add_f32 v8, v8, v10')
        k('v_add_f32 v9, v9, v11')
        srd(k, 32, 4, WS_STATS, SZ_STATS)
        k('v_lshlrev_b32 v10, 7, v4')
        k('s_lshl_b32 s31, s25, 12')
        k('s_lshl_b32 s48, s27, 3')
        k('s_add_u32 s31, s31, s48')
        k('buffer_store_dwordx2 v[8:9], v10, s[32:35], s31 offen')
    else:
        k(f'v_permlane32_swap_b32 v{R0+0}, v{R0+2}')
        k(f'v_permlane32_swap_b32 v{R0+1}, v{R0+3}')
        k(f'v_permlane32_swap_b32 v{R0+4}, v{R0+6}')
        k(f'v_permlane32_swap_b32 v{R0+5}, v{R0+7}')
        k('v_lshlrev_b32 v7, 10, v4')
        k('v_lshl_add_u32 v7, v5, 4, v7')
        k('s_lshl_b32 s31, s25, 15')
        k('s_lshl_b32 s48, s27, 6')
        k('s_add_u32 s31, s31, s48')
        k(f'buffer_store_dwordx4 {vr(R0,4)}, v7, s[44:47], s31 offen')
        k(f'buffer_store_dwordx4 {vr(R0+4,4)}, v7, s[44:47], s31 offen offset:32')
    k.label(f'{L}_END')
    k('s_endpgm')
    kernels.append((k, 256, 256, 49152, 232 + 64, 232, 56))
```

```python
from gen_common import *
from gen2 import VM, MF

def gen_k5():
    k = Kernel('k5_ffn1_kernel')
    NWG = 232
    k(f's_cmp_ge_u32 s2, {NWG}')
    k('s_cbranch_scc1 K5_END')
    k(f's_load_dwordx2 s[4:5], s[0:1], {KA_WS}')
    k('v_lshrrev_b32 v1, 6, v0')
    k('v_and_b32 v2, 63, v0')
    k('v_readfirstlane_b32 s18, v1')
    k('s_and_b32 s6, s2, 7')
    k('s_lshr_b32 s7, s2, 3')
    k('s_mul_i32 s6, s6, 29')
    k('s_add_u32 s6, s6, s7')
    k('s_cmp_ge_u32 s6, 116')
    k('s_cselect_b32 s7, 116, 0')
    k('s_cselect_b32 s19, 4, 0')
    k('s_sub_u32 s6, s6, s7')
    k('s_and_b32 s20, s6, 3')
    k('s_add_u32 s20, s20, s19')
    k('s_lshr_b32 s21, s6, 2')
    k('s_mul_i32 s21, s21, 3')
    k('s_min_u32 s21, s21, 83')
    k('s_lshl_b32 s20, s20, 3')
    k('s_add_u32 s20, s20, s18')
    k('v_lshlrev_b32 v3, 4, v2')
    k('v_and_b32 v4, 31, v2')
    k('v_lshrrev_b32 v5, 5, v2')
    k('s_lshl_b32 s24, s20, 15')
    k(f's_mul_i32 s25, s21, {U_STRIDE}')
    k('s_waitcnt lgkmcnt(0)')
    srd(k, 8, 4, WS_X1, SZ_Q)
    srd(k, 12, 4, WS_W13, SZ_W13)
    srd(k, 28, 4, WS_STATS, SZ_STATS)
    srd(k, 32, 4, WS_HM, SZ_HM)
    vm = VM(k)
    XR, WR, ACC, AUG, ST = 64, 16, 192, 40, 44
    k('v_lshlrev_b32 v6, 7, v4')
    k('v_lshl_add_u32 v6, v5, 6, v6')
    k('s_lshl_b32 s26, s20, 12')
    for i in range(4):
        k(f'buffer_load_dwordx4 {vr(ST+4*i,4)}, v6, s[28:31], s26 offen offset:{16*i}')
    vm.issue('st', 4)
    k('s_mul_i32 s26, s18, 0x5556')
    k('s_lshr_b32 s26, s26, 16')
    k('s_mul_i32 s26, s26, 3')
    k('s_sub_u32 s26, s18, s26')
    k(f's_mul_i32 s27, s26, {U_STRIDE}')
    k('s_add_u32 s27, s27, s25')
    k(f's_add_u32 s27, s27, {32*1024}')
    k('s_lshl_b32 s26, s26, 10')
    k(f's_add_u32 s26, s26, {96*1024}')
    k('s_mov_b32 m0, s26')
    k('s_nop 0')
    k('buffer_load_dwordx4 v3, s[12:15], s27 offen lds')
    vm.issue(('c', 0), 1)
    k('s_lshl_b32 s26, s18, 10')
    k('s_add_u32 s25, s25, s26')
    k('s_mul_i32 s26, s18, 3072')
    def issue_chunk(c):
        for u in range(3):
            k(f's_add_u32 m0, s26, {u*1024}')
            k(f's_add_u32 s27, s25, {u*U_STRIDE}')
            k('buffer_load_dwordx4 v3, s[12:15], s27 offen lds')
        k(f's_add_u32 s26, s26, {8*3072}')
        k(f's_add_u32 s25, s25, {8*1024}')
        vm.issue(('c', c), 3)
        for g in range(2):
            for i in range(4):
                s = 8*c + 4*g + i
                k(f'buffer_load_dwordx4 {vr(XR+4*s,4)}, v3, s[8:11], s24 offen offset:{1024*i}')
            k('s_add_u32 s24, s24, 4096')
        vm.issue(('c', c), 8)
    PF = 2
    for c in range(PF): issue_chunk(c)
    k('v_add_u32 v7, 0x10000, v3')
    def rd(s):
        st = s & 1
        for u in range(3):
            o = (s*3+u)*1024
            k(f'ds_read_b128 {vr(WR+12*st+4*u,4)}, v3 offset:{o}' if o < 65536 else
              f'ds_read_b128 {vr(WR+12*st+4*u,4)}, v7 offset:{o-65536}')
    k('; STAMP 1')
    vm.wait('st')
    for st in (4, 2, 1):
        for i in range(st):
            k(f'v_add_f32 v{ST+2*i}, v{ST+2*i}, v{ST+2*(i+st)}')
            k(f'v_add_f32 v{ST+2*i+1}, v{ST+2*i+1}, v{ST+2*(i+st)+1}')
    k(f'v_mov_b32 v8, v{ST}')
    k(f'v_mov_b32 v9, v{ST+1}')
    k(f'v_permlane32_swap_b32 v{ST}, v8')
    k(f'v_permlane32_swap_b32 v{ST+1}, v9')
    k(f'v_add_f32 v8, v8, v{ST}')
    k(f'v_add_f32 v9, v9, v{ST+1}')
    k(f'v_mul_f32 v8, {hex(f2u(-1/512))}, v8')
    k(f'v_mul_f32 v9, {hex(f2u(1/512))}, v9')
    k('v_fma_f32 v9, -v8, v8, v9')
    k('v_max_f32 v9, 0, v9')
    k(f'v_add_f32 v9, {hex(f2u(1e-5))}, v9')
    k('v_rsq_f32 v10, v9')
    k('v_mul_f32 v9, v9, v10')
    k('v_cvt_pk_bf16_f32 v11, v8, v9')
    k('v_lshlrev_b32 v12, 16, v11')
    k('v_and_b32 v13, 0xffff0000, v11')
    k('v_sub_f32 v12, v8, v12')
    k('v_sub_f32 v13, v9, v13')
    k('v_cvt_pk_bf16_f32 v12, v12, v13')
    k('s_mov_b32 s36, 0x01000100')
    k('s_mov_b32 s37, 0x07060100')
    k('s_mov_b32 s38, 0x07060302')
    k(f'v_perm_b32 v{AUG}, v11, v11, s36')
    k(f'v_perm_b32 v{AUG+1}, v11, v12, s37')
    k(f'v_perm_b32 v{AUG+2}, v12, v11, s38')
    k(f'v_mov_b32 v{AUG+3}, 0')
    k('v_cmp_gt_u32 vcc, 32, v2')
    for i in range(3): k(f'v_cndmask_b32 v{AUG+i}, 0, v{AUG+i}, vcc')
    vm.wait(('c', 0)); k('s_barrier')
    k('; STAMP 2')
    rd(0)
    NST = 33
    for c in range(4):
        if c + 1 < 4:
            vm.wait(('c', c+1)); k('s_barrier')
        if c + PF < 4: issue_chunk(c + PF)
        for s in range(8*c, 8*c+8 + (1 if c == 3 else 0)):
            st = s & 1
            if s + 1 < NST:
                rd(s+1); k('s_waitcnt lgkmcnt(3)')
            else:
                k('s_waitcnt lgkmcnt(0)')
            xf = vr(XR+4*s, 4) if s < 32 else vr(AUG, 4)
            for u in range(3):
                acc = vr(ACC+16*u, 16); w = vr(WR+12*st+4*u, 4)
                k(f'{MF} {acc}, {w}, {xf}, {acc if s > 0 else 0}')
    k('; STAMP 3')
    k(f'v_mul_f32 v11, {hex(f2u(-LOG2E))}, v10')
    k('v_mul_f32 v12, v10, v10')
    k('s_mul_i32 s24, s20, 86')
    k('s_add_u32 s24, s24, s21')
    k('s_lshl_b32 s24, s24, 10')
    T = 64
    for u in range(3):
        a = ACC + 16*u
        for r in range(8): k(f'v_mul_f32 v{T+r}, v{a+r}, v11')
        for r in range(8): k(f'v_exp_f32 v{T+r}, v{T+r}')
        for r in range(8): k(f'v_mul_f32 v{a+r}, v{a+r}, v{a+8+r}')
        for r in range(8): k(f'v_add_f32 v{T+r}, 1.0, v{T+r}')
        for r in range(8): k(f'v_rcp_f32 v{T+r}, v{T+r}')
        for r in range(8): k(f'v_mul_f32 v{a+r}, v{a+r}, v12')
        for r in range(8): k(f'v_mul_f32 v{a+r}, v{a+r}, v{T+r}')
        for d in range(4): k(f'v_cvt_pk_bf16_f32 v{T+16+4*u+d}, v{a+2*d}, v{a+2*d+1}')
        k(f'buffer_store_dwordx4 {vr(T+16+4*u,4)}, v3, s[32:35], s24 offen offset:{1024*u}')
    k.label('K5_END')
    k('s_endpgm')
    kernels.append((k, NWG, 512, 99*1024, 240, 240, 48))

def gen_kp():
    k = Kernel('kp_w13_kernel')
    NWG = 86
    k(f's_cmp_ge_u32 s2, {NWG}')
    k('s_cbranch_scc1 KP_END')
    k(f's_load_dwordx4 s[4:7], s[0:1], {KA_W1}')
    k(f's_load_dwordx2 s[8:9], s[0:1], {KA_WS}')
    k('v_lshrrev_b32 v1, 6, v0')
    k('v_and_b32 v2, 63, v0')
    k('v_readfirstlane_b32 s18, v1')
    k('s_lshr_b32 s19, s18, 2')
    k('s_and_b32 s20, s18, 3')
    k('v_and_b32 v3, 3, v2')
    k('v_bfe_u32 v4, v2, 2, 1')
    k('v_lshrrev_b32 v5, 3, v2')
    k('s_waitcnt lgkmcnt(0)')
    k('s_cmp_eq_u32 s19, 0')
    k('s_cselect_b32 s4, s4, s6')
    k('s_cselect_b32 s5, s5, s7')
    srd(k, 12, 4, 0, 512*2752)
    srd(k, 24, 8, WS_W13, SZ_W13)
    srd(k, 28, 8, WS_MOD, SZ_MOD)
    k('v_lshlrev_b32 v6, 4, v5')
    k('v_lshl_add_u32 v6, v4, 2, v6')
    k('v_mul_u32_u24 v7, 2752, v6')
    k('v_lshl_add_u32 v7, v3, 3, v7')
    k(f's_mul_i32 s21, s20, {128*2752}')
    k('s_lshl_b32 s22, s2, 5')
    k('s_add_u32 s21, s21, s22')
    R = 8
    for j in range(8):
        k(f'buffer_load_dwordx2 {vr(R+2*j,2)}, v7, s[12:15], s21 offen')
        if j < 7: k(f's_add_u32 s21, s21, {2752*(5 if j == 3 else 1)}')
    k('v_lshlrev_b32 v6, 2, v6')
    k('s_lshl_b32 s22, s20, 9')
    SB, CB = 24, 32
    k(f's_add_u32 s23, s22, {3*2048}')
    k(f'buffer_load_dwordx4 {vr(SB,4)}, v6, s[28:31], s23 offen')
    k(f'buffer_load_dwordx4 {vr(SB+4,4)}, v6, s[28:31], s23 offen offset:32')
    k(f's_add_u32 s23, s22, {4*2048}')
    k(f'buffer_load_dwordx4 {vr(CB,4)}, v6, s[28:31], s23 offen')
    k(f'buffer_load_dwordx4 {vr(CB+4,4)}, v6, s[28:31], s23 offen offset:32')
    k('v_lshlrev_b32 v40, 10, v5')
    k('v_lshl_add_u32 v40, v4, 9, v40')
    k('v_lshl_add_u32 v40, v3, 6, v40')
    k(f's_mul_i32 s21, s2, {U_STRIDE}')
    k('s_lshl_b32 s22, s20, 13')
    k('s_add_u32 s21, s21, s22')
    k('s_lshl_b32 s22, s19, 8')
    k('s_add_u32 s21, s21, s22')
    k('s_waitcnt vmcnt(0)')
    for j in range(8):
        k(f'v_add_f32 v{CB+j}, 1.0, v{CB+j}')
    for j in range(8):
        k(f'v_cvt_pk_bf16_f32 v{CB+j}, v{CB+j}, v{CB+j}')
    for j in range(8):
        k(f'v_lshlrev_b32 v{CB+j}, 16, v{CB+j}')
    F = 64
    for j in range(8):
        k(f'v_lshlrev_b32 v{F+4*j+0}, 16, v{R+2*j}')
        k(f'v_and_b32 v{F+4*j+1}, 0xffff0000, v{R+2*j}')
        k(f'v_lshlrev_b32 v{F+4*j+2}, 16, v{R+2*j+1}')
        k(f'v_and_b32 v{F+4*j+3}, 0xffff0000, v{R+2*j+1}')
    BP, CS = 44, 48
    for c in range(4): k(f'v_mul_f32 v{BP+c}, v{F+c}, v{SB}')
    for j in range(1, 8):
        for c in range(4): k(f'v_fmac_f32 v{BP+c}, v{F+4*j+c}, v{SB+j}')
    for j in range(8):
        for c in range(4): k(f'v_mul_f32 v{F+4*j+c}, v{F+4*j+c}, v{CB+j}')
    OUT = 8
    for c in range(4):
        for d in range(4): k(f'v_cvt_pk_bf16_f32 v{OUT+4*c+d}, v{F+8*d+c}, v{F+8*d+4+c}')
    for c in range(4):
        k(f'buffer_store_dwordx4 {vr(OUT+4*c,4)}, v40, s[24:27], s21 offen offset:{16*c}')
    for c in range(4):
        for d in range(4):
            k(f'v_lshlrev_b32 v{F+8*c+2*d}, 16, v{OUT+4*c+d}')
            k(f'v_and_b32 v{F+8*c+2*d+1}, 0xffff0000, v{OUT+4*c+d}')
    for c in range(4):
        k(f'v_add_f32 v{CS+c}, v{F+8*c}, v{F+8*c+1}')
    for i in range(2, 8):
        for c in range(4): k(f'v_add_f32 v{CS+c}, v{CS+c}, v{F+8*c+i}')
    for rot in (8, 4):
        for e in range(8):
            k(f'v_add_f32_dpp v{BP+e}, v{BP+e}, v{BP+e} row_ror:{rot} row_mask:0xf bank_mask:0xf')
    k('v_lshrrev_b32 v52, 4, v0')
    k('v_lshlrev_b32 v52, 7, v52')
    k('v_lshl_add_u32 v52, v3, 5, v52')
    k(f'ds_write_b128 v52, {vr(BP,4)}')
    k(f'ds_write_b128 v52, {vr(CS,4)} offset:16')
    k('s_waitcnt lgkmcnt(0)')
    k('s_barrier')
    k('s_cmp_eq_u32 s18, 0')
    k('s_cbranch_scc0 KP_END')
    k('v_and_b32 v53, 31, v2')
    k('v_lshrrev_b32 v54, 4, v53')
    k('v_lshlrev_b32 v54, 11, v54')
    k('v_bfe_u32 v55, v53, 2, 2')
    k('v_lshl_add_u32 v54, v55, 5, v54')
    k('v_and_b32 v55, 3, v53')
    k('v_lshl_add_u32 v54, v55, 2, v54')
    for p in range(16):
        k(f'ds_read_b32 v{F+p}, v54 offset:{128*p}')
        k(f'ds_read_b32 v{F+16+p}, v54 offset:{128*p+16}')
    k('s_waitcnt lgkmcnt(0)')
    for st in (8, 4, 2, 1):
        for p in range(st):
            k(f'v_add_f32 v{F+p}, v{F+p}, v{F+p+st}')
            k(f'v_add_f32 v{F+16+p}, v{F+16+p}, v{F+16+p+st}')
    k('v_cvt_pk_bf16_f32 v56, v80, v64')
    k('v_lshlrev_b32 v57, 16, v56')
    k('v_and_b32 v58, 0xffff0000, v56')
    k('v_sub_f32 v57, v80, v57')
    k('v_sub_f32 v58, v64, v58')
    k('v_cvt_pk_bf16_f32 v57, v57, v58')
    k('s_mov_b32 s36, 0x05040100')
    k('s_mov_b32 s38, 0x07060302')
    k('v_perm_b32 v60, v57, v56, s36')
    k('v_mov_b32 v61, v56')
    k('v_perm_b32 v62, v56, v57, s38')
    k('v_mov_b32 v63, 0')
    k('v_cmp_gt_u32 vcc, 32, v2')
    for i in range(3): k(f'v_cndmask_b32 v{60+i}, 0, v{60+i}, vcc')
    k('v_lshlrev_b32 v53, 4, v2')
    k(f's_mul_i32 s21, s2, {U_STRIDE}')
    k(f's_add_u32 s21, s21, {32*1024}')
    k('buffer_store_dwordx4 v[60:63], v53, s[24:27], s21 offen')
    k.label('KP_END')
    k('s_endpgm')
    kernels.append((k, NWG, 512, 4096, 128, 128, 48))
```

```python
import sys
from asmlib import Kernel

WS_MOD   = 0x0000000; SZ_MOD = 3072*4
WS_XH    = 0x0010000; SZ_XH = 2048*1024
WS_WQKV  = 0x0210000; T_STRIDE = 36*3072; SZ_WQKV = 16*T_STRIDE
WS_Q     = 0x0400000; SZ_Q = 2048*1024
WS_K     = 0x0600000
WS_VT    = 0x0800000
WS_O     = 0x0A00000
WS_WO    = 0x0C00000; SZ_WO = 512*1024
WS_X1    = 0x0D00000
WS_STATS = 0x0F00000; SZ_STATS = 2048*16*8
WS_W13   = 0x1000000; U_STRIDE = 33*1024; SZ_W13 = 86*U_STRIDE
WS_HM    = 0x1300000; SZ_HM = 64*86*1024
WS_W2    = 0x1900000; SZ_W2 = 16*86*1024

KA_X, KA_WQKV, KA_WO, KA_BX, KA_W1, KA_W3, KA_W2, KA_C, KA_WMOD, KA_OUT, KA_DBG, KA_WS = [8*i for i in range(12)]

LOG2E = 1.4426950408889634
import struct
def f2u(f): return struct.unpack('<I', struct.pack('<f', f))[0]
QSCALE = f2u(0.25*LOG2E)

def srd(k, s, ptr, off, size):
    if off:
        k(f's_add_u32 s{s}, s{ptr}, {hex(off)}')
        k(f's_addc_u32 s{s+1}, s{ptr+1}, 0')
    else:
        k(f's_mov_b32 s{s}, s{ptr}')
        k(f's_mov_b32 s{s+1}, s{ptr+1}')
    k(f's_mov_b32 s{s+2}, {hex(size)}')
    k(f's_mov_b32 s{s+3}, 0x20000')

def vr(a, n=1):
    return f'v{a}' if n == 1 else f'v[{a}:{a+n-1}]'
def ar(a, n=1):
    return f'a{a}' if n == 1 else f'a[{a}:{a+n-1}]'

kernels = []


VERBOSE = '-v' in sys.argv
def emit(path, which=None):
    hdr = open('adaLN_cond__mha_block__glu_gated_swiglu__prompt.s.ref').read().split('\n')
    out = [l for l in hdr if l.startswith(';') and 'offset' in l and 'accum' not in l]
    out = [hdr[0]] + out
    for (k, grid, block, lds, nv, acc, ns) in kernels:
        out.append(f'; @launch kernel={k.name} grid=({grid},1,1) block=({block},1,1) lds={lds}')
    out.append('.amdgcn_target "amdgcn-amd-amdhsa--gfx950"')
    out.append('.text')
    for (k, grid, block, lds, nv, acc, ns) in kernels:
        out.append(f'.globl {k.name}')
        out.append('.p2align 8')
        out.append(f'.type {k.name},@function')
        out.append(f'{k.name}:')
        lines = k.resolve(verbose=VERBOSE)
        out += ['    ' + l if not l.endswith(':') else l for l in lines]
    out.append('.section .rodata,"a"')
    for (k, grid, block, lds, nv, acc, ns) in kernels:
        out.append('.p2align 6')
        out.append(f'.amdhsa_kernel {k.name}')
        out.append(f'  .amdhsa_next_free_vgpr {nv}')
        out.append(f'  .amdhsa_next_free_sgpr {ns}')
        out.append(f'  .amdhsa_accum_offset {acc}')
        out.append('  .amdhsa_group_segment_fixed_size 0')
        out.append('  .amdhsa_kernarg_size 96')
        out.append('  .amdhsa_user_sgpr_count 2')
        out.append('  .amdhsa_user_sgpr_kernarg_segment_ptr 1')
        out.append('  .amdhsa_system_sgpr_workgroup_id_x 1')
        out.append('.end_amdhsa_kernel')
    open(path, 'w').write('\n'.join(out) + '\n')
```

```python
import gen_common as C
from gen1 import gen_k1
from gen2 import gen_k2, gen_k3, gen_splitk
from gen3 import gen_k5, gen_kp
gen_k1(); gen_kp(); gen_k2(); gen_k3(); gen_splitk('k4_wo_kernel', 'wo'); gen_k5(); gen_splitk('k6_down_kernel', 'down')
import sys
C.emit('out_t.s' if C.TIMING else 'out_d.s' if C.DBGT else 'out.s')
print('autonops:', [(k.name, k.autonops) for (k, *_) in C.kernels])
```

```python
from gen_common import *

def gen_k1():
    k = Kernel('k1_prep_kernel')
    NWG = 278
    k(f's_cmp_ge_u32 s2, {NWG}')
    k('s_cbranch_scc1 K1_END')
    k(f's_load_dwordx4 s[4:7], s[0:1], {KA_X}')
    k(f's_load_dwordx2 s[8:9], s[0:1], {KA_WO}')
    k(f's_load_dwordx2 s[10:11], s[0:1], {KA_W2}')
    k(f's_load_dwordx4 s[12:15], s[0:1], {KA_C}')
    k(f's_load_dwordx2 s[16:17], s[0:1], {KA_WS}')
    k('v_lshrrev_b32 v1, 6, v0')
    k('v_and_b32 v2, 63, v0')
    k('v_readfirstlane_b32 s18, v1')
    k('s_cmp_ge_u32 s2, 96')
    k('s_cbranch_scc0 K1_QKV')
    k('s_cmp_ge_u32 s2, 160')
    k('s_cbranch_scc0 K1_XHAT')
    k('s_cmp_ge_u32 s2, 192')
    k('s_cbranch_scc0 K1_WO')
    k('s_sub_u32 s25, s2, 192')
    k('s_waitcnt lgkmcnt(0)')
    srd(k, 20, 10, 0, 1376*1024)
    srd(k, 28, 16, WS_W2, SZ_W2)
    k('s_movk_i32 s24, 1024')
    k('s_mov_b32 s26, 0')
    k('s_mov_b32 s27, 4')
    k(f's_mov_b32 s32, {86*1024}')
    k('s_lshl_b32 s33, s25, 10')
    k('s_lshl_b32 s34, s25, 5')
    k(f's_add_u32 s35, s34, {4*1024}')
    k(f's_add_u32 s34, s34, {3*1024}')
    k('s_cmp_lt_u32 s25, 32')
    k('s_cselect_b32 s36, 2, 0')
    k('s_branch K1_PREP')
    k.label('K1_WO')
    k('s_sub_u32 s25, s2, 160')
    k('s_waitcnt lgkmcnt(0)')
    srd(k, 20, 8, 0, 512*1024)
    srd(k, 28, 16, WS_WO, SZ_WO)
    k('s_movk_i32 s24, 1024')
    k('s_mov_b32 s26, 0')
    k('s_mov_b32 s27, 4')
    k(f's_mov_b32 s32, {32*1024}')
    k('s_lshl_b32 s33, s25, 10')
    k('s_lshl_b32 s34, s25, 5')
    k(f's_add_u32 s35, s34, {5*1024}')
    k(f's_add_u32 s34, s34, {2*1024}')
    k('s_mov_b32 s36, 2')
    k('s_branch K1_PREP')
    k.label('K1_QKV')
    k('s_and_b32 s25, s2, 31')
    k('s_lshr_b32 s19, s2, 5')
    k('s_waitcnt lgkmcnt(0)')
    srd(k, 20, 6, 0, 512*3072)
    srd(k, 28, 16, WS_WQKV, SZ_WQKV)
    k('s_movk_i32 s24, 3072')
    k('s_lshl_b32 s26, s19, 10')
    k('s_mov_b32 s27, 8')
    k(f's_mov_b32 s32, {T_STRIDE}')
    k('s_mul_i32 s33, s25, 3072')
    k('s_add_u32 s33, s33, s26')
    k('s_lshl_b32 s34, s25, 5')
    k(f's_add_u32 s35, s34, 0')
    k(f's_add_u32 s34, s34, {1*1024}')
    k('s_mov_b32 s36, 1')
    k.label('K1_PREP')
    srd(k, 40, 12, 0, 1024)
    srd(k, 44, 14, 0, 512*6144)
    srd(k, 48, 16, WS_MOD, SZ_MOD)
    VC, VA, VB = 8, 16, 32
    k('s_cmp_eq_u32 s36, 0')
    k('s_cbranch_scc1 K1_NOGEMV_LD')
    k('v_lshrrev_b32 v3, 2, v0')
    k('v_and_b32 v4, 3, v0')
    k('v_lshlrev_b32 v5, 1, v3')
    k('v_mul_u32_u24 v6, 6144, v3')
    k('v_lshl_add_u32 v6, v4, 3, v6')
    for m in range(8):
        k(f'buffer_load_ushort v{VC+m}, v5, s[40:43], 0 offen offset:{128*m}')
    k('s_mov_b32 s38, s34')
    k('s_mov_b32 s39, s35')
    for m in range(8):
        k(f'buffer_load_dwordx2 {vr(VA+2*m,2)}, v6, s[44:47], s38 offen')
        k(f'buffer_load_dwordx2 {vr(VB+2*m,2)}, v6, s[44:47], s39 offen')
        if m < 7:
            k(f's_add_u32 s38, s38, {64*6144}')
            k(f's_add_u32 s39, s39, {64*6144}')
    k.label('K1_NOGEMV_LD')
    k('; STAMP 1')
    VR = 48
    k('v_and_b32 v3, 31, v2')
    k('v_lshrrev_b32 v4, 5, v2')
    k('s_mul_i32 s38, s27, s24')
    k('v_mul_lo_u32 v7, v4, s38')
    k('v_lshl_add_u32 v7, v3, 3, v7')
    k('s_lshl_b32 s39, s18, 8')
    k('s_add_u32 s39, s39, s26')
    k('v_add_u32 v7, s39, v7')
    k('s_lshl_b32 s38, s25, 4')
    k('s_mul_i32 s38, s38, s24')
    k('s_sub_u32 s39, 8, s27')
    k('s_mul_i32 s39, s39, s24')
    for j in range(8):
        k(f'buffer_load_dwordx2 {vr(VR+2*j,2)}, v7, s[20:23], s38 offen')
        if j < 7:
            k('s_add_u32 s38, s38, s24')
        if j == 3:
            k('s_add_u32 s38, s38, s39')
    k('v_lshrrev_b32 v5, 3, v3')
    k('s_lshl_b32 s38, s18, 2')
    k('v_add_u32 v5, s38, v5')
    k('v_mul_lo_u32 v64, v5, s32')
    k('v_and_b32 v5, 7, v3')
    k('v_lshlrev_b32 v5, 6, v5')
    k('v_add_u32 v65, v64, v5')
    k('v_lshl_add_u32 v64, v4, 9, v65')
    SC = 66
    k('s_cmp_eq_u32 s36, 0')
    k('s_cbranch_scc1 K1_ONES')
    k('s_waitcnt vmcnt(24)')
    for m in range(8):
        k(f'v_lshlrev_b32 v{VC+m}, 16, v{VC+m}')
    for m in range(8):
        k(f'v_mul_f32 v{82+m}, {hex(f2u(-LOG2E))}, v{VC+m}')
    for m in range(8):
        k(f'v_exp_f32 v{82+m}, v{82+m}')
    for m in range(8):
        k(f'v_add_f32 v{82+m}, 1.0, v{82+m}')
    for m in range(8):
        k(f'v_rcp_f32 v{82+m}, v{82+m}')
    for m in range(8):
        k(f'v_mul_f32 v{VC+m}, v{VC+m}, v{82+m}')
    for m in range(8):
        k(f'v_cvt_pk_bf16_f32 v{VC+m}, v{VC+m}, v{VC+m}')
    for m in range(8):
        k(f'v_lshlrev_b32 v{VC+m}, 16, v{VC+m}')
    ACC = 82
    for e in range(8):
        k(f'v_mov_b32 v{ACC+e}, 0')
    k('s_waitcnt vmcnt(8)')
    k('; STAMP 2')
    for m in range(8):
        for (base, acc) in ((VA, ACC), (VB, ACC+4)):
            a0, a1 = base+2*m, base+2*m+1
            k(f'v_lshlrev_b32 v90, 16, v{a0}')
            k(f'v_and_b32 v91, 0xffff0000, v{a0}')
            k(f'v_lshlrev_b32 v92, 16, v{a1}')
            k(f'v_and_b32 v93, 0xffff0000, v{a1}')
            for e in range(4):
                k(f'v_fmac_f32 v{acc+e}, v{90+e}, v{VC+m}')
    for rot in (8, 4):
        for e in range(8):
            k(f'v_add_f32_dpp v{ACC+e}, v{ACC+e}, v{ACC+e} row_ror:{rot} row_mask:0xf bank_mask:0xf')
    k('v_lshrrev_b32 v90, 4, v0')
    k('v_lshlrev_b32 v90, 7, v90')
    k('v_and_b32 v91, 3, v0')
    k('v_lshl_add_u32 v90, v91, 5, v90')
    k(f'ds_write_b128 v90, {vr(ACC,4)}')
    k(f'ds_write_b128 v90, {vr(ACC+4,4)} offset:16')
    k('s_waitcnt lgkmcnt(0)')
    k('s_barrier')
    k('v_and_b32 v90, 31, v0')
    k('v_bfe_u32 v91, v90, 2, 2')
    k('v_lshlrev_b32 v91, 5, v91')
    k('v_lshrrev_b32 v92, 4, v90')
    k('v_lshl_add_u32 v91, v92, 4, v91')
    k('v_and_b32 v93, 3, v90')
    k('v_lshl_add_u32 v91, v93, 2, v91')
    for p in range(16):
        k(f'ds_read_b32 v{96+p}, v91 offset:{128*p}')
    k('s_waitcnt lgkmcnt(0)')
    for st in (8, 4, 2, 1):
        for p in range(st):
            k(f'v_add_f32 v{96+p}, v{96+p}, v{96+p+st}')
    k('v_cvt_pk_bf16_f32 v96, v96, v96')
    k('v_lshlrev_b32 v96, 16, v96')
    k('s_cmp_eq_u32 s36, 1')
    k('s_cbranch_scc1 K1_SCALE')
    k('v_cmp_gt_u32 vcc, 16, v90')
    k('v_mov_b32 v94, s35')
    k('v_mov_b32 v95, s34')
    k('v_cndmask_b32 v94, v94, v95, vcc')
    k('v_and_b32 v93, 15, v90')
    k('v_lshlrev_b32 v94, 1, v94')
    k('v_lshl_add_u32 v94, v93, 2, v94')
    k('buffer_store_dword v96, v94, s[48:51], 0 offen')
    k.label('K1_ONES')
    for j in range(8):
        k(f'v_mov_b32 v{SC+j}, 1.0')
        k(f'v_mov_b32 v{SC+8+j}, 0')
    k('s_branch K1_XFORM')
    k.label('K1_SCALE')
    k(f's_mov_b32 s38, {hex(QSCALE)}')
    k('s_cmp_eq_u32 s19, 0')
    k('s_cselect_b32 s38, s38, 1.0')
    k('v_add_f32 v97, 1.0, v96')
    k('v_cvt_pk_bf16_f32 v97, v97, v97')
    k('v_lshlrev_b32 v97, 16, v97')
    k('v_cmp_gt_u32 vcc, 16, v90')
    k('v_cndmask_b32 v96, v96, v97, vcc')
    k('v_mul_f32 v96, s38, v96')
    k('s_lshl_b32 s39, s18, 7')
    k('s_add_u32 s39, s39, 2048')
    k('v_lshl_add_u32 v91, v90, 2, s39')
    k('ds_write_b32 v91, v96')
    k('v_lshlrev_b32 v91, 5, v4')
    k('v_add_u32 v91, s39, v91')
    k('s_waitcnt lgkmcnt(0)')
    k(f'ds_read_b128 {vr(SC,4)}, v91')
    k(f'ds_read_b128 {vr(SC+4,4)}, v91 offset:16')
    k(f'ds_read_b128 {vr(SC+8,4)}, v91 offset:64')
    k(f'ds_read_b128 {vr(SC+12,4)}, v91 offset:80')
    k('s_waitcnt lgkmcnt(0)')
    k.label('K1_XFORM')
    k('; STAMP 3')
    k('s_waitcnt vmcnt(0)')
    k('; STAMP 4')
    F = 96
    for j in range(8):
        k(f'v_lshlrev_b32 v{F+4*j+0}, 16, v{VR+2*j}')
        k(f'v_and_b32 v{F+4*j+1}, 0xffff0000, v{VR+2*j}')
        k(f'v_lshlrev_b32 v{F+4*j+2}, 16, v{VR+2*j+1}')
        k(f'v_and_b32 v{F+4*j+3}, 0xffff0000, v{VR+2*j+1}')
    BP = 84
    for c in range(4):
        k(f'v_mul_f32 v{BP+c}, v{F+c}, v{SC+8}')
    for j in range(1, 8):
        for c in range(4):
            k(f'v_fmac_f32 v{BP+c}, v{F+4*j+c}, v{SC+8+j}')
    for j in range(8):
        for c in range(4):
            k(f'v_mul_f32 v{F+4*j+c}, v{F+4*j+c}, v{SC+j}')
    OUT = 8
    for c in range(4):
        for d in range(4):
            k(f'v_cvt_pk_bf16_f32 v{OUT+4*c+d}, v{F+8*d+c}, v{F+8*d+4+c}')
    for c in range(4):
        k(f'buffer_store_dwordx4 {vr(OUT+4*c,4)}, v64, s[28:31], s33 offen offset:{16*c}')
    k('s_cmp_eq_u32 s36, 1')
    k('s_cbranch_scc0 K1_END')
    for c in range(4):
        k(f'v_mov_b32 v{88+c}, v{BP+c}')
    for c in range(4):
        k(f'v_permlane32_swap_b32 v{BP+c}, v{88+c}')
    for c in range(4):
        k(f'v_add_f32 v{BP+c}, v{BP+c}, v{88+c}')
    for c in range(4):
        k(f'v_cvt_pk_bf16_f32 v{BP+c}, v{BP+c}, v{BP+c}')
    k('s_lshr_b32 s38, s25, 4')
    k('s_add_u32 s38, s38, 32')
    k('s_mul_i32 s38, s38, 3072')
    k('s_add_u32 s38, s38, s26')
    k('s_bfe_u32 s39, s25, 0x10003')
    k('s_lshl_b32 s39, s39, 9')
    k('s_add_u32 s38, s38, s39')
    k('s_and_b32 s39, s25, 7')
    k('s_lshl_b32 s39, s39, 1')
    k('s_add_u32 s38, s38, s39')
    for c in range(4):
        k(f'buffer_store_short v{BP+c}, v65, s[28:31], s38 offen offset:{16*c}')
    k('s_endpgm')

    k.label('K1_XHAT')
    k('s_sub_u32 s25, s2, 96')
    k('s_waitcnt lgkmcnt(0)')
    srd(k, 20, 4, 0, 2048*1024)
    srd(k, 28, 16, WS_XH, SZ_XH)
    k('v_and_b32 v3, 31, v2')
    k('v_lshrrev_b32 v4, 5, v2')
    k('v_lshlrev_b32 v5, 10, v3')
    k('v_lshl_add_u32 v5, v4, 4, v5')
    k('s_lshl_b32 s26, s18, 8')
    k('v_add_u32 v5, s26, v5')
    k('s_lshl_b32 s27, s25, 15')
    X = 8
    for s in range(8):
        k(f'buffer_load_dwordx4 {vr(X+4*s,4)}, v5, s[20:23], s27 offen offset:{32*s}')
    F = 48
    k('v_mov_b32 v40, 0')
    k('v_mov_b32 v41, 0')
    k('v_mov_b32 v42, 0')
    k('v_mov_b32 v43, 0')
    for s in range(8):
        k(f's_waitcnt vmcnt({7-s})')
        for d in range(4):
            k(f'v_lshlrev_b32 v{F+8*s+2*d}, 16, v{X+4*s+d}')
            k(f'v_and_b32 v{F+8*s+2*d+1}, 0xffff0000, v{X+4*s+d}')
        for d in range(4):
            k(f'v_add_f32 v40, v40, v{F+8*s+2*d}')
            k(f'v_add_f32 v41, v41, v{F+8*s+2*d+1}')
            k(f'v_fmac_f32 v42, v{F+8*s+2*d}, v{F+8*s+2*d}')
            k(f'v_fmac_f32 v43, v{F+8*s+2*d+1}, v{F+8*s+2*d+1}')
    k('v_add_f32 v40, v40, v41')
    k('v_add_f32 v41, v42, v43')
    k('v_lshlrev_b32 v44, 3, v0')
    k('ds_write_b64 v44, v[40:41]')
    k('v_lshlrev_b32 v45, 3, v3')
    k('s_waitcnt lgkmcnt(0)')
    k('s_barrier')
    for i in range(8):
        k(f'ds_read_b64 {vr(112+2*i,2)}, v45 offset:{256*i}')
    k('s_waitcnt lgkmcnt(0)')
    for st in (4, 2, 1):
        for i in range(st):
            k(f'v_add_f32 v{112+2*i}, v{112+2*i}, v{112+2*(i+st)}')
            k(f'v_add_f32 v{113+2*i}, v{113+2*i}, v{113+2*(i+st)}')
    k(f'v_mul_f32 v40, {hex(f2u(1/512))}, v112')
    k(f'v_mul_f32 v41, {hex(f2u(1/512))}, v113')
    k('v_fma_f32 v41, -v40, v40, v41')
    k('v_max_f32 v41, 0, v41')
    k(f'v_add_f32 v41, {hex(f2u(1e-5))}, v41')
    k('v_rsq_f32 v41, v41')
    k('v_mul_f32 v40, v40, v41')
    k('v_sub_f32 v40, 0, v40')
    for i in range(64):
        k(f'v_fma_f32 v{F+i}, v{F+i}, v41, v40')
    for i in range(32):
        k(f'v_cvt_pk_bf16_f32 v{X+i}, v{F+2*i}, v{F+2*i+1}')
    k('v_lshlrev_b32 v5, 4, v2')
    k('s_lshl_b32 s26, s18, 13')
    k('s_add_u32 s27, s27, s26')
    k('s_add_u32 s26, s27, 4096')
    for s in range(8):
        k(f'buffer_store_dwordx4 {vr(X+4*s,4)}, v5, s[28:31], s{27 if s<4 else 26} offen offset:{1024*(s&3)}')
    k.label('K1_END')
    k('s_endpgm')
    kernels.append((k, NWG, 256, 4096, 128, 128, 64))
```

```python
from gen_common import *

class VM:
    def __init__(self, k): self.k = k; self.q = []
    def issue(self, tag, n=1):
        for _ in range(n): self.q.append(tag)
    def wait(self, tag):
        idx = max((i for i, t in enumerate(self.q) if t == tag), default=-1)
        if idx < 0: return
        n = len(self.q) - 1 - idx
        assert n <= 63
        self.k(f's_waitcnt vmcnt({n})')
        self.q = self.q[idx+1:]
    def waitall(self):
        self.k('s_waitcnt vmcnt(0)'); self.q = []

MF = 'v_mfma_f32_32x32x16_bf16'

def gen_k2():
    k = Kernel('k2_qkv_kernel')
    k('s_cmp_ge_u32 s2, 256')
    k('s_cbranch_scc1 K2_END')
    k(f's_load_dwordx2 s[4:5], s[0:1], {KA_WS}')
    k('v_lshrrev_b32 v1, 6, v0')
    k('v_and_b32 v2, 63, v0')
    k('v_readfirstlane_b32 s18, v1')
    k('s_and_b32 s6, s2, 7')
    k('s_lshr_b32 s7, s2, 3')
    k('s_lshr_b32 s20, s6, 1')
    k('s_lshl_b32 s20, s20, 2')
    k('s_and_b32 s21, s7, 3')
    k('s_add_u32 s20, s20, s21')
    k('s_and_b32 s21, s6, 1')
    k('s_lshl_b32 s21, s21, 3')
    k('s_lshr_b32 s22, s7, 2')
    k('s_add_u32 s21, s21, s22')
    k('s_lshl_b32 s20, s20, 2')
    k('s_add_u32 s20, s20, s18')
    k('v_lshlrev_b32 v3, 4, v2')
    k('s_lshl_b32 s24, s20, 15')
    k(f's_mul_i32 s25, s21, {T_STRIDE}')
    k('s_mul_i32 s26, s18, 3072')
    k('s_add_u32 s25, s25, s26')
    k('s_waitcnt lgkmcnt(0)')
    srd(k, 8, 4, WS_XH, SZ_XH)
    srd(k, 12, 4, WS_WQKV, SZ_WQKV)
    srd(k, 28, 4, WS_Q, 3*SZ_Q)
    vm = VM(k)
    XR, WR, ACC, ONES = 64, 16, 192, 40
    def issue_chunk(c):
        k('s_mov_b32 m0, s26')
        k('s_add_u32 s26, s26, 12288')
        for i in range(3):
            k(f'buffer_load_dwordx4 v3, s[12:15], s25 offen offset:{1024*i} lds')
        k('s_add_u32 s25, s25, 12288')
        vm.issue(('c', c), 3)
        if c < 8:
            for i in range(4):
                s = 4*c + i
                k(f'buffer_load_dwordx4 {vr(XR+4*s,4)}, v3, s[8:11], s24 offen offset:{1024*i}')
            k('s_add_u32 s24, s24, 4096')
            vm.issue(('c', c), 4)
    PF = 4
    for c in range(PF): issue_chunk(c)
    for i in range(4): k(f'v_mov_b32 v{ONES+i}, 0x3f803f80')
    def rd(s):
        st = s & 1
        for u in range(3):
            k(f'ds_read_b128 {vr(WR+12*st+4*u,4)}, v3 offset:{(s*3+u)*1024}' if (s*3+u)*1024 < 65536 else
              f'ds_read_b128 {vr(WR+12*st+4*u,4)}, v4 offset:{(s*3+u)*1024-65536}')
    k('v_add_u32 v4, 0x10000, v3')
    k('; STAMP 1')
    vm.wait(('c', 0)); k('s_barrier')
    k('; STAMP 2')
    rd(0)
    NST = 34
    for c in range(9):
        if c + 1 < 9:
            vm.wait(('c', c+1)); k('s_barrier')
        if c + PF < 9: issue_chunk(c + PF)
        for s in range(4*c, min(4*c+4, NST)):
            st = s & 1
            if s + 1 < NST:
                rd(s+1); k('s_waitcnt lgkmcnt(3)')
            else:
                k('s_waitcnt lgkmcnt(0)')
            xf = vr(XR+4*s, 4) if s < 32 else vr(ONES, 4)
            for u in range(3):
                acc = vr(ACC+16*u, 16); w = vr(WR+12*st+4*u, 4)
                cin = acc if s > 0 else '0'
                if u < 2: k(f'{MF} {acc}, {w}, {xf}, {cin}')
                else:     k(f'{MF} {acc}, {xf}, {w}, {cin}')
    k('; STAMP 3')
    k('s_lshl_b32 s24, s21, 17')
    k('s_lshl_b32 s25, s20, 10')
    k('s_add_u32 s24, s24, s25')
    k('s_add_u32 s25, s24, 0x10000')
    k(f's_add_u32 s26, s24, {SZ_Q}')
    k(f's_add_u32 s27, s25, {SZ_Q}')
    k(f's_add_u32 s22, s24, {2*SZ_Q}')
    k('v_bfe_u32 v5, v2, 4, 1')
    k('v_lshlrev_b32 v5, 16, v5')
    k('v_lshrrev_b32 v6, 5, v2')
    k('v_lshl_add_u32 v5, v6, 8, v5')
    k('v_and_b32 v6, 15, v2')
    k('v_lshl_add_u32 v5, v6, 4, v5')
    for u in range(3):
        for d in range(8):
            k(f'v_cvt_pk_bf16_f32 v{XR+8*u+d}, v{ACC+16*u+2*d}, v{ACC+16*u+2*d+1}')
    k(f'buffer_store_dwordx4 {vr(XR,4)}, v3, s[28:31], s24 offen')
    k(f'buffer_store_dwordx4 {vr(XR+4,4)}, v3, s[28:31], s25 offen')
    k(f'buffer_store_dwordx4 {vr(XR+8,4)}, v3, s[28:31], s26 offen')
    k(f'buffer_store_dwordx4 {vr(XR+12,4)}, v3, s[28:31], s27 offen')
    k(f'buffer_store_dwordx4 {vr(XR+16,4)}, v5, s[28:31], s22 offen')
    k(f'buffer_store_dwordx4 {vr(XR+20,4)}, v5, s[28:31], s22 offen offset:512')
    k.label('K2_END')
    k('s_endpgm')
    kernels.append((k, 256, 256, 9*12288, 240, 240, 40))

def gen_k3():
    k = Kernel('k3_attn_kernel')
    k('s_cmp_ge_u32 s2, 256')
    k('s_cbranch_scc1 K3_END')
    k(f's_load_dwordx2 s[4:5], s[0:1], {KA_WS}')
    k('v_lshrrev_b32 v1, 6, v0')
    k('v_and_b32 v2, 63, v0')
    k('v_readfirstlane_b32 s18, v1')
    k('s_and_b32 s6, s2, 7')
    k('s_lshr_b32 s7, s2, 3')
    k('s_lshl_b32 s20, s6, 2')
    k('s_lshr_b32 s21, s7, 3')
    k('s_add_u32 s20, s20, s21')
    k('s_and_b32 s21, s7, 7')
    k('s_lshl_b32 s21, s21, 3')
    k('s_add_u32 s21, s21, s18')
    k('v_lshlrev_b32 v3, 4, v2')
    k('s_lshl_b32 s22, s20, 16')
    k('s_lshl_b32 s23, s21, 10')
    k('s_add_u32 s23, s23, s22')
    k('s_lshl_b32 s24, s18, 10')
    k('s_add_u32 s25, s22, s24')
    k(f's_add_u32 s25, s25, {SZ_Q}')
    k(f's_add_u32 s26, s25, {SZ_Q}')
    k('s_waitcnt lgkmcnt(0)')
    srd(k, 8, 4, WS_Q, 3*SZ_Q)
    srd(k, 12, 4, WS_O, SZ_Q)
    QF, KF, VF, S0, S1, O, CN, P = 4, 8, 16, 32, 48, 64, 80, 96
    k(f'buffer_load_dwordx4 {vr(QF,4)}, v3, s[8:11], s23 offen')
    for c in range(8):
        k('s_mov_b32 m0, s24')
        k('s_add_u32 s27, s24, 0x10000')
        k('buffer_load_dwordx4 v3, s[8:11], s25 offen lds')
        k('s_mov_b32 m0, s27')
        k('s_add_u32 s24, s24, 8192')
        k('buffer_load_dwordx4 v3, s[8:11], s26 offen lds')
        if c < 7:
            k('s_add_u32 s25, s25, 8192')
            k('s_add_u32 s26, s26, 8192')
    k('v_mov_b32 v104, 0x3f803f80')
    k('v_mov_b32 v105, 0x3f803f80')
    k('v_lshlrev_b32 v106, 3, v0')
    k('v_add_u32 v106, 0x20000, v106')
    k('ds_write_b64 v106, v[104:105]')
    k('ds_write_b64 v106, v[104:105] offset:1024')
    k('v_lshrrev_b32 v107, 5, v2')
    k('v_lshlrev_b32 v107, 8, v107')
    k('v_and_b32 v108, 15, v2')
    k('v_lshl_add_u32 v107, v108, 4, v107')
    k('v_bfe_u32 v108, v2, 4, 1')
    k('v_lshlrev_b32 v109, 16, v108')
    k('v_add_u32 v107, v107, v109')
    k('v_add_u32 v110, 0x10000, v107')
    k('v_sub_u32 v111, 1, v108')
    k('v_lshlrev_b32 v111, 12, v111')
    k('s_mov_b32 s30, 1')
    k('; STAMP 1')
    k('s_waitcnt vmcnt(14) lgkmcnt(0)')
    k('s_barrier')
    k('; STAMP 2')
    bufs = [S0, S1, O, CN]
    for i in range(4):
        k(f'ds_read_b128 {vr(VF+4*i,4)}, v3 offset:{1024*i}')
    k('s_waitcnt lgkmcnt(0)')
    for i in range(4):
        k(f'{MF} {vr(bufs[i],16)}, {vr(VF+4*i,4)}, {vr(QF,4)}, 0')
    k(f'v_max3_f32 v104, v{S0}, v{S0+1}, v{S0+2}')
    rest = [S0+i for i in range(3,16)] + [b+i for b in bufs[1:] for i in range(16)]
    while len(rest) >= 2:
        k(f'v_max3_f32 v104, v104, v{rest[0]}, v{rest[1]}'); rest = rest[2:]
    if rest: k(f'v_max_f32 v104, v104, v{rest[0]}')
    k('v_mov_b32 v105, v104')
    k('v_permlane32_swap_b32 v104, v105')
    k('v_max_f32 v104, v104, v105')
    k(f'v_add_f32 v104, {hex(f2u(40.0))}, v104')
    k.label('K3_RUN')
    for i in range(16): k(f'v_sub_f32 v{CN+i}, 0, v104')
    for i in range(16): k(f'v_mov_b32 v{O+i}, 0')
    for i in range(4): k(f'v_mov_b32 v{P+4+i}, 0')
    for i in range(8): k(f'v_mov_b32 v{VF+8+i}, 0')
    k('v_mov_b32 v112, v3')
    k('v_mov_b32 v113, v110')
    k(f'ds_read_b128 {vr(KF,4)}, v112')
    k(f'ds_read_b128 {vr(KF+4,4)}, v112 offset:1024')
    k(f'ds_read_b128 {vr(VF,4)}, v113')
    k(f'ds_read_b128 {vr(VF+4,4)}, v113 offset:512')
    k('s_waitcnt lgkmcnt(3)')
    k(f'{MF} {vr(S0,16)}, {vr(KF,4)}, {vr(QF,4)}, {vr(CN,16)}')
    k('s_mov_b32 s31, 0')
    k('s_nop 7')
    k('; STAMP 3')
    k.label('K3_LOOP')
    for u in range(4):
        cur, nxt = (S0, S1) if u % 2 == 0 else (S1, S0)
        kc, kn = KF + 4*(u & 1), KF + 4*((u+1) & 1)
        vc, vn = VF + 8*(u & 1), VF + 8*((u+1) & 1)
        k('s_waitcnt lgkmcnt(0)')
        k(f'{MF} {vr(nxt,16)}, {vr(kn,4)}, {vr(QF,4)}, {vr(CN,16)}')
        k(f'{MF} {vr(O,16)}, {vr(vn+4,4)}, {vr(P+4,4)}, {vr(O,16)}')
        k(f'ds_read_b128 {vr(kc,4)}, v112 offset:{1024*(u+2)}')
        k(f'ds_read_b128 {vr(vn,4)}, v113 offset:{1024*(u+1)}')
        k(f'ds_read_b128 {vr(vn+4,4)}, v113 offset:{1024*(u+1)+512}')
        for i in range(8): k(f'v_exp_f32 v{cur+i}, v{cur+i}')
        for d in range(4): k(f'v_cvt_pk_bf16_f32 v{P+d}, v{cur+2*d}, v{cur+2*d+1}')
        for i in range(8, 10): k(f'v_exp_f32 v{cur+i}, v{cur+i}')
        k(f'{MF} {vr(O,16)}, {vr(vc,4)}, {vr(P,4)}, {vr(O,16)}')
        for i in range(10, 16): k(f'v_exp_f32 v{cur+i}, v{cur+i}')
        for d in range(4): k(f'v_cvt_pk_bf16_f32 v{P+4+d}, v{cur+8+2*d}, v{cur+8+2*d+1}')
    k('v_add_u32 v112, 0x1000, v112')
    k('v_add_u32 v113, v113, v111')
    k('s_add_u32 s31, s31, 1')
    k('s_cmp_eq_u32 s30, 1')
    k('s_cbranch_scc0 K3_NOBAR')
    k('s_mov_b32 s30, 0')
    k('s_waitcnt vmcnt(0)')
    k('s_barrier')
    k.label('K3_NOBAR')
    k('s_cmp_lt_u32 s31, 16')
    k('s_cbranch_scc1 K3_LOOP')
    k('; STAMP 4')
    k('s_waitcnt lgkmcnt(0)')
    k(f'{MF} {vr(O,16)}, {vr(VF+8+4,4)}, {vr(P+4,4)}, {vr(O,16)}')
    k('s_nop 15')
    k(f'v_mul_f32 v104, 0, v{O+8}')
    for r in range(8): k(f'v_fmac_f32 v104, 0, v{O+r}')
    k(f'v_mov_b32 v105, {hex(f2u(2.0**64))}')
    k('v_cmp_u_f32 vcc, v104, v104')
    k(f'v_cmp_nlt_f32 s[34:35], v{O+8}, v105')
    k('s_or_b64 s[34:35], vcc, s[34:35]')
    k('s_cbranch_scc0 K3_FIN')
    k('s_cmp_eq_u32 s33, 0x1234')
    k('s_cbranch_scc1 K3_FIN')
    k('s_mov_b32 s33, 0x1234')
    k('v_mov_b32 v112, v3')
    k(f'v_mov_b32 v104, 0xff800000')
    k('s_mov_b32 s31, 0')
    k.label('K3_MAXL')
    k(f'ds_read_b128 {vr(KF,4)}, v112')
    k('s_waitcnt lgkmcnt(0)')
    k(f'{MF} {vr(S0,16)}, {vr(KF,4)}, {vr(QF,4)}, 0')
    k('v_add_u32 v112, 0x400, v112')
    for i in range(0, 16, 2): k(f'v_max3_f32 v104, v104, v{S0+i}, v{S0+i+1}')
    k('s_add_u32 s31, s31, 1')
    k('s_cmp_lt_u32 s31, 64')
    k('s_cbranch_scc1 K3_MAXL')
    k('v_mov_b32 v105, v104')
    k('v_permlane32_swap_b32 v104, v105')
    k('v_max_f32 v104, v104, v105')
    k('s_branch K3_RUN')
    k.label('K3_FIN')
    k(f'v_rcp_f32 v104, v{O+8}')
    for r in range(8): k(f'v_mul_f32 v{O+r}, v{O+r}, v104')
    for d in range(4): k(f'v_cvt_pk_bf16_f32 v{P+d}, v{O+2*d}, v{O+2*d+1}')
    k('s_lshl_b32 s22, s21, 15')
    k('s_lshl_b32 s23, s20, 10')
    k('s_add_u32 s22, s22, s23')
    k(f'buffer_store_dwordx4 {vr(P,4)}, v3, s[12:15], s22 offen')
    k.label('K3_END')
    k('s_endpgm')
    idx = k.lines.index('s_mov_b32 s30, 1')
    k.lines.insert(idx, 's_mov_b32 s33, 0')
    kernels.append((k, 256, 512, 131072 + 5120, 128, 128, 40))

def gen_splitk(name, which):
    k = Kernel(name)
    L = name[:2].upper()
    if which == 'wo':
        NS, RING, TSTR, WSTR = 8, 8, 32*1024, 32*1024
        wsT, szT, wsW, szW = WS_O, SZ_Q, WS_WO, SZ_WO
    else:
        NS, RING, TSTR, WSTR = 22, 12, 86*1024, 86*1024
        wsT, szT, wsW, szW = WS_HM, SZ_HM, WS_W2, SZ_W2
    k('s_cmp_ge_u32 s2, 256')
    k(f's_cbranch_scc1 {L}_END')
    k(f's_load_dwordx2 s[4:5], s[0:1], {KA_WS}')
    if which == 'wo': k(f's_load_dwordx2 s[6:7], s[0:1], {KA_X}')
    else:             k(f's_load_dwordx2 s[6:7], s[0:1], {KA_OUT}')
    k('v_lshrrev_b32 v1, 6, v0')
    k('v_and_b32 v2, 63, v0')
    k('v_readfirstlane_b32 s18, v1')
    k('s_and_b32 s19, s2, 7')
    k('s_lshr_b32 s20, s2, 3')
    k('s_lshl_b32 s21, s19, 2')
    k('s_lshr_b32 s22, s20, 3')
    k('s_add_u32 s21, s21, s22')
    k('s_and_b32 s22, s20, 7')
    k('s_lshl_b32 s21, s21, 1')
    k('s_lshl_b32 s22, s22, 1')
    k('s_lshr_b32 s23, s18, 1')
    k('s_and_b32 s24, s18, 1')
    k('s_add_u32 s25, s21, s23')
    k('s_xor_b32 s23, s23, 1')
    k('s_add_u32 s26, s21, s23')
    k('s_add_u32 s27, s22, s24')
    k('s_xor_b32 s24, s24, 1')
    k('s_add_u32 s28, s22, s24')
    k(f's_mul_i32 s29, s18, {NS*1024}')
    k(f's_mul_i32 s40, s25, {TSTR}')
    k(f's_mul_i32 s41, s26, {TSTR}')
    k(f's_mul_i32 s42, s27, {WSTR}')
    k(f's_mul_i32 s43, s28, {WSTR}')
    for i in range(4): k(f's_add_u32 s{40+i}, s{40+i}, s29')
    k('v_lshlrev_b32 v3, 4, v2')
    k('v_and_b32 v4, 31, v2')
    k('v_lshrrev_b32 v5, 5, v2')
    k('s_waitcnt lgkmcnt(0)')
    srd(k, 8, 4, wsT, szT)
    srd(k, 12, 4, wsW, szW)
    srd(k, 32, 4, WS_MOD, SZ_MOD)
    srd(k, 36, 4, WS_X1, SZ_Q)
    srd(k, 44, 6, 0, 2048*1024)
    k('; STAMP 1')
    vm = VM(k)
    G = 208
    RES = 224
    gidx = 2 if which == 'wo' else 5
    k('s_lshl_b32 s30, s27, 7')
    k(f's_add_u32 s30, s30, {gidx*2048}')
    k('v_lshlrev_b32 v6, 4, v5')
    for q in range(4):
        k(f'buffer_load_dwordx4 {vr(G+4*q,4)}, v6, s[32:35], s30 offen offset:{32*q}')
    vm.issue('epi', 4)
    if which == 'wo':
        k('v_lshlrev_b32 v7, 10, v4')
        k('v_lshl_add_u32 v7, v5, 3, v7')
        k('s_lshl_b32 s31, s25, 15')
        k('s_lshl_b32 s48, s27, 6')
        k('s_add_u32 s31, s31, s48')
        for q in range(4):
            k(f'buffer_load_dwordx2 {vr(RES+2*q,2)}, v7, s[44:47], s31 offen offset:{16*q}')
        vm.issue('epi', 4)
    else:
        k('s_lshl_b32 s31, s25, 15')
        k('s_lshl_b32 s48, s27, 11')
        k('s_add_u32 s31, s31, s48')
        k(f'buffer_load_dwordx4 {vr(RES,4)}, v3, s[36:39], s31 offen')
        k(f'buffer_load_dwordx4 {vr(RES+4,4)}, v3, s[36:39], s31 offen offset:1024')
        vm.issue('epi', 2)
    RB = 16
    if which == 'down':
        k('s_cmp_eq_u32 s18, 3')
        k('s_cselect_b32 s49, 0x40000000, 0')
    def issue_step(s):
        slot = RB + 16*(s % RING)
        if which == 'down' and s == 20:
            for i in range(4): k(f's_add_u32 s{40+i}, s{40+i}, s49')
        off = 1024*(s & 3)
        k(f'buffer_load_dwordx4 {vr(slot,4)}, v3, s[8:11], s40 offen offset:{off}')
        k(f'buffer_load_dwordx4 {vr(slot+8,4)}, v3, s[12:15], s42 offen offset:{off}')
        k(f'buffer_load_dwordx4 {vr(slot+4,4)}, v3, s[8:11], s41 offen offset:{off}')
        k(f'buffer_load_dwordx4 {vr(slot+12,4)}, v3, s[12:15], s43 offen offset:{off}')
        if (s & 3) == 3:
            for i in range(4): k(f's_add_u32 s{40+i}, s{40+i}, 4096')
        vm.issue(('s', s), 4)
    for s in range(min(RING, NS)): issue_step(s)
    for s in range(NS):
        slot = RB + 16*(s % RING)
        vm.wait(('s', s))
        if s == 0: k('; STAMP 2')
        T0, T1, W0, W1 = vr(slot,4), vr(slot+4,4), vr(slot+8,4), vr(slot+12,4)
        for i, (w_, t_) in enumerate(((W0, T0), (W1, T0), (W0, T1), (W1, T1))):
            c = ar(16*i, 16) if s > 0 else '0'
            k(f'{MF} {ar(16*i,16)}, {w_}, {t_}, {c}')
        if s + RING < NS: issue_step(s + RING)
    k('; STAMP 3')
    for i in range(1, 4):
        k(f's_xor_b32 s48, s18, {i}')
        k('s_mul_i32 s48, s48, 12288')
        k(f's_add_u32 s48, s48, {(i-1)*4096}')
        k(f'v_add_u32 v{8+i}, s48, v3')
    for i in range(1, 4):
        for q in range(4):
            k(f'ds_write_b128 v{8+i}, {ar(16*i+4*q,4)} offset:{1024*q}')
    k('s_mul_i32 s48, s18, 12288')
    k('v_add_u32 v8, s48, v3')
    k('s_waitcnt lgkmcnt(0)')
    k('s_barrier')
    R0 = 16
    for j in range(12):
        k(f'ds_read_b128 {vr(R0+4*j,4)}, v8 offset:{1024*j}')
    A = 64
    for r in range(16): k(f'v_accvgpr_read_b32 v{A+r}, a{r}')
    k('s_waitcnt lgkmcnt(0)')
    for i in range(3):
        for r in range(16):
            k(f'v_add_f32 v{A+r}, v{A+r}, v{R0+16*i+r}')
    vm.waitall()
    k('; STAMP 4')
    for d in range(8):
        k(f'v_lshlrev_b32 v{R0+2*d}, 16, v{RES+d}')
        k(f'v_and_b32 v{R0+2*d+1}, 0xffff0000, v{RES+d}')
    for r in range(16):
        k(f'v_fma_f32 v{A+r}, v{A+r}, v{G+r}, v{R0+r}')
    for d in range(8):
        k(f'v_cvt_pk_bf16_f32 v{R0+d}, v{A+2*d}, v{A+2*d+1}')
    if which == 'wo':
        k('s_lshl_b32 s31, s25, 15')
        k('s_lshl_b32 s48, s27, 11')
        k('s_add_u32 s31, s31, s48')
        k(f'buffer_store_dwordx4 {vr(R0,4)}, v3, s[36:39], s31 offen')
        k(f'buffer_store_dwordx4 {vr(R0+4,4)}, v3, s[36:39], s31 offen offset:1024')
        for d in range(8):
            k(f'v_lshlrev_b32 v{A+2*d}, 16, v{R0+d}')
            k(f'v_and_b32 v{A+2*d+1}, 0xffff0000, v{R0+d}')
        k(f'v_add_f32 v8, v{A}, v{A+1}')
        k(f'v_mul_f32 v9, v{A}, v{A}')
        k(f'v_fmac_f32 v9, v{A+1}, v{A+1}')
        for r in range(2, 16):
            k(f'v_add_f32 v8, v8, v{A+r}')
            k(f'v_fmac_f32 v9, v{A+r}, v{A+r}')
        k('v_mov_b32 v10, v8')
        k('v_mov_b32 v11, v9')
        k('v_permlane32_swap_b32 v8, v10')
        k('v_permlane32_swap_b32 v9, v11')
        k('v_add_f32 v8, v8, v10')
        k('v_add_f32 v9, v9, v11')
        srd(k, 32, 4, WS_STATS, SZ_STATS)
        k('v_lshlrev_b32 v10, 7, v4')
        k('s_lshl_b32 s31, s25, 12')
        k('s_lshl_b32 s48, s27, 3')
        k('s_add_u32 s31, s31, s48')
        k('buffer_store_dwordx2 v[8:9], v10, s[32:35], s31 offen')
    else:
        k(f'v_permlane32_swap_b32 v{R0+0}, v{R0+2}')
        k(f'v_permlane32_swap_b32 v{R0+1}, v{R0+3}')
        k(f'v_permlane32_swap_b32 v{R0+4}, v{R0+6}')
        k(f'v_permlane32_swap_b32 v{R0+5}, v{R0+7}')
        k('v_lshlrev_b32 v7, 10, v4')
        k('v_lshl_add_u32 v7, v5, 4, v7')
        k('s_lshl_b32 s31, s25, 15')
        k('s_lshl_b32 s48, s27, 6')
        k('s_add_u32 s31, s31, s48')
        k(f'buffer_store_dwordx4 {vr(R0,4)}, v7, s[44:47], s31 offen')
        k(f'buffer_store_dwordx4 {vr(R0+4,4)}, v7, s[44:47], s31 offen offset:32')
    k.label(f'{L}_END')
    k('s_endpgm')
    kernels.append((k, 256, 256, 49152, 232 + 64, 232, 56))
```

```python
import sys
from asmlib import Kernel

WS_MOD   = 0x0000000; SZ_MOD = 3072*4
WS_XH    = 0x0010000; SZ_XH = 2048*1024
WS_WQKV  = 0x0210000; T_STRIDE = 36*3072; SZ_WQKV = 16*T_STRIDE
WS_Q     = 0x0400000; SZ_Q = 2048*1024
WS_K     = 0x0600000
WS_VT    = 0x0800000
WS_O     = 0x0A00000
WS_WO    = 0x0C00000; SZ_WO = 512*1024
WS_X1    = 0x0D00000
WS_STATS = 0x0F00000; SZ_STATS = 2048*16*8
WS_W13   = 0x1000000; U_STRIDE = 33*1024; SZ_W13 = 86*U_STRIDE
WS_HM    = 0x1300000; SZ_HM = 64*86*1024
WS_W2    = 0x1900000; SZ_W2 = 16*86*1024

KA_X, KA_WQKV, KA_WO, KA_BX, KA_W1, KA_W3, KA_W2, KA_C, KA_WMOD, KA_OUT, KA_DBG, KA_WS = [8*i for i in range(12)]

LOG2E = 1.4426950408889634
import struct
def f2u(f): return struct.unpack('<I', struct.pack('<f', f))[0]
QSCALE = f2u(0.25*LOG2E)

def srd(k, s, ptr, off, size):
    if off:
        k(f's_add_u32 s{s}, s{ptr}, {hex(off)}')
        k(f's_addc_u32 s{s+1}, s{ptr+1}, 0')
    else:
        k(f's_mov_b32 s{s}, s{ptr}')
        k(f's_mov_b32 s{s+1}, s{ptr+1}')
    k(f's_mov_b32 s{s+2}, {hex(size)}')
    k(f's_mov_b32 s{s+3}, 0x20000')

def vr(a, n=1):
    return f'v{a}' if n == 1 else f'v[{a}:{a+n-1}]'
def ar(a, n=1):
    return f'a{a}' if n == 1 else f'a[{a}:{a+n-1}]'

kernels = []


VERBOSE = '-v' in sys.argv
TIMING = '-t' in sys.argv
WS_TIME = 0x4000000
def stamp(k, kidx):
    pre = [f's_load_dwordx2 s[84:85], s[0:1], {KA_WS}', 's_memrealtime s[76:77]', 's_memtime s[80:81]',
           'v_lshrrev_b32 v1, 6, v0', 's_nop 0', 'v_readfirstlane_b32 s86, v1', 's_mov_b32 s87, s2']
    pre += [f's_mov_b32 s{88+i}, 0' for i in range(8)]
    post = ['s_waitcnt vmcnt(0) lgkmcnt(0)', 's_memrealtime s[78:79]', 's_memtime s[82:83]', 's_waitcnt lgkmcnt(0)',
            f's_add_u32 s87, s87, {kidx*512}', 's_lshl_b32 s87, s87, 4', 's_add_u32 s87, s87, s86', 's_lshl_b32 s87, s87, 6',
            f's_add_u32 s87, s87, {WS_TIME}', 'v_mov_b32 v0, s87']
    post += [f'v_mov_b32 v{2+i}, s{76+i}' for i in range(8)]
    post += [f'v_mov_b32 v{10+i}, s{88+i}' for i in range(8)]
    post += ['global_store_dwordx4 v0, v[2:5], s[84:85]', 'global_store_dwordx4 v0, v[6:9], s[84:85] offset:16',
             'global_store_dwordx4 v0, v[10:13], s[84:85] offset:32', 'global_store_dwordx4 v0, v[14:17], s[84:85] offset:48', 's_endpgm']
    new = list(pre)
    for l in k.lines:
        if l.strip() == 's_endpgm': new += post
        elif l.startswith('; STAMP'):
            i = int(l.split()[2]); new.append(f's_memtime s[{86+2*i}:{87+2*i}]')
        else: new.append(l)
    k.lines = new

DBGT = '-d' in sys.argv
def dbgstamp(k, kidx):
    pre = [f's_load_dwordx2 s[84:85], s[0:1], {KA_DBG}', 's_memrealtime s[76:77]',
           'v_lshrrev_b32 v1, 6, v0', 's_nop 0', 'v_readfirstlane_b32 s86, v1', 's_mov_b32 s87, s2']
    post = ['s_waitcnt vmcnt(0) lgkmcnt(0)', 's_memrealtime s[78:79]', 's_waitcnt lgkmcnt(0)',
            's_or_b32 s86, s86, s87', 's_cmp_eq_u32 s86, 0', f's_cbranch_scc0 DBG_SKIP_{kidx}_%d',
            f's_sub_u32 s84, s84, {512*kidx}', 's_subb_u32 s85, s85, 0',
            f'v_mov_b32 v0, {8*kidx}', 'v_mov_b32 v2, s76', 'v_mov_b32 v3, s78',
            'global_store_dwordx2 v0, v[2:3], s[84:85]', f'DBG_SKIP_{kidx}_%d:', 's_endpgm']
    new = list(pre); n = 0
    for l in k.lines:
        if l.strip() == 's_endpgm':
            new += [p.replace('%d', str(n)) for p in post]; n += 1
        else: new.append(l)
    k.lines = new

def emit(path, which=None):
    hdr = open('adaLN_cond__mha_block__glu_gated_swiglu__prompt.s.ref').read().split('\n')
    out = [l for l in hdr if l.startswith(';') and 'offset' in l and 'accum' not in l]
    out = [hdr[0]] + out
    for (k, grid, block, lds, nv, acc, ns) in kernels:
        out.append(f'; @launch kernel={k.name} grid=({grid},1,1) block=({block},1,1) lds={lds}')
    out.append('.amdgcn_target "amdgcn-amd-amdhsa--gfx950"')
    out.append('.text')
    for (k, grid, block, lds, nv, acc, ns) in kernels:
        out.append(f'.globl {k.name}')
        out.append('.p2align 8')
        out.append(f'.type {k.name},@function')
        out.append(f'{k.name}:')
        if TIMING: stamp(k, kernels.index((k, grid, block, lds, nv, acc, ns)))
        if DBGT: dbgstamp(k, kernels.index((k, grid, block, lds, nv, acc, ns)))
        lines = k.resolve(verbose=VERBOSE)
        out += ['    ' + l if not l.endswith(':') else l for l in lines]
    out.append('.section .rodata,"a"')
    for (k, grid, block, lds, nv, acc, ns) in kernels:
        out.append('.p2align 6')
        out.append(f'.amdhsa_kernel {k.name}')
        out.append(f'  .amdhsa_next_free_vgpr {nv}')
        out.append(f'  .amdhsa_next_free_sgpr {100 if (TIMING or DBGT) else ns}')
        out.append(f'  .amdhsa_accum_offset {acc}')
        out.append('  .amdhsa_group_segment_fixed_size 0')
        out.append('  .amdhsa_kernarg_size 96')
        out.append('  .amdhsa_user_sgpr_count 2')
        out.append('  .amdhsa_user_sgpr_kernarg_segment_ptr 1')
        out.append('  .amdhsa_system_sgpr_workgroup_id_x 1')
        out.append('.end_amdhsa_kernel')
    open(path, 'w').write('\n'.join(out) + '\n')
```

```python
import sys
from asmlib import Kernel

WS_MOD   = 0x0000000; SZ_MOD = 3072*4
WS_XH    = 0x0010000; SZ_XH = 2048*1024
WS_WQKV  = 0x0210000; T_STRIDE = 36*3072; SZ_WQKV = 16*T_STRIDE
WS_Q     = 0x0400000; SZ_Q = 2048*1024
WS_K     = 0x0600000
WS_VT    = 0x0800000
WS_O     = 0x0A00000
WS_WO    = 0x0C00000; SZ_WO = 512*1024
WS_X1    = 0x0D00000
WS_STATS = 0x0F00000; SZ_STATS = 2048*16*8
WS_W13   = 0x1000000; U_STRIDE = 33*1024; SZ_W13 = 86*U_STRIDE
WS_HM    = 0x1300000; SZ_HM = 64*86*1024
WS_W2    = 0x1900000; SZ_W2 = 16*86*1024

KA_X, KA_WQKV, KA_WO, KA_BX, KA_W1, KA_W3, KA_W2, KA_C, KA_WMOD, KA_OUT, KA_DBG, KA_WS = [8*i for i in range(12)]

LOG2E = 1.4426950408889634
import struct
def f2u(f): return struct.unpack('<I', struct.pack('<f', f))[0]
QSCALE = f2u(0.25*LOG2E)

def srd(k, s, ptr, off, size):
    if off:
        k(f's_add_u32 s{s}, s{ptr}, {hex(off)}')
        k(f's_addc_u32 s{s+1}, s{ptr+1}, 0')
    else:
        k(f's_mov_b32 s{s}, s{ptr}')
        k(f's_mov_b32 s{s+1}, s{ptr+1}')
    k(f's_mov_b32 s{s+2}, {hex(size)}')
    k(f's_mov_b32 s{s+3}, 0x20000')

def vr(a, n=1):
    return f'v{a}' if n == 1 else f'v[{a}:{a+n-1}]'
def ar(a, n=1):
    return f'a{a}' if n == 1 else f'a[{a}:{a+n-1}]'

kernels = []


VERBOSE = '-v' in sys.argv
TIMING = '-t' in sys.argv
WS_TIME = 0x4000000
def stamp(k, kidx):
    pre = [f's_load_dwordx2 s[84:85], s[0:1], {KA_WS}', 's_memrealtime s[76:77]', 's_memtime s[80:81]',
           'v_lshrrev_b32 v1, 6, v0', 's_nop 0', 'v_readfirstlane_b32 s86, v1', 's_mov_b32 s87, s2']
    pre += [f's_mov_b32 s{88+i}, 0' for i in range(8)]
    post = ['s_waitcnt vmcnt(0) lgkmcnt(0)', 's_memrealtime s[78:79]', 's_memtime s[82:83]', 's_waitcnt lgkmcnt(0)',
            f's_add_u32 s87, s87, {kidx*512}', 's_lshl_b32 s87, s87, 4', 's_add_u32 s87, s87, s86', 's_lshl_b32 s87, s87, 6',
            f's_add_u32 s87, s87, {WS_TIME}', 'v_mov_b32 v0, s87']
    post += [f'v_mov_b32 v{2+i}, s{76+i}' for i in range(8)]
    post += [f'v_mov_b32 v{10+i}, s{88+i}' for i in range(8)]
    post += ['global_store_dwordx4 v0, v[2:5], s[84:85]', 'global_store_dwordx4 v0, v[6:9], s[84:85] offset:16',
             'global_store_dwordx4 v0, v[10:13], s[84:85] offset:32', 'global_store_dwordx4 v0, v[14:17], s[84:85] offset:48', 's_endpgm']
    new = list(pre)
    for l in k.lines:
        if l.strip() == 's_endpgm': new += post
        elif l.startswith('; STAMP'):
            i = int(l.split()[2]); new.append(f's_memtime s[{86+2*i}:{87+2*i}]')
        else: new.append(l)
    k.lines = new

DBGT = '-d' in sys.argv
def dbgstamp(k, kidx):
    pre = [f's_load_dwordx2 s[84:85], s[0:1], {KA_DBG}', 's_memrealtime s[76:77]',
           'v_lshrrev_b32 v1, 6, v0', 's_nop 0', 'v_readfirstlane_b32 s86, v1', 's_mov_b32 s87, s2']
    post = ['s_waitcnt vmcnt(0) lgkmcnt(0)', 's_memrealtime s[78:79]', 's_waitcnt lgkmcnt(0)',
            's_or_b32 s86, s86, s87', 's_cmp_eq_u32 s86, 0', f's_cbranch_scc0 DBG_SKIP_{kidx}_%d',
            f's_sub_u32 s84, s84, {512*kidx}', 's_subb_u32 s85, s85, 0',
            f'v_mov_b32 v0, {8*kidx}', 'v_mov_b32 v2, s76', 'v_mov_b32 v3, s78',
            'global_store_dwordx2 v0, v[2:3], s[84:85]',
            f's_add_u32 s84, s84, {512*(len(kernels)-1)}', 's_addc_u32 s85, s85, 0',
            'global_store_dwordx2 v0, v[2:3], s[84:85]',
            f'DBG_SKIP_{kidx}_%d:', 's_endpgm']
    new = list(pre); n = 0
    for l in k.lines:
        if l.strip() == 's_endpgm':
            new += [p.replace('%d', str(n)) for p in post]; n += 1
        else: new.append(l)
    k.lines = new

def emit(path, which=None):
    hdr = open('adaLN_cond__mha_block__glu_gated_swiglu__prompt.s.ref').read().split('\n')
    out = [l for l in hdr if l.startswith(';') and 'offset' in l and 'accum' not in l]
    out = [hdr[0]] + out
    for (k, grid, block, lds, nv, acc, ns) in kernels:
        out.append(f'; @launch kernel={k.name} grid=({grid},1,1) block=({block},1,1) lds={lds}')
    out.append('.amdgcn_target "amdgcn-amd-amdhsa--gfx950"')
    out.append('.text')
    for (k, grid, block, lds, nv, acc, ns) in kernels:
        out.append(f'.globl {k.name}')
        out.append('.p2align 8')
        out.append(f'.type {k.name},@function')
        out.append(f'{k.name}:')
        if TIMING: stamp(k, kernels.index((k, grid, block, lds, nv, acc, ns)))
        if DBGT: dbgstamp(k, kernels.index((k, grid, block, lds, nv, acc, ns)))
        lines = k.resolve(verbose=VERBOSE)
        out += ['    ' + l if not l.endswith(':') else l for l in lines]
    out.append('.section .rodata,"a"')
    for (k, grid, block, lds, nv, acc, ns) in kernels:
        out.append('.p2align 6')
        out.append(f'.amdhsa_kernel {k.name}')
        out.append(f'  .amdhsa_next_free_vgpr {nv}')
        out.append(f'  .amdhsa_next_free_sgpr {100 if (TIMING or DBGT) else ns}')
        out.append(f'  .amdhsa_accum_offset {acc}')
        out.append('  .amdhsa_group_segment_fixed_size 0')
        out.append('  .amdhsa_kernarg_size 96')
        out.append('  .amdhsa_user_sgpr_count 2')
        out.append('  .amdhsa_user_sgpr_kernarg_segment_ptr 1')
        out.append('  .amdhsa_system_sgpr_workgroup_id_x 1')
        out.append('.end_amdhsa_kernel')
    open(path, 'w').write('\n'.join(out) + '\n')
```

```python
import sys, os, struct
from asmlib import Kernel

WS_MODP  = 0x0000000; SZ_MODP = 4*3072*4
WS_FLG   = 0x0010000; SZ_FLG = 1536*128
WS_H     = 0x0100000; SZ_H = 2048*1024
WS_WQKV  = 0x0300000; T_STRIDE = 32*3072; SZ_WQKV = 16*T_STRIDE
WS_Q     = 0x0500000; SZ_Q = 2048*1024
WS_K     = 0x0700000
WS_VT    = 0x0900000
WS_O     = 0x0B00000
WS_WO    = 0x0D00000; SZ_WO = 512*1024
WS_X1    = 0x0E00000
WS_STATS = 0x1000000; SZ_STATS = 4*2048*8
WS_W13   = 0x1100000; U_STRIDE = 33*1024; SZ_W13 = 86*U_STRIDE
WS_HM    = 0x1400000; SZ_HM = 64*86*1024
WS_W2    = 0x1A00000; SZ_W2 = 16*86*1024
WS_TIME  = 0x4000000

F_G, F_H, F_WQ, F_WO, F_W2, F_W13, F_P2, F_P3, F_P4, F_P5 = 0, 192, 256, 304, 320, 364, 512, 768, 1024, 1280

S_X, S_WQKV, S_WO, S_BX, S_W1, S_W3, S_W2, S_C, S_WMOD, S_OUT, S_DBG, S_WS = [64 + 2*i for i in range(12)]
S_NONCE, S_W, S_ID = 88, 89, 90
S_FLG = 92
S_T0, S_T1 = 96, 97

LOG2E = 1.4426950408889634
def f2u(f): return struct.unpack('<I', struct.pack('<f', f))[0]
QSCALE = f2u(0.25*LOG2E)
MF = 'v_mfma_f32_32x32x16_bf16'
SC = ' sc1'
TIMING = '-t' in sys.argv
VERBOSE = '-v' in sys.argv
NPHASE = int(os.environ.get('NPHASE', '6'))

def srd(k, s, ptr, off, size):
    if off:
        k(f's_add_u32 s{s}, s{ptr}, {hex(off)}')
        k(f's_addc_u32 s{s+1}, s{ptr+1}, 0')
    else:
        k(f's_mov_b32 s{s}, s{ptr}')
        k(f's_mov_b32 s{s+1}, s{ptr+1}')
    k(f's_mov_b32 s{s+2}, {hex(size)}')
    k(f's_mov_b32 s{s+3}, 0x20000')

def vr(a, n=1):
    return f'v{a}' if n == 1 else f'v[{a}:{a+n-1}]'

class VM:
    def __init__(self, k): self.k = k; self.q = []
    def issue(self, tag, n=1):
        for _ in range(n): self.q.append(tag)
    def wait(self, tag):
        idx = max((i for i, t in enumerate(self.q) if t == tag), default=-1)
        if idx < 0: return
        n = len(self.q) - 1 - idx
        assert n <= 63, n
        self.k(f's_waitcnt vmcnt({n})')
        self.q = self.q[idx+1:]
    def waitall(self):
        self.k('s_waitcnt vmcnt(0)'); self.q = []

_uid = [0]
def uid(p):
    _uid[0] += 1
    return f'{p}_{_uid[0]}'

def stamp(k, i):
    if TIMING:
        k(f's_memtime s[{S_T0}:{S_T1}]')
        k('s_waitcnt lgkmcnt(0)')
        k(f'v_writelane_b32 v255, s{S_T0}, {i}')

def get_nonce(k):
    L = uid('NONCE')
    k(f's_cmp_lg_u32 s{S_NONCE}, 0')
    k(f's_cbranch_scc1 {L}_OK')
    k('s_mov_b32 s98, 0')
    k.label(f'{L}_L')
    k(f'v_mov_b32 v250, 0')
    k(f'global_load_dword v251, v250, s[{S_DBG}:{S_DBG+1}] sc1')
    k('s_waitcnt vmcnt(0)')
    k(f'v_readfirstlane_b32 s{S_NONCE}, v251')
    k('s_add_u32 s98, s98, 1')
    k('s_cmp_gt_u32 s98, 0x20000')
    k(f's_cbranch_scc1 {L}_OK')
    k(f's_cmp_eq_u32 s{S_NONCE}, 0')
    k(f's_cbranch_scc1 {L}_L')
    k.label(f'{L}_OK')

def publish(k, sidx):
    L = uid('PUB')
    k('s_waitcnt vmcnt(0) lgkmcnt(0)')
    k('s_barrier')
    k(f's_cmp_eq_u32 s{S_W}, 0')
    k(f's_cbranch_scc0 {L}')
    get_nonce(k)
    k(f's_lshl_b32 s98, s{sidx}, 7')
    k(f'v_mov_b32 v250, s98')
    k(f'v_mov_b32 v251, s{S_NONCE}')
    k('s_mov_b64 exec, 1')
    k(f'buffer_store_dword v251, v250, s[{S_FLG}:{S_FLG+3}], 0 offen sc1')
    k('s_mov_b64 exec, -1')
    k.label(L)

def wait_flags(k, idxcode, pre=None):
    L = uid('WAIT')
    k(f's_cmp_eq_u32 s{S_W}, 0')
    k(f's_cbranch_scc0 {L}_B')
    get_nonce(k)
    idxcode(k)
    k('v_lshlrev_b32 v250, 7, v250')
    k('s_mov_b32 s98, 0')
    k.label(f'{L}_L')
    k(f'buffer_load_dword v251, v250, s[{S_FLG}:{S_FLG+3}], 0 offen sc1')
    k('s_add_u32 s98, s98, 1')
    k('s_cmp_gt_u32 s98, 0x20000')
    k(f's_cbranch_scc1 {L}_B')
    k('s_waitcnt vmcnt(0)')
    k(f'v_cmp_ne_u32 vcc, s{S_NONCE}, v251')
    k('s_nop 1')
    k('s_cmp_lg_u64 vcc, 0')
    k(f's_cbranch_scc1 {L}_L')
    k.label(f'{L}_B')
    if pre: k(pre)
    k('s_barrier')

def piecewise(k, segs, lane='v2'):
    start = 0
    first = True
    for (cnt, fn) in segs:
        k(f'v_subrev_u32 v252, {start}, {lane}')
        k(f'v_min_u32 v252, {cnt-1}, v252') if start + cnt >= 64 or (cnt, fn) == segs[-1] else None
        fn(k, 'v252', 'v253')
        if first:
            k('v_mov_b32 v250, v253'); first = False
        else:
            k(f'v_cmp_le_u32 vcc, {start}, {lane}')
            k('v_cndmask_b32 v250, v250, v253, vcc')
        start += cnt
```

```python
from pk_common import *

def prologue(k):
    k('s_cmp_ge_u32 s2, 256')
    k('s_cbranch_scc1 PK_END')
    k('s_load_dwordx16 s[64:79], s[0:1], 0')
    k('s_load_dwordx8 s[80:87], s[0:1], 64')
    k('v_lshrrev_b32 v1, 6, v0')
    k('v_and_b32 v2, 63, v0')
    k(f'v_readfirstlane_b32 s{S_W}, v1')
    k(f's_mov_b32 s{S_ID}, s2')
    k('v_lshlrev_b32 v3, 4, v2')
    k(f's_mov_b32 s{S_NONCE}, 0')
    if TIMING: k('v_mov_b32 v255, 0')
    k('s_waitcnt lgkmcnt(0)')
    srd(k, S_FLG, S_WS, WS_FLG, SZ_FLG)
    stamp(k, 0)
    k(f's_or_b32 s98, s{S_ID}, s{S_W}')
    k('s_cmp_eq_u32 s98, 0')
    k('s_cbranch_scc0 PK_NONONCE')
    k(f's_memrealtime s[{S_T0}:{S_T1}]')
    k('s_waitcnt lgkmcnt(0)')
    k(f's_or_b32 s{S_NONCE}, s{S_T0}, 1')
    k('v_mov_b32 v250, 0')
    k(f'v_mov_b32 v251, s{S_NONCE}')
    k('s_mov_b64 exec, 1')
    k(f'global_store_dword v250, v251, s[{S_DBG}:{S_DBG+1}] sc1')
    k('s_mov_b64 exec, -1')
    k.label('PK_NONONCE')

def u_loads(k, R):
    k(f's_lshr_b32 s41, s{S_W}, 2')
    k(f's_and_b32 s42, s{S_W}, 3')
    k('s_cmp_eq_u32 s41, 0')
    k(f's_cselect_b32 s44, s{S_W1}, s{S_W3}')
    k(f's_cselect_b32 s45, s{S_W1+1}, s{S_W3+1}')
    k(f's_mov_b32 s46, {512*2752}')
    k('s_mov_b32 s47, 0x20000')
    k('v_and_b32 v10, 3, v2')
    k('v_bfe_u32 v11, v2, 2, 1')
    k('v_lshrrev_b32 v12, 3, v2')
    k('v_lshlrev_b32 v13, 4, v12')
    k('v_lshl_add_u32 v13, v11, 2, v13')
    k('v_mul_u32_u24 v14, 2752, v13')
    k('v_lshl_add_u32 v14, v10, 3, v14')
    k(f's_mul_i32 s43, s42, {128*2752}')
    k('s_lshl_b32 s48, s40, 5')
    k('s_add_u32 s43, s43, s48')
    for j in range(8):
        k(f'buffer_load_dwordx2 {vr(R+2*j,2)}, v14, s[44:47], s43 offen')
        if j < 7: k(f's_add_u32 s43, s43, {2752*(5 if j == 3 else 1)}')

def gen_p1(k):
    k(f's_cmp_ge_u32 s{S_ID}, 192')
    k('s_cbranch_scc1 P1_H')
    k(f's_mul_i32 s20, s{S_ID}, 1366')
    k('s_lshr_b32 s20, s20, 16')
    k('s_mul_i32 s21, s20, 48')
    k(f's_sub_u32 s21, s{S_ID}, s21')
    srd(k, 8, S_WMOD, 0, 512*6144)
    srd(k, 12, S_C, 0, 1024)
    k('v_lshrrev_b32 v4, 3, v2')
    k('v_and_b32 v5, 7, v2')
    k('v_mul_u32_u24 v6, 6144, v4')
    k('v_lshl_add_u32 v6, v5, 4, v6')
    k('v_lshlrev_b32 v7, 1, v4')
    k('s_lshl_b32 s22, s20, 7')
    k(f's_lshl_b32 s23, s{S_W}, 4')
    k('s_add_u32 s22, s22, s23')
    k('s_lshl_b32 s23, s22, 1')
    k('buffer_load_ushort v16, v7, s[12:15], s23 offen')
    k('buffer_load_ushort v17, v7, s[12:15], s23 offen offset:16')
    k('s_mul_i32 s22, s22, 6144')
    k('s_lshl_b32 s23, s21, 7')
    k('s_add_u32 s22, s22, s23')
    k('buffer_load_dwordx4 v[20:23], v6, s[8:11], s22 offen')
    k(f's_add_u32 s22, s22, {8*6144}')
    k('buffer_load_dwordx4 v[24:27], v6, s[8:11], s22 offen')
    R = 32
    k(f's_cmp_ge_u32 s{S_ID}, 107')
    k('s_cbranch_scc1 P1_ULD')
    k(f's_cmp_ge_u32 s{S_ID}, 64')
    k('s_cbranch_scc1 P1_TW2')
    k(f's_cmp_ge_u32 s{S_ID}, 48')
    k('s_cbranch_scc1 P1_TWO')
    k(f's_and_b32 s25, s{S_ID}, 15')
    k(f's_lshr_b32 s33, s{S_ID}, 4')
    k('s_lshl_b32 s26, s33, 10')
    k('s_mov_b32 s33, s26')
    srd(k, 16, S_WQKV, 0, 512*3072)
    srd(k, 28, S_WS, WS_WQKV, SZ_WQKV)
    k('s_movk_i32 s24, 3072')
    k('s_mov_b32 s27, 8')
    k(f's_mov_b32 s32, {T_STRIDE}')
    k('s_movk_i32 s34, 3072')
    k(f's_add_u32 s35, s{S_ID}, {F_WQ}')
    k('s_branch P1_TLD')
    k.label('P1_TWO')
    k(f's_sub_u32 s25, s{S_ID}, 48')
    srd(k, 16, S_WO, 0, 512*1024)
    srd(k, 28, S_WS, WS_WO, SZ_WO)
    k(f's_mov_b32 s32, {32*1024}')
    k(f's_add_u32 s35, s25, {F_WO}')
    k('s_branch P1_TPI')
    k.label('P1_TW2')
    k(f's_sub_u32 s25, s{S_ID}, 64')
    srd(k, 16, S_W2, 0, 1376*1024)
    srd(k, 28, S_WS, WS_W2, SZ_W2)
    k(f's_mov_b32 s32, {86*1024}')
    k(f's_add_u32 s35, s25, {F_W2}')
    k.label('P1_TPI')
    k('s_movk_i32 s24, 1024')
    k('s_mov_b32 s26, 0')
    k('s_mov_b32 s27, 4')
    k('s_mov_b32 s33, 0')
    k('s_movk_i32 s34, 1024')
    k.label('P1_TLD')
    k('s_lshl_b32 s25, s25, 1')
    k(f's_lshr_b32 s36, s{S_W}, 2')
    k('s_add_u32 s25, s25, s36')
    k('v_and_b32 v8, 31, v2')
    k('v_lshrrev_b32 v9, 5, v2')
    k('s_mul_i32 s38, s27, s24')
    k('v_mul_lo_u32 v10, v9, s38')
    k('v_lshl_add_u32 v10, v8, 3, v10')
    k(f's_and_b32 s36, s{S_W}, 3')
    k('s_lshl_b32 s39, s36, 8')
    k('s_add_u32 s39, s39, s26')
    k('v_add_u32 v10, s39, v10')
    k('s_lshl_b32 s38, s25, 4')
    k('s_mul_i32 s38, s38, s24')
    k('s_sub_u32 s39, 8, s27')
    k('s_mul_i32 s39, s39, s24')
    for j in range(8):
        k(f'buffer_load_dwordx2 {vr(R+2*j,2)}, v10, s[16:19], s38 offen')
        if j < 7: k('s_add_u32 s38, s38, s24')
        if j == 3: k('s_add_u32 s38, s38, s39')
    k('v_lshrrev_b32 v11, 3, v8')
    k('s_lshl_b32 s38, s36, 2')
    k('v_add_u32 v11, s38, v11')
    k('v_mul_lo_u32 v11, v11, s32')
    k('v_and_b32 v12, 7, v8')
    k('v_lshl_add_u32 v11, v12, 6, v11')
    k('v_lshl_add_u32 v11, v9, 9, v11')
    k('s_mul_i32 s38, s25, s34')
    k('s_add_u32 s33, s33, s38')
    k('s_branch P1_GEMV')
    k.label('P1_ULD')
    k(f's_sub_u32 s40, s{S_ID}, 107')
    u_loads(k, R)
    k.label('P1_GEMV')
    stamp(k, 40)
    k('s_waitcnt vmcnt(10)')
    stamp(k, 41)
    for m in range(2):
        k(f'v_lshlrev_b32 v{16+m}, 16, v{16+m}')
        k(f'v_mul_f32 v{18+m}, {hex(f2u(-LOG2E))}, v{16+m}')
    for m in range(2): k(f'v_exp_f32 v{18+m}, v{18+m}')
    for m in range(2): k(f'v_add_f32 v{18+m}, 1.0, v{18+m}')
    for m in range(2): k(f'v_rcp_f32 v{18+m}, v{18+m}')
    for m in range(2): k(f'v_mul_f32 v{16+m}, v{16+m}, v{18+m}')
    for m in range(2): k(f'v_cvt_pk_bf16_f32 v{16+m}, v{16+m}, v{16+m}')
    for m in range(2): k(f'v_lshlrev_b32 v{16+m}, 16, v{16+m}')
    k('s_waitcnt vmcnt(8)')
    stamp(k, 42)
    A = 48
    for d in range(4):
        k(f'v_lshlrev_b32 v{56+2*d}, 16, v{20+d}')
        k(f'v_and_b32 v{56+2*d+1}, 0xffff0000, v{20+d}')
    for e in range(8): k(f'v_mul_f32 v{A+e}, v{56+e}, v16')
    for d in range(4):
        k(f'v_lshlrev_b32 v{56+2*d}, 16, v{24+d}')
        k(f'v_and_b32 v{56+2*d+1}, 0xffff0000, v{24+d}')
    for e in range(8): k(f'v_fmac_f32 v{A+e}, v{56+e}, v17')
    for e in range(8):
        k(f'v_add_f32_dpp v{A+e}, v{A+e}, v{A+e} row_ror:8 row_mask:0xf bank_mask:0xf')
    k('v_lshrrev_b32 v56, 4, v0')
    k('v_lshlrev_b32 v56, 8, v56')
    k('v_lshl_add_u32 v56, v5, 5, v56')
    k(f'ds_write_b128 v56, {vr(A,4)}')
    k(f'ds_write_b128 v56, {vr(A+4,4)} offset:16')
    k('s_waitcnt lgkmcnt(0)')
    k('s_barrier')
    k(f's_cmp_eq_u32 s{S_W}, 0')
    k('s_cbranch_scc0 P1_GPUB')
    k('v_lshlrev_b32 v56, 2, v2')
    for p in range(32): k(f'ds_read_b32 v{64+p}, v56 offset:{256*p}')
    k('s_waitcnt lgkmcnt(0)')
    for st in (16, 8, 4, 2, 1):
        for p in range(st): k(f'v_add_f32 v{64+p}, v{64+p}, v{64+p+st}')
    srd(k, 8, S_WS, WS_MODP, SZ_MODP)
    k(f's_mul_i32 s22, s20, {3072*4}')
    k('s_lshl_b32 s23, s21, 8')
    k('s_add_u32 s22, s22, s23')
    k(f'buffer_store_dword v64, v56, s[8:11], s22 offen{SC}')
    k.label('P1_GPUB')
    stamp(k, 43)
    k(f's_add_u32 s22, s{S_ID}, {F_G}')
    publish(k, 22)
    stamp(k, 1)
    k(f's_cmp_ge_u32 s{S_ID}, 107')
    k('s_cbranch_scc1 P1_UCOMP')
    k('s_mov_b32 s38, 0x05040100')
    k('s_mov_b32 s39, 0x07060302')
    OUT = 48
    for c in range(4):
        for d in range(4):
            k(f'v_perm_b32 v{OUT+4*c+d}, v{R+2*(2*d+1)+(c>>1)}, v{R+2*(2*d)+(c>>1)}, s{38+(c&1)}')
    for c in range(4):
        k(f'buffer_store_dwordx4 {vr(OUT+4*c,4)}, v11, s[28:31], s33 offen offset:{16*c}{SC}')
    publish(k, 35)
    k(f's_cmp_eq_u32 s{S_ID}, 48')
    k('s_cbranch_scc0 P1_DONE')
    k('s_movk_i32 s40, 85')
    u_loads(k, R)
    k.label('P1_UCOMP')
    def idx_sbcb(k):
        k('v_lshrrev_b32 v250, 4, v2')
        k('v_mul_u32_u24 v250, 48, v250')
        k('v_and_b32 v252, 15, v2')
        k(f'v_add3_u32 v250, v250, v252, {F_G+24}')
    wait_flags(k, idx_sbcb)
    stamp(k, 44)
    srd(k, 8, S_WS, WS_MODP, SZ_MODP)
    srd(k, 28, S_WS, WS_W13, SZ_W13)
    k('v_lshlrev_b32 v15, 2, v13')
    k('s_lshl_b32 s43, s42, 9')
    PB = 64
    for vec, idx in ((0, 3), (1, 4)):
        for rq in range(4):
            k(f's_add_u32 s48, s43, {idx*2048 + rq*3072*4}')
            k(f'buffer_load_dwordx4 {vr(PB+32*vec+8*rq,4)}, v15, s[8:11], s48 offen{SC}')
            k(f'buffer_load_dwordx4 {vr(PB+32*vec+8*rq+4,4)}, v15, s[8:11], s48 offen offset:32{SC}')
    k('v_lshlrev_b32 v16, 10, v12')
    k('v_lshl_add_u32 v16, v11, 9, v16')
    k('v_lshl_add_u32 v16, v10, 6, v16')
    k(f's_mul_i32 s43, s40, {U_STRIDE}')
    k('s_lshl_b32 s48, s42, 13')
    k('s_add_u32 s43, s43, s48')
    k('s_lshl_b32 s48, s41, 8')
    k('s_add_u32 s43, s43, s48')
    k('s_waitcnt vmcnt(0)')
    SB, CB = 48, 56
    for vec, dst in ((0, SB), (1, CB)):
        b = PB + 32*vec
        for j in range(8):
            k(f'v_add_f32 v{b+j}, v{b+j}, v{b+8+j}')
            k(f'v_add_f32 v{b+16+j}, v{b+16+j}, v{b+24+j}')
        for j in range(8): k(f'v_add_f32 v{b+j}, v{b+j}, v{b+16+j}')
        for j in range(8): k(f'v_cvt_pk_bf16_f32 v{b+j}, v{b+j}, v{b+j}')
        for j in range(8): k(f'v_lshlrev_b32 v{dst+j}, 16, v{b+j}')
    for j in range(8): k(f'v_add_f32 v{CB+j}, 1.0, v{CB+j}')
    for j in range(8): k(f'v_cvt_pk_bf16_f32 v{CB+j}, v{CB+j}, v{CB+j}')
    for j in range(8): k(f'v_lshlrev_b32 v{CB+j}, 16, v{CB+j}')
    F = 64
    for j in range(8):
        k(f'v_lshlrev_b32 v{F+4*j+0}, 16, v{R+2*j}')
        k(f'v_and_b32 v{F+4*j+1}, 0xffff0000, v{R+2*j}')
        k(f'v_lshlrev_b32 v{F+4*j+2}, 16, v{R+2*j+1}')
        k(f'v_and_b32 v{F+4*j+3}, 0xffff0000, v{R+2*j+1}')
    BP, CS = 96, 100
    for c in range(4): k(f'v_mul_f32 v{BP+c}, v{F+c}, v{SB}')
    for j in range(1, 8):
        for c in range(4): k(f'v_fmac_f32 v{BP+c}, v{F+4*j+c}, v{SB+j}')
    for j in range(8):
        for c in range(4): k(f'v_mul_f32 v{F+4*j+c}, v{F+4*j+c}, v{CB+j}')
    OUT = 104
    for c in range(4):
        for d in range(4): k(f'v_cvt_pk_bf16_f32 v{OUT+4*c+d}, v{F+8*d+c}, v{F+8*d+4+c}')
    for c in range(4):
        k(f'buffer_store_dwordx4 {vr(OUT+4*c,4)}, v16, s[28:31], s43 offen offset:{16*c}{SC}')
    for c in range(4):
        for d in range(4):
            k(f'v_lshlrev_b32 v{F+8*c+2*d}, 16, v{OUT+4*c+d}')
            k(f'v_and_b32 v{F+8*c+2*d+1}, 0xffff0000, v{OUT+4*c+d}')
    for c in range(4): k(f'v_add_f32 v{CS+c}, v{F+8*c}, v{F+8*c+1}')
    for i in range(2, 8):
        for c in range(4): k(f'v_add_f32 v{CS+c}, v{CS+c}, v{F+8*c+i}')
    for rot in (8, 4):
        for e in range(8):
            k(f'v_add_f32_dpp v{BP+e}, v{BP+e}, v{BP+e} row_ror:{rot} row_mask:0xf bank_mask:0xf')
    k('v_lshrrev_b32 v17, 4, v0')
    k('v_lshlrev_b32 v17, 7, v17')
    k('v_lshl_add_u32 v17, v10, 5, v17')
    k(f'ds_write_b128 v17, {vr(BP,4)} offset:8192')
    k(f'ds_write_b128 v17, {vr(CS,4)} offset:{8192+16}')
    k('s_waitcnt lgkmcnt(0)')
    k('s_barrier')
    k(f's_cmp_eq_u32 s{S_W}, 0')
    k('s_cbranch_scc0 P1_UPUB')
    k('v_and_b32 v18, 31, v2')
    k('v_lshrrev_b32 v19, 4, v18')
    k('v_lshlrev_b32 v19, 11, v19')
    k('v_bfe_u32 v20, v18, 2, 2')
    k('v_lshl_add_u32 v19, v20, 5, v19')
    k('v_and_b32 v20, 3, v18')
    k('v_lshl_add_u32 v19, v20, 2, v19')
    for p in range(16):
        k(f'ds_read_b32 v{F+p}, v19 offset:{8192+128*p}')
        k(f'ds_read_b32 v{F+16+p}, v19 offset:{8192+128*p+16}')
    k('s_waitcnt lgkmcnt(0)')
    for st in (8, 4, 2, 1):
        for p in range(st):
            k(f'v_add_f32 v{F+p}, v{F+p}, v{F+p+st}')
            k(f'v_add_f32 v{F+16+p}, v{F+16+p}, v{F+16+p+st}')
    k(f'v_cvt_pk_bf16_f32 v24, v{F+16}, v{F}')
    k('v_lshlrev_b32 v25, 16, v24')
    k('v_and_b32 v26, 0xffff0000, v24')
    k(f'v_sub_f32 v25, v{F+16}, v25')
    k(f'v_sub_f32 v26, v{F}, v26')
    k('v_cvt_pk_bf16_f32 v25, v25, v26')
    k('s_mov_b32 s38, 0x05040100')
    k('s_mov_b32 s39, 0x07060302')
    k('v_perm_b32 v28, v25, v24, s38')
    k('v_mov_b32 v29, v24')
    k('v_perm_b32 v30, v24, v25, s39')
    k('v_mov_b32 v31, 0')
    k('v_cmp_gt_u32 vcc, 32, v2')
    for i in range(3): k(f'v_cndmask_b32 v{28+i}, 0, v{28+i}, vcc')
    k(f's_mul_i32 s43, s40, {U_STRIDE}')
    k(f's_add_u32 s43, s43, {32*1024}')
    k(f'buffer_store_dwordx4 v[28:31], v3, s[28:31], s43 offen{SC}')
    k.label('P1_UPUB')
    k(f's_add_u32 s22, s40, {F_W13}')
    publish(k, 22)
    k('s_branch P1_DONE')

    k.label('P1_H')
    k(f's_sub_u32 s20, s{S_ID}, 192')
    srd(k, 8, S_X, 0, 2048*1024)
    k('v_and_b32 v4, 31, v2')
    k('v_lshrrev_b32 v5, 5, v2')
    k('v_lshlrev_b32 v6, 10, v4')
    k('v_lshl_add_u32 v6, v5, 4, v6')
    k(f's_lshl_b32 s21, s{S_W}, 7')
    k('s_lshl_b32 s22, s20, 15')
    k('s_add_u32 s21, s21, s22')
    X = 8
    for s in range(4):
        k(f'buffer_load_dwordx4 {vr(X+4*s,4)}, v6, s[8:11], s21 offen offset:{32*s}')
    F = 32
    for i in range(4): k(f'v_mov_b32 v{24+i}, 0')
    for s in range(4):
        k(f's_waitcnt vmcnt({3-s})')
        for d in range(4):
            k(f'v_lshlrev_b32 v{F+8*s+2*d}, 16, v{X+4*s+d}')
            k(f'v_and_b32 v{F+8*s+2*d+1}, 0xffff0000, v{X+4*s+d}')
        for d in range(4):
            k(f'v_add_f32 v24, v24, v{F+8*s+2*d}')
            k(f'v_add_f32 v25, v25, v{F+8*s+2*d+1}')
            k(f'v_fmac_f32 v26, v{F+8*s+2*d}, v{F+8*s+2*d}')
            k(f'v_fmac_f32 v27, v{F+8*s+2*d+1}, v{F+8*s+2*d+1}')
    k('v_add_f32 v24, v24, v25')
    k('v_add_f32 v25, v26, v27')
    k('v_lshlrev_b32 v28, 3, v0')
    k('ds_write_b64 v28, v[24:25]')
    k('v_lshlrev_b32 v29, 3, v4')
    k('s_waitcnt lgkmcnt(0)')
    k('s_barrier')
    for i in range(16): k(f'ds_read_b64 {vr(64+2*i,2)}, v29 offset:{256*i}')
    k('s_waitcnt lgkmcnt(0)')
    for st in (8, 4, 2, 1):
        for i in range(st):
            k(f'v_add_f32 v{64+2*i}, v{64+2*i}, v{64+2*(i+st)}')
            k(f'v_add_f32 v{65+2*i}, v{65+2*i}, v{65+2*(i+st)}')
    k(f'v_mul_f32 v24, {hex(f2u(1/512))}, v64')
    k(f'v_mul_f32 v25, {hex(f2u(1/512))}, v65')
    k('v_fma_f32 v25, -v24, v24, v25')
    k('v_max_f32 v25, 0, v25')
    k(f'v_add_f32 v25, {hex(f2u(1e-5))}, v25')
    k('v_rsq_f32 v25, v25')
    k('s_nop 0')
    k('v_mul_f32 v24, v24, v25')
    k('v_sub_f32 v24, 0, v24')
    for i in range(32): k(f'v_fma_f32 v{F+i}, v{F+i}, v25, v24')
    stamp(k, 45)
    def idx_saca(k):
        k('v_lshrrev_b32 v250, 4, v2')
        k('v_mul_u32_u24 v250, 48, v250')
        k('v_and_b32 v252, 15, v2')
        k(f'v_add3_u32 v250, v250, v252, {F_G}')
    wait_flags(k, idx_saca)
    stamp(k, 2)
    srd(k, 8, S_WS, WS_MODP, SZ_MODP)
    k('v_lshlrev_b32 v28, 2, v0')
    for vec in range(2):
        for rq in range(4):
            k(f's_mov_b32 s22, {vec*2048 + rq*3072*4}')
            k(f'buffer_load_dword v{64+4*vec+rq}, v28, s[8:11], s22 offen{SC}')
    k('s_waitcnt vmcnt(0)')
    for vec in range(2):
        b = 64 + 4*vec
        k(f'v_add_f32 v{b}, v{b}, v{b+1}')
        k(f'v_add_f32 v{b+2}, v{b+2}, v{b+3}')
    for vec in range(2): k(f'v_add_f32 v{64+4*vec}, v{64+4*vec}, v{64+4*vec+2}')
    k('v_cvt_pk_bf16_f32 v64, v64, v68')
    k('v_lshlrev_b32 v65, 16, v64')
    k('v_and_b32 v66, 0xffff0000, v64')
    k('v_add_f32 v66, 1.0, v66')
    k('v_cvt_pk_bf16_f32 v66, v66, v66')
    k('v_lshlrev_b32 v66, 16, v66')
    k('ds_write_b32 v28, v65 offset:4096')
    k('ds_write_b32 v28, v66 offset:6144')
    k('s_waitcnt lgkmcnt(0)')
    k('s_barrier')
    k(f's_lshl_b32 s22, s{S_W}, 8')
    k('v_lshlrev_b32 v28, 5, v5')
    k('v_add_u32 v28, s22, v28')
    SA, CA = 64, 96
    for s in range(4):
        k(f'ds_read_b128 {vr(SA+8*s,4)}, v28 offset:{4096+64*s}')
        k(f'ds_read_b128 {vr(SA+8*s+4,4)}, v28 offset:{4096+64*s+16}')
        k(f'ds_read_b128 {vr(CA+8*s,4)}, v28 offset:{6144+64*s}')
        k(f'ds_read_b128 {vr(CA+8*s+4,4)}, v28 offset:{6144+64*s+16}')
    k('s_waitcnt lgkmcnt(0)')
    for i in range(32): k(f'v_fma_f32 v{F+i}, v{F+i}, v{CA+i}, v{SA+i}')
    for i in range(16): k(f'v_cvt_pk_bf16_f32 v{X+i}, v{F+2*i}, v{F+2*i+1}')
    srd(k, 8, S_WS, WS_H, SZ_H)
    k(f's_lshl_b32 s21, s{S_W}, 12')
    k('s_lshl_b32 s22, s20, 15')
    k('s_add_u32 s21, s21, s22')
    for s in range(4):
        k(f'buffer_store_dwordx4 {vr(X+4*s,4)}, v3, s[8:11], s21 offen offset:{1024*s}{SC}')
    k(f's_add_u32 s22, s20, {F_H}')
    publish(k, 22)
    k.label('P1_DONE')
    stamp(k, 3)
```

```python
from pk_common import *

def gen_p2(k):
    k(f's_and_b32 s6, s{S_ID}, 7')
    k(f's_lshr_b32 s7, s{S_ID}, 3')
    k('s_lshr_b32 s20, s6, 1')
    k('s_lshl_b32 s20, s20, 2')
    k('s_and_b32 s21, s7, 3')
    k('s_add_u32 s20, s20, s21')
    k('s_and_b32 s21, s6, 1')
    k('s_lshl_b32 s21, s21, 3')
    k('s_lshr_b32 s22, s7, 2')
    k('s_add_u32 s21, s21, s22')
    srd(k, 8, S_WS, WS_H, SZ_H)
    srd(k, 12, S_WS, WS_WQKV, SZ_WQKV)
    srd(k, 28, S_WS, WS_Q, 3*SZ_Q)
    def idx_wq(k):
        k('v_min_u32 v250, 47, v2')
        k(f'v_add_u32 v250, {F_WQ}, v250')
    wait_flags(k, idx_wq)
    k(f's_mul_i32 s25, s21, {T_STRIDE}')
    k(f's_mul_i32 s26, s{S_W}, 12288')
    k('s_add_u32 s25, s25, s26')
    for g in range(3):
        k(f's_add_u32 m0, s26, {4096*g}')
        k(f's_add_u32 s27, s25, {4096*g}')
        for i in range(4):
            k(f'buffer_load_dwordx4 v3, s[12:15], s27 offen offset:{1024*i}{SC} lds')
    def idx_h(k):
        k('s_lshl_b32 s98, s20, 2')
        k(f's_add_u32 s98, s98, {F_H}')
        k('v_add_u32 v250, s98, v2')
        k('v_subrev_u32 v252, 4, v2')
        k('v_min_u32 v252, 42, v252')
        k(f'v_add_u32 v252, {F_W2}, v252')
        k('v_cmp_le_u32 vcc, 4, v2')
        k('s_nop 1')
        k('v_cndmask_b32 v250, v250, v252, vcc')
    stamp(k, 4)
    wait_flags(k, idx_h, pre='s_waitcnt vmcnt(0)')
    stamp(k, 5)
    k(f's_cmp_ge_u32 s{S_W}, 4')
    k('s_cbranch_scc1 P2_PUB')
    k('s_lshl_b32 s20, s20, 2')
    k(f's_add_u32 s23, s20, s{S_W}')
    k('s_lshl_b32 s24, s23, 15')
    vm = VM(k)
    XR, WR, ACC = 64, 16, 192
    def ldx(s):
        k(f'buffer_load_dwordx4 {vr(XR+4*s,4)}, v3, s[8:11], s24 offen offset:{1024*(s&3)}{SC}')
        if (s & 3) == 3: k('s_add_u32 s24, s24, 4096')
        vm.issue(('x', s))
    PF = 10
    for s in range(PF): ldx(s)
    k('v_add_u32 v4, 0x10000, v3')
    def rd(s):
        st = s & 1
        for u in range(3):
            o = (s*3+u)*1024
            k(f'ds_read_b128 {vr(WR+12*st+4*u,4)}, v3 offset:{o}' if o < 65536 else
              f'ds_read_b128 {vr(WR+12*st+4*u,4)}, v4 offset:{o-65536}')
    rd(0)
    NST = 32
    for s in range(NST):
        st = s & 1
        if s + 1 < NST:
            rd(s+1)
        if s + PF < NST: ldx(s + PF)
        vm.wait(('x', s))
        k(f's_waitcnt lgkmcnt({3 if s+1 < NST else 0})')
        xf = vr(XR+4*s, 4)
        for u in range(3):
            acc = vr(ACC+16*u, 16); w = vr(WR+12*st+4*u, 4)
            cin = acc if s > 0 else '0'
            if u < 2: k(f'{MF} {acc}, {w}, {xf}, {cin}')
            else:     k(f'{MF} {acc}, {xf}, {w}, {cin}')
    stamp(k, 6)
    k('s_lshl_b32 s24, s21, 17')
    k('s_lshl_b32 s25, s23, 10')
    k('s_add_u32 s24, s24, s25')
    k('s_add_u32 s25, s24, 0x10000')
    k(f's_add_u32 s26, s24, {SZ_Q}')
    k(f's_add_u32 s27, s25, {SZ_Q}')
    k(f's_add_u32 s22, s24, {2*SZ_Q}')
    k('v_bfe_u32 v5, v2, 4, 1')
    k('v_lshlrev_b32 v5, 16, v5')
    k('v_lshrrev_b32 v6, 5, v2')
    k('v_lshl_add_u32 v5, v6, 8, v5')
    k('v_and_b32 v6, 15, v2')
    k('v_lshl_add_u32 v5, v6, 4, v5')
    k(f's_mov_b32 s98, {hex(QSCALE)}')
    for r in range(16): k(f'v_mul_f32 v{ACC+r}, s98, v{ACC+r}')
    for u in range(3):
        for d in range(8):
            k(f'v_cvt_pk_bf16_f32 v{XR+8*u+d}, v{ACC+16*u+2*d}, v{ACC+16*u+2*d+1}')
    k(f'buffer_store_dwordx4 {vr(XR,4)}, v3, s[28:31], s24 offen{SC}')
    k(f'buffer_store_dwordx4 {vr(XR+4,4)}, v3, s[28:31], s25 offen{SC}')
    k(f'buffer_store_dwordx4 {vr(XR+8,4)}, v3, s[28:31], s26 offen{SC}')
    k(f'buffer_store_dwordx4 {vr(XR+12,4)}, v3, s[28:31], s27 offen{SC}')
    k(f'buffer_store_dwordx4 {vr(XR+16,4)}, v5, s[28:31], s22 offen{SC}')
    k(f'buffer_store_dwordx4 {vr(XR+20,4)}, v5, s[28:31], s22 offen offset:512{SC}')
    k.label('P2_PUB')
    k(f's_and_b32 s6, s{S_ID}, 7')
    k(f's_lshr_b32 s7, s{S_ID}, 3')
    k('s_lshr_b32 s20, s6, 1')
    k('s_lshl_b32 s20, s20, 2')
    k('s_and_b32 s22, s7, 3')
    k('s_add_u32 s20, s20, s22')
    k('s_lshl_b32 s20, s20, 4')
    k('s_add_u32 s22, s20, s21')
    k(f's_add_u32 s22, s22, {F_P2}')
    publish(k, 22)
    stamp(k, 7)

LDS_ONES = 131072
LDS_CMB  = 131072 + 5120
def gen_p3(k):
    L = 'P3'
    k(f's_and_b32 s6, s{S_ID}, 7')
    k(f's_lshr_b32 s7, s{S_ID}, 3')
    k('s_lshl_b32 s20, s6, 2')
    k('s_lshr_b32 s21, s7, 3')
    k('s_add_u32 s20, s20, s21')
    k('s_and_b32 s36, s7, 7')
    k('s_lshl_b32 s21, s36, 3')
    srd(k, 8, S_WS, WS_Q, 3*SZ_Q)
    srd(k, 12, S_WS, WS_O, SZ_Q)
    QF, KF, VF, S, O, CN, P = 4, 12, 20, 36, 68, 100, 132
    T0 = 148
    vK, vV, vVb, vInc = T0, T0+1, T0+2, T0+3
    t0, t1, t2, t3 = T0+4, T0+5, T0+6, T0+7
    k(f's_lshr_b32 s19, s{S_W}, 2')
    k(f's_and_b32 s22, s{S_W}, 3')
    k('s_lshl_b32 s22, s22, 1')
    k('s_add_u32 s21, s21, s22')
    k('s_add_u32 s28, s21, s19')
    k('s_xor_b32 s29, s19, 1')
    k('s_add_u32 s29, s21, s29')
    k(f'v_and_b32 v{t0}, 31, v0')
    k(f'v_cmp_gt_u32 vcc, 2, v{t0}')
    k(f'v_mov_b32 v{t1}, 0x3f803f80')
    k(f'v_lshlrev_b32 v{t2}, 3, v0')
    k(f'v_cndmask_b32 v{t0}, 0, v{t1}, vcc')
    k(f'v_add_u32 v{t2}, {hex(LDS_ONES)}, v{t2}')
    k(f'v_mov_b32 v{t1}, v{t0}')
    k(f'ds_write_b64 v{t2}, v[{t0}:{t1}]')
    k(f'ds_write_b64 v{t2}, v[{t0}:{t1}] offset:1024')
    k(f'v_lshrrev_b32 v{t0}, 5, v2')
    k(f'v_lshlrev_b32 v{t0}, 8, v{t0}')
    k(f'v_and_b32 v{t1}, 15, v2')
    k(f'v_lshl_add_u32 v{t0}, v{t1}, 4, v{t0}')
    k(f'v_bfe_u32 v{t1}, v2, 4, 1')
    k(f'v_sub_u32 v{t2}, 1, v{t1}')
    k(f'v_lshlrev_b32 v{vInc}, 12, v{t2}')
    k('s_lshl_b32 s26, s19, 15')
    k(f's_add_u32 s26, s26, 0x10000')
    k(f'v_mul_lo_u32 v{t2}, v{t2}, s26')
    k(f'v_lshlrev_b32 v{t1}, 17, v{t1}')
    k(f'v_add3_u32 v{vVb}, v{t0}, v{t1}, v{t2}')
    k('s_lshl_b32 s26, s19, 15')
    k(f'v_add_u32 v{vK}, s26, v3')
    k(f'v_mov_b32 v{vV}, v{vVb}')
    for i in range(32): k(f'v_mov_b32 v{O+i}, 0')
    for i in range(4): k(f'v_mov_b32 v{P+8+4+i}, 0')
    for i in range(4): k(f'v_mov_b32 v{VF+8+4+i}, 0')
    def idx_p3(k):
        k('s_lshr_b32 s98, s20, 1')
        k(f's_add_u32 s98, s98, {F_P2}')
        k('v_lshl_add_u32 v250, v2, 4, s98')
        k(f'v_add_u32 v252, {F_WO-16}, v2')
        k('v_cmp_le_u32 vcc, 16, v2')
        k('s_nop 1')
        k('v_cndmask_b32 v250, v250, v252, vcc')
        k('v_bfe_u32 v252, v2, 3, 2')
        k('v_mul_u32_u24 v252, 48, v252')
        k('v_and_b32 v253, 7, v2')
        k(f'v_add3_u32 v252, v252, v253, {F_G+16}')
        k('v_cmp_le_u32 vcc, 32, v2')
        k('s_nop 1')
        k('v_cndmask_b32 v250, v250, v252, vcc')
    wait_flags(k, idx_p3)
    stamp(k, 8)
    k('s_lshl_b32 s22, s20, 16')
    k('s_lshl_b32 s23, s28, 10')
    k('s_add_u32 s23, s23, s22')
    k(f'buffer_load_dwordx4 {vr(QF,4)}, v3, s[8:11], s23 offen{SC}')
    k('s_lshl_b32 s23, s29, 10')
    k('s_add_u32 s23, s23, s22')
    k(f'buffer_load_dwordx4 {vr(QF+4,4)}, v3, s[8:11], s23 offen{SC}')
    k(f's_lshl_b32 s24, s{S_W}, 10')
    k('s_add_u32 s25, s22, s24')
    k(f's_add_u32 s25, s25, {SZ_Q}')
    def dma(c, which):
        if which == 0:
            k(f's_add_u32 m0, s24, {c*8192}')
            k(f's_add_u32 s26, s25, {c*8192}')
        else:
            k(f's_add_u32 m0, s24, {c*8192 + 65536}')
            k(f's_add_u32 s26, s25, {c*8192 + SZ_Q}')
        k(f'buffer_load_dwordx4 v3, s[8:11], s26 offen{SC} lds')
    for c in (0, 4):
        dma(c, 0); dma(c, 1)
    k('s_waitcnt vmcnt(0) lgkmcnt(0)')
    k('s_barrier')
    k(f'ds_read_b128 {vr(VF,4)}, v3')
    k(f'ds_read_b128 {vr(KF,4)}, v{vK}')
    k(f'ds_read_b128 {vr(KF+4,4)}, v{vK} offset:1024')
    k('s_waitcnt lgkmcnt(2)')
    for x in range(2):
        k(f'{MF} {vr(S+16*x,16)}, {vr(VF,4)}, {vr(QF+4*x,4)}, 0')
    k(f'ds_read_b128 {vr(VF,4)}, v{vV}')
    k(f'ds_read_b128 {vr(VF+4,4)}, v{vV} offset:512')
    for x in range(2):
        m = t0 + x; b = S + 16*x
        k(f'v_max3_f32 v{m}, v{b}, v{b+1}, v{b+2}')
        for i in range(3, 15, 2): k(f'v_max3_f32 v{m}, v{m}, v{b+i}, v{b+i+1}')
        k(f'v_max_f32 v{m}, v{m}, v{b+15}')
    k(f'v_mov_b32 v{t2}, v{t0}')
    k(f'v_mov_b32 v{t3}, v{t1}')
    k(f'v_permlane32_swap_b32 v{t0}, v{t2}')
    k(f'v_permlane32_swap_b32 v{t1}, v{t3}')
    k(f'v_max_f32 v{t0}, v{t0}, v{t2}')
    k(f'v_max_f32 v{t1}, v{t1}, v{t3}')
    k(f'v_sub_f32 v{t0}, {hex(f2u(-40.0))}, v{t0}')
    k(f'v_sub_f32 v{t1}, {hex(f2u(-40.0))}, v{t1}')
    for i in range(16): k(f'v_mov_b32 v{CN+i}, v{t0}')
    k('s_waitcnt lgkmcnt(2)')
    k(f'{MF} {vr(S,16)}, {vr(KF,4)}, {vr(QF,4)}, {vr(CN,16)}')
    for i in range(16): k(f'v_mov_b32 v{CN+16+i}, v{t1}')
    k(f'{MF} {vr(S+16,16)}, {vr(KF,4)}, {vr(QF+4,4)}, {vr(CN+16,16)}')
    k('s_mov_b32 s31, 0')
    k('s_nop 9')
    stamp(k, 9)
    def step(u, extra):
        kc, kn = KF + 4*(u & 1), KF + 4*((u+1) & 1)
        vc, vn = VF + 8*(u & 1), VF + 8*((u+1) & 1)
        ex = list(extra) if extra else []
        def X():
            if ex: ex.pop(0)()
        for x in range(2):
            cur = S + 16*x; o = O + 16*x; p = P + 8*x
            E = lambda i: k(f'v_exp_f32 v{cur+i}, v{cur+i}')
            if x == 0: k('s_waitcnt lgkmcnt(0)')
            E(0)
            if x == 0: k(f'ds_read_b128 {vr(kc,4)}, v{vK} offset:{1024*(u+2)}')
            E(1)
            if x == 0: k(f'ds_read_b128 {vr(vn,4)}, v{vV} offset:{1024*(u+1)}')
            E(2); X(); E(3)
            if x == 0: k(f'{MF} {vr(O+16,16)}, {vr(vn+4,4)}, {vr(P+8+4,4)}, {vr(O+16,16)}')
            else:      k(f'{MF} {vr(O,16)}, {vr(vc+4,4)}, {vr(P+4,4)}, {vr(O,16)}')
            E(4)
            if x == 0: k(f'ds_read_b128 {vr(vn+4,4)}, v{vV} offset:{1024*(u+1)+512}')
            E(5); X(); E(6); E(7)
            for d in range(4): k(f'v_cvt_pk_bf16_f32 v{p+d}, v{cur+2*d}, v{cur+2*d+1}')
            E(8); E(9)
            k(f'{MF} {vr(o,16)}, {vr(vc,4)}, {vr(p,4)}, {vr(o,16)}')
            for i in range(10, 16): E(i)
            for d in range(4): k(f'v_cvt_pk_bf16_f32 v{p+4+d}, v{cur+8+2*d}, v{cur+8+2*d+1}')
            k(f'{MF} {vr(cur,16)}, {vr(kn,4)}, {vr(QF+4*x,4)}, {vr(CN+16*x,16)}')
    def tail():
        k(f'v_add_u32 v{vK}, 0x1000, v{vK}')
        k(f'v_add_u32 v{vV}, v{vV}, v{vInc}')
    seq = []
    for c in (1, 5, 2, 6, 3, 7):
        seq += [(lambda c=c: dma(c, 0)), (lambda c=c: dma(c, 1))]
    for u in range(4): step(u, seq[3*u:3*u+3])
    tail()
    k('s_waitcnt vmcnt(0)')
    k('s_barrier')
    k('s_mov_b32 s31, 1')
    k.label(f'{L}_LOOP')
    for u in range(4): step(u, None)
    tail()
    k('s_add_u32 s31, s31, 1')
    k('s_cmp_lt_u32 s31, 8')
    k(f's_cbranch_scc1 {L}_LOOP')
    stamp(k, 10)
    k('s_waitcnt lgkmcnt(0)')
    k(f'{MF} {vr(O+16,16)}, {vr(VF+8+4,4)}, {vr(P+8+4,4)}, {vr(O+16,16)}')
    k(f's_and_b32 s22, s{S_W}, 3')
    k('s_lshl_b32 s22, s22, 1')
    k('s_xor_b32 s23, s19, 1')
    k('s_add_u32 s23, s23, s22')
    k('s_mul_i32 s23, s23, 2304')
    k(f's_add_u32 s23, s23, {LDS_CMB}')
    k(f'v_lshlrev_b32 v{t0}, 2, v2')
    k(f'v_add_u32 v{t1}, s23, v{t0}')
    k('s_add_u32 s22, s22, s19')
    k('s_mul_i32 s22, s22, 2304')
    k(f's_add_u32 s22, s22, {LDS_CMB}')
    k(f'v_add_u32 v{t2}, s22, v{t0}')
    for r in range(9): k(f'ds_write_b32 v{t1}, v{O+16+r} offset:{256*r}')
    k('s_waitcnt lgkmcnt(0)')
    k('s_barrier')
    for r in range(9): k(f'ds_read_b32 v{S+r}, v{t2} offset:{256*r}')
    k('s_waitcnt lgkmcnt(0)')
    for r in range(9): k(f'v_add_f32 v{O+r}, v{O+r}, v{S+r}')
    k(f'v_mov_b32 v{t3}, v{O+8}')
    k(f'v_permlane32_swap_b32 v{t3}, v{O+8}')
    k(f'v_mul_f32 v{t0}, 0, v{t3}')
    for r in range(8): k(f'v_fmac_f32 v{t0}, 0, v{O+r}')
    k(f'v_mov_b32 v{t1}, {hex(f2u(2.0**64))}')
    k(f'v_cmp_u_f32 vcc, v{t0}, v{t0}')
    k(f'v_cmp_nlt_f32 s[34:35], v{t3}, v{t1}')
    k('s_or_b64 s[34:35], vcc, s[34:35]')
    k(f's_cbranch_scc0 {L}_FIN')
    k(f'v_mov_b32 v{vK}, v3')
    k(f'v_mov_b32 v{t0}, 0xff800000')
    k('s_mov_b32 s31, 0')
    k.label(f'{L}_MAXL')
    k(f'ds_read_b128 {vr(KF,4)}, v{vK}')
    k('s_waitcnt lgkmcnt(0)')
    k(f'{MF} {vr(S,16)}, {vr(KF,4)}, {vr(QF,4)}, 0')
    k(f'v_add_u32 v{vK}, 0x400, v{vK}')
    for i in range(0, 16, 2): k(f'v_max3_f32 v{t0}, v{t0}, v{S+i}, v{S+i+1}')
    k('s_add_u32 s31, s31, 1')
    k('s_cmp_lt_u32 s31, 64')
    k(f's_cbranch_scc1 {L}_MAXL')
    k(f'v_mov_b32 v{t1}, v{t0}')
    k(f'v_permlane32_swap_b32 v{t0}, v{t1}')
    k(f'v_max_f32 v{t0}, v{t0}, v{t1}')
    for i in range(16): k(f'v_sub_f32 v{CN+i}, 0, v{t0}')
    for i in range(16): k(f'v_mov_b32 v{O+i}, 0')
    k(f'v_mov_b32 v{vK}, v3')
    k('s_lshl_b32 s26, s19, 15')
    k(f'v_lshrrev_b32 v{t1}, 12, v{vInc}')
    k(f'v_mul_lo_u32 v{t1}, v{t1}, s26')
    k(f'v_sub_u32 v{vV}, v{vVb}, v{t1}')
    k(f'v_lshrrev_b32 v{t2}, 2, v{vInc}')
    k('s_mov_b32 s31, 0')
    k.label(f'{L}_FBL')
    k(f'ds_read_b128 {vr(KF,4)}, v{vK}')
    k(f'ds_read_b128 {vr(VF,4)}, v{vV}')
    k(f'ds_read_b128 {vr(VF+4,4)}, v{vV} offset:512')
    k('s_waitcnt lgkmcnt(0)')
    k(f'{MF} {vr(S,16)}, {vr(KF,4)}, {vr(QF,4)}, {vr(CN,16)}')
    k(f'v_add_u32 v{vK}, 0x400, v{vK}')
    k(f'v_add_u32 v{vV}, v{vV}, v{t2}')
    for i in range(16): k(f'v_exp_f32 v{S+i}, v{S+i}')
    for d in range(8): k(f'v_cvt_pk_bf16_f32 v{P+d}, v{S+2*d}, v{S+2*d+1}')
    k(f'{MF} {vr(O,16)}, {vr(VF,4)}, {vr(P,4)}, {vr(O,16)}')
    k(f'{MF} {vr(O,16)}, {vr(VF+4,4)}, {vr(P+4,4)}, {vr(O,16)}')
    k('s_add_u32 s31, s31, 1')
    k('s_cmp_lt_u32 s31, 64')
    k('s_nop 7')
    k(f's_cbranch_scc1 {L}_FBL')
    k('s_nop 7')
    k(f'v_mov_b32 v{t3}, v{O+8}')
    k(f'v_permlane32_swap_b32 v{t3}, v{O+8}')
    k.label(f'{L}_FIN')
    k(f'v_rcp_f32 v{t0}, v{t3}')
    for r in range(8): k(f'v_mul_f32 v{O+r}, v{O+r}, v{t0}')
    for d in range(4): k(f'v_cvt_pk_bf16_f32 v{P+d}, v{O+2*d}, v{O+2*d+1}')
    k('s_lshl_b32 s22, s28, 15')
    k('s_lshl_b32 s23, s20, 10')
    k('s_add_u32 s22, s22, s23')
    k(f'buffer_store_dwordx4 {vr(P,4)}, v3, s[12:15], s22 offen{SC}')
    k('s_lshl_b32 s22, s36, 5')
    k('s_add_u32 s22, s22, s20')
    k(f's_add_u32 s22, s22, {F_P3}')
    publish(k, 22)
    stamp(k, 11)
```

```python
from pk_common import *

LDS_W13 = 49152
LDS_EX4 = 32768
LDS_ST4 = LDS_W13 + 99*1024

def p5_decode(k):
    k(f's_and_b32 s6, s{S_ID}, 7')
    k(f's_lshr_b32 s7, s{S_ID}, 3')
    k('s_cmp_lt_u32 s7, 29')
    k('s_cselect_b32 s52, 1, 0')
    k('s_min_u32 s7, s7, 28')
    k('s_mul_i32 s6, s6, 29')
    k('s_add_u32 s6, s6, s7')
    k('s_cmp_ge_u32 s6, 116')
    k('s_cselect_b32 s7, 116, 0')
    k('s_cselect_b32 s19, 4, 0')
    k('s_sub_u32 s6, s6, s7')
    k('s_and_b32 s50, s6, 3')
    k('s_add_u32 s50, s50, s19')
    k('s_lshr_b32 s53, s6, 2')
    k('s_mul_i32 s51, s53, 3')
    k('s_min_u32 s51, s51, 83')

def sum_partials8(k, G, dst):
    for j in range(8):
        k(f'v_add_f32 v{G+j}, v{G+j}, v{G+8+j}')
        k(f'v_add_f32 v{G+16+j}, v{G+16+j}, v{G+24+j}')
    for j in range(8): k(f'v_add_f32 v{G+j}, v{G+j}, v{G+16+j}')
    for j in range(8): k(f'v_cvt_pk_bf16_f32 v{G+j}, v{G+j}, v{G+j}')
    for j in range(8): k(f'v_lshlrev_b32 v{dst+j}, 16, v{G+j}')

def gen_p4(k):
    k(f's_and_b32 s6, s{S_ID}, 7')
    k(f's_lshr_b32 s7, s{S_ID}, 3')
    k('s_lshl_b32 s20, s6, 3')
    k('s_lshr_b32 s21, s7, 2')
    k('s_add_u32 s20, s20, s21')
    k('s_and_b32 s21, s7, 3')
    k(f's_and_b32 s22, s{S_W}, 3')
    k('s_lshl_b32 s23, s21, 2')
    k('s_add_u32 s23, s23, s22')
    k(f's_lshr_b32 s24, s{S_W}, 2')
    p5_decode(k)
    srd(k, 8, S_WS, WS_O, SZ_Q)
    srd(k, 12, S_WS, WS_WO, SZ_WO)
    srd(k, 28, S_WS, WS_MODP, SZ_MODP)
    srd(k, 32, S_X, 0, 2048*1024)
    srd(k, 36, S_WS, WS_X1, SZ_Q)
    srd(k, 40, S_WS, WS_W13, SZ_W13)
    vm = VM(k)
    WR, G, RES, ACC, TB = 64, 128, 160, 16, 32
    k('v_and_b32 v4, 31, v2')
    k('v_lshrrev_b32 v5, 5, v2')
    k('s_lshl_b32 s25, s24, 4')
    k('v_xor_b32 v6, s25, v2')
    k('v_lshlrev_b32 v6, 4, v6')
    k('s_lshl_b32 s25, s23, 15')
    k('s_lshl_b32 s26, s24, 14')
    k('s_add_u32 s25, s25, s26')
    for i in range(16):
        k(f'buffer_load_dwordx4 {vr(WR+4*i,4)}, v6, s[12:15], s25 offen offset:{1024*(i&3)}{SC}')
        if (i & 3) == 3 and i < 15: k('s_add_u32 s25, s25, 4096')
    vm.issue('w', 16)
    k('v_lshlrev_b32 v7, 10, v4')
    k('v_lshl_add_u32 v7, v5, 3, v7')
    k('s_lshl_b32 s25, s20, 15')
    k('s_lshl_b32 s26, s23, 6')
    k('s_add_u32 s25, s25, s26')
    k('s_lshl_b32 s26, s24, 5')
    k('s_add_u32 s25, s25, s26')
    k(f'buffer_load_dwordx2 {vr(RES,2)}, v7, s[32:35], s25 offen')
    k(f'buffer_load_dwordx2 {vr(RES+2,2)}, v7, s[32:35], s25 offen offset:16')
    k('v_lshlrev_b32 v8, 4, v5')
    k('s_lshl_b32 s25, s23, 7')
    k('s_lshl_b32 s26, s24, 6')
    k('s_add_u32 s25, s25, s26')
    for rq in range(4):
        k(f's_add_u32 s26, s25, {2*2048 + rq*3072*4}')
        k(f'buffer_load_dwordx4 {vr(G+8*rq,4)}, v8, s[28:31], s26 offen{SC}')
        k(f'buffer_load_dwordx4 {vr(G+8*rq+4,4)}, v8, s[28:31], s26 offen offset:32{SC}')
    vm.issue('e', 10)
    def idx_p4(k):
        k('s_lshr_b32 s98, s20, 3')
        k('s_lshl_b32 s98, s98, 5')
        k(f's_add_u32 s98, s98, {F_P3}')
        k('v_add_u32 v250, s98, v2')
        k('v_subrev_u32 v252, 32, v2')
        k('v_min_u32 v252, 2, v252')
        k(f's_add_u32 s98, s51, {F_W13}')
        k('v_add_u32 v252, s98, v252')
        k('v_cmp_le_u32 vcc, 32, v2')
        k('s_nop 1')
        k('v_cndmask_b32 v250, v250, v252, vcc')
    stamp(k, 12)
    wait_flags(k, idx_p4)
    stamp(k, 13)
    k('s_lshl_b32 s25, s20, 15')
    k(f's_lshl_b32 s26, s{S_W}, 12')
    k('s_add_u32 s25, s25, s26')
    k('s_mov_b32 m0, s26')
    k('s_nop 0')
    for i in range(4):
        k(f'buffer_load_dwordx4 v3, s[8:11], s25 offen offset:{1024*i}{SC} lds')
    vm.issue('t', 4)
    k(f's_mul_i32 s25, s51, {U_STRIDE}')
    k(f's_mul_i32 s26, s{S_W}, 0x5556')
    k('s_lshr_b32 s26, s26, 16')
    k('s_mul_i32 s26, s26, 3')
    k(f's_sub_u32 s26, s{S_W}, s26')
    k(f's_mul_i32 s27, s26, {U_STRIDE}')
    k('s_add_u32 s27, s27, s25')
    k(f's_add_u32 s27, s27, {32*1024}')
    k('s_lshl_b32 s26, s26, 10')
    k(f's_add_u32 m0, s26, {LDS_W13 + 96*1024}')
    k('s_nop 0')
    k(f'buffer_load_dwordx4 v3, s[40:43], s27 offen{SC} lds')
    k(f's_lshl_b32 s26, s{S_W}, 10')
    k('s_add_u32 s25, s25, s26')
    k(f's_mul_i32 s26, s{S_W}, 3072')
    for c in range(4):
        for u in range(3):
            k(f's_add_u32 m0, s26, {LDS_W13 + c*8*3072 + u*1024}')
            k(f's_add_u32 s27, s25, {c*8*1024 + u*U_STRIDE}')
            k(f'buffer_load_dwordx4 v3, s[40:43], s27 offen{SC} lds')
    vm.issue('w13', 13)
    vm.wait('e')
    sum_partials8(k, G, G+8)
    GA = G + 8
    vm.wait('t')
    k('s_barrier')
    k('s_lshl_b32 s25, s24, 14')
    k('v_add_u32 v9, s25, v3')
    for i in range(2): k(f'ds_read_b128 {vr(TB+4*i,4)}, v9 offset:{1024*i}')
    for i in range(16):
        if i + 2 < 16: k(f'ds_read_b128 {vr(TB+4*((i+2)%4),4)}, v9 offset:{1024*(i+2)}')
        k(f's_waitcnt lgkmcnt({min(2, 15-i)})')
        k(f'{MF} {vr(ACC,16)}, {vr(WR+4*i,4)}, {vr(TB+4*(i%4),4)}, {vr(ACC,16) if i else 0}')
    stamp(k, 14)
    k(f's_lshl_b32 s25, s{S_W}, 11')
    k(f's_add_u32 s25, s25, {LDS_EX4}')
    k('v_add_u32 v10, s25, v3')
    k(f's_xor_b32 s25, s{S_W}, 4')
    k('s_lshl_b32 s25, s25, 11')
    k(f's_add_u32 s25, s25, {LDS_EX4}')
    k('v_add_u32 v11, s25, v3')
    k(f'ds_write_b128 v10, {vr(ACC+8,4)}')
    k(f'ds_write_b128 v10, {vr(ACC+12,4)} offset:1024')
    for d in range(4):
        k(f'v_lshlrev_b32 v{48+2*d}, 16, v{RES+d}')
        k(f'v_and_b32 v{48+2*d+1}, 0xffff0000, v{RES+d}')
    k('s_waitcnt lgkmcnt(0)')
    k('s_barrier')
    k(f'ds_read_b128 {vr(56,4)}, v11')
    k(f'ds_read_b128 {vr(60,4)}, v11 offset:1024')
    k('s_waitcnt lgkmcnt(0)')
    for j in range(8): k(f'v_add_f32 v{ACC+j}, v{ACC+j}, v{56+j}')
    for j in range(8): k(f'v_fma_f32 v{ACC+j}, v{ACC+j}, v{GA+j}, v{48+j}')
    for d in range(4): k(f'v_cvt_pk_bf16_f32 v{56+d}, v{ACC+2*d}, v{ACC+2*d+1}')
    k('s_lshl_b32 s25, s20, 15')
    k('s_lshl_b32 s26, s23, 11')
    k('s_add_u32 s25, s25, s26')
    k('s_lshl_b32 s26, s24, 10')
    k('s_add_u32 s25, s25, s26')
    k(f'buffer_store_dwordx4 {vr(56,4)}, v3, s[36:39], s25 offen{SC}')
    for d in range(4):
        k(f'v_lshlrev_b32 v{48+2*d}, 16, v{56+d}')
        k(f'v_and_b32 v{48+2*d+1}, 0xffff0000, v{56+d}')
    k('v_add_f32 v12, v48, v49')
    k('v_mul_f32 v13, v48, v48')
    k('v_fmac_f32 v13, v49, v49')
    for j in range(2, 8):
        k(f'v_add_f32 v12, v12, v{48+j}')
        k(f'v_fmac_f32 v13, v{48+j}, v{48+j}')
    k('v_mov_b32 v14, v12')
    k('v_mov_b32 v15, v13')
    k('v_permlane32_swap_b32 v12, v14')
    k('v_permlane32_swap_b32 v13, v15')
    k('v_add_f32 v12, v12, v14')
    k('v_add_f32 v13, v13, v15')
    k(f's_lshl_b32 s25, s{S_W}, 8')
    k(f's_add_u32 s25, s25, {LDS_ST4}')
    k('v_lshlrev_b32 v14, 3, v4')
    k('v_add_u32 v15, s25, v14')
    k('ds_write_b64 v15, v[12:13]')
    k('s_waitcnt lgkmcnt(0)')
    k('s_barrier')
    k(f's_cmp_eq_u32 s{S_W}, 0')
    k('s_cbranch_scc0 P4_PUB')
    k(f'v_add_u32 v15, {LDS_ST4}, v14')
    for i in range(8): k(f'ds_read_b64 {vr(32+2*i,2)}, v15 offset:{256*i}')
    k('s_waitcnt lgkmcnt(0)')
    for st in (4, 2, 1):
        for i in range(st):
            k(f'v_add_f32 v{32+2*i}, v{32+2*i}, v{32+2*(i+st)}')
            k(f'v_add_f32 v{33+2*i}, v{33+2*i}, v{33+2*(i+st)}')
    srd(k, 28, S_WS, WS_STATS, SZ_STATS)
    k('s_lshl_b32 s25, s21, 14')
    k('s_lshl_b32 s26, s20, 8')
    k('s_add_u32 s25, s25, s26')
    k(f'buffer_store_dwordx2 v[32:33], v14, s[28:31], s25 offen{SC}')
    k.label('P4_PUB')
    k('s_lshl_b32 s22, s20, 2')
    k('s_add_u32 s22, s22, s21')
    k(f's_add_u32 s22, s22, {F_P4}')
    publish(k, 22)
    stamp(k, 15)

def gen_p5(k):
    srd(k, 8, S_WS, WS_X1, SZ_Q)
    srd(k, 28, S_WS, WS_STATS, SZ_STATS)
    srd(k, 32, S_WS, WS_HM, SZ_HM)
    k('s_lshl_b32 s20, s50, 3')
    k(f's_add_u32 s20, s20, s{S_W}')
    k('v_and_b32 v4, 31, v2')
    k('v_lshrrev_b32 v5, 5, v2')
    def idx_p5(k):
        k('s_lshl_b32 s98, s50, 5')
        k(f's_add_u32 s98, s98, {F_P4}')
        k('v_add_u32 v250, s98, v2')
        k('v_bfe_u32 v252, v2, 3, 2')
        k('v_mul_u32_u24 v252, 48, v252')
        k('v_and_b32 v253, 7, v2')
        k(f'v_add3_u32 v252, v252, v253, {F_G+40}')
        k('v_cmp_le_u32 vcc, 32, v2')
        k('s_nop 1')
        k('v_cndmask_b32 v250, v250, v252, vcc')
    stamp(k, 16)
    wait_flags(k, idx_p5, pre='s_waitcnt vmcnt(0)')
    stamp(k, 17)
    k('s_cmp_eq_u32 s52, 0')
    k('s_cbranch_scc1 P5_SKIP')
    vm = VM(k)
    XR, WR, ACC, AUG, ST = 64, 16, 192, 40, 44
    k('v_lshlrev_b32 v6, 3, v4')
    k('v_lshl_add_u32 v6, v5, 15, v6')
    k('s_lshl_b32 s26, s20, 8')
    k(f'buffer_load_dwordx2 {vr(ST,2)}, v6, s[28:31], s26 offen{SC}')
    k('s_add_u32 s26, s26, 16384')
    k(f'buffer_load_dwordx2 {vr(ST+2,2)}, v6, s[28:31], s26 offen{SC}')
    vm.issue('st', 2)
    k('s_lshl_b32 s24, s20, 15')
    def ldx(s):
        k(f'buffer_load_dwordx4 {vr(XR+4*s,4)}, v3, s[8:11], s24 offen offset:{1024*(s&3)}{SC}')
        if (s & 3) == 3: k('s_add_u32 s24, s24, 4096')
        vm.issue(('x', s))
    PF = 6
    for s in range(PF): ldx(s)
    k(f'v_add_u32 v7, {LDS_W13}, v3')
    k(f'v_add_u32 v8, {LDS_W13 + 65536}, v3')
    def rd(s):
        st = s & 1
        for u in range(3):
            o = (s*3+u)*1024
            k(f'ds_read_b128 {vr(WR+12*st+4*u,4)}, v7 offset:{o}' if o < 65536 else
              f'ds_read_b128 {vr(WR+12*st+4*u,4)}, v8 offset:{o-65536}')
    rd(0)
    vm.wait('st')
    k(f'v_add_f32 v{ST}, v{ST}, v{ST+2}')
    k(f'v_add_f32 v{ST+1}, v{ST+1}, v{ST+3}')
    k(f'v_mov_b32 v12, v{ST}')
    k(f'v_mov_b32 v13, v{ST+1}')
    k(f'v_permlane32_swap_b32 v{ST}, v12')
    k(f'v_permlane32_swap_b32 v{ST+1}, v13')
    k(f'v_add_f32 v12, v12, v{ST}')
    k(f'v_add_f32 v13, v13, v{ST+1}')
    k(f'v_mul_f32 v12, {hex(f2u(-1/512))}, v12')
    k(f'v_mul_f32 v13, {hex(f2u(1/512))}, v13')
    k('v_fma_f32 v13, -v12, v12, v13')
    k('v_max_f32 v13, 0, v13')
    k(f'v_add_f32 v13, {hex(f2u(1e-5))}, v13')
    k('v_rsq_f32 v10, v13')
    k('s_nop 0')
    k('v_mul_f32 v13, v13, v10')
    k('v_cvt_pk_bf16_f32 v11, v12, v13')
    k('v_lshlrev_b32 v14, 16, v11')
    k('v_and_b32 v15, 0xffff0000, v11')
    k('v_sub_f32 v14, v12, v14')
    k('v_sub_f32 v15, v13, v15')
    k('v_cvt_pk_bf16_f32 v12, v14, v15')
    k('s_mov_b32 s36, 0x01000100')
    k('s_mov_b32 s37, 0x07060100')
    k('s_mov_b32 s38, 0x07060302')
    k(f'v_perm_b32 v{AUG}, v11, v11, s36')
    k(f'v_perm_b32 v{AUG+1}, v11, v12, s37')
    k(f'v_perm_b32 v{AUG+2}, v12, v11, s38')
    k(f'v_mov_b32 v{AUG+3}, 0')
    k('v_cmp_gt_u32 vcc, 32, v2')
    k('s_nop 1')
    for i in range(3): k(f'v_cndmask_b32 v{AUG+i}, 0, v{AUG+i}, vcc')
    NST = 33
    for s in range(NST):
        st = s & 1
        if s + 1 < NST: rd(s+1)
        if s + PF < 32: ldx(s + PF)
        if s < 32: vm.wait(('x', s))
        k(f's_waitcnt lgkmcnt({3 if s+1 < NST else 0})')
        xf = vr(XR+4*s, 4) if s < 32 else vr(AUG, 4)
        for u in range(3):
            acc = vr(ACC+16*u, 16); w = vr(WR+12*st+4*u, 4)
            k(f'{MF} {acc}, {w}, {xf}, {acc if s > 0 else 0}')
    stamp(k, 18)
    k(f'v_mul_f32 v11, {hex(f2u(-LOG2E))}, v10')
    k('v_mul_f32 v12, v10, v10')
    k('s_mul_i32 s24, s20, 86')
    k('s_add_u32 s24, s24, s51')
    k('s_lshl_b32 s24, s24, 10')
    T = 64
    for u in range(3):
        a = ACC + 16*u
        for r in range(8): k(f'v_mul_f32 v{T+r}, v{a+r}, v11')
        for r in range(8): k(f'v_exp_f32 v{T+r}, v{T+r}')
        for r in range(8): k(f'v_mul_f32 v{a+r}, v{a+r}, v{a+8+r}')
        for r in range(8): k(f'v_add_f32 v{T+r}, 1.0, v{T+r}')
        for r in range(8): k(f'v_rcp_f32 v{T+r}, v{T+r}')
        for r in range(8): k(f'v_mul_f32 v{a+r}, v{a+r}, v12')
        for r in range(8): k(f'v_mul_f32 v{a+r}, v{a+r}, v{T+r}')
        for d in range(4): k(f'v_cvt_pk_bf16_f32 v{T+16+4*u+d}, v{a+2*d}, v{a+2*d+1}')
        k(f'buffer_store_dwordx4 {vr(T+16+4*u,4)}, v3, s[32:35], s24 offen offset:{1024*u}{SC}')
    k('s_lshl_b32 s22, s50, 5')
    k('s_add_u32 s22, s22, s53')
    k(f's_add_u32 s22, s22, {F_P5}')
    publish(k, 22)
    k.label('P5_SKIP')
    stamp(k, 19)

def gen_p6(k):
    k(f's_and_b32 s6, s{S_ID}, 7')
    k(f's_lshr_b32 s7, s{S_ID}, 3')
    k('s_lshl_b32 s20, s6, 2')
    k('s_lshr_b32 s21, s7, 3')
    k('s_add_u32 s20, s20, s21')
    k('s_and_b32 s21, s7, 7')
    k(f's_and_b32 s22, s{S_W}, 1')
    k(f's_lshr_b32 s23, s{S_W}, 1')
    k('s_lshl_b32 s24, s21, 1')
    k('s_add_u32 s24, s24, s22')
    k('s_lshr_b32 s25, s23, 1')
    k('s_and_b32 s26, s23, 1')
    k('s_lshl_b32 s27, s20, 1')
    k('s_add_u32 s54, s27, s25')
    k('s_xor_b32 s55, s25, 1')
    k('s_add_u32 s55, s27, s55')
    srd(k, 8, S_WS, WS_HM, SZ_HM)
    srd(k, 12, S_WS, WS_W2, SZ_W2)
    srd(k, 28, S_WS, WS_MODP, SZ_MODP)
    srd(k, 32, S_OUT, 0, 2048*1024)
    srd(k, 36, S_WS, WS_X1, SZ_Q)
    vm = VM(k)
    ACC, TB, WR, TD, G, RES = 16, 48, 64, 152, 168, 200
    k('v_and_b32 v4, 31, v2')
    k('v_lshrrev_b32 v5, 5, v2')
    k('s_cmp_eq_u32 s23, 3')
    k('s_cselect_b32 s56, 0x40000000, 0')
    k('s_lshl_b32 s57, s26, 4')
    k('v_xor_b32 v6, s57, v2')
    k('v_lshlrev_b32 v6, 4, v6')
    k(f's_mul_i32 s57, s24, {86*1024}')
    k(f's_mul_i32 s58, s23, {22*1024}')
    k('s_add_u32 s57, s57, s58')
    for i in range(22):
        if i == 20: k('s_add_u32 s57, s57, s56')
        k(f'buffer_load_dwordx4 {vr(WR+4*i,4)}, v6, s[12:15], s57 offen offset:{1024*(i&3)}{SC}')
        if (i & 3) == 3: k('s_add_u32 s57, s57, 4096')
    vm.issue('w', 22)
    k('v_lshlrev_b32 v8, 4, v5')
    k('s_lshl_b32 s57, s24, 7')
    k('s_lshl_b32 s59, s26, 6')
    k('s_add_u32 s57, s57, s59')
    for rq in range(4):
        k(f's_add_u32 s59, s57, {5*2048 + rq*3072*4}')
        k(f'buffer_load_dwordx4 {vr(G+8*rq,4)}, v8, s[28:31], s59 offen{SC}')
        k(f'buffer_load_dwordx4 {vr(G+8*rq+4,4)}, v8, s[28:31], s59 offen offset:32{SC}')
    vm.issue('e', 8)
    def idx_p6(k):
        k('s_lshr_b32 s98, s20, 2')
        k('s_lshl_b32 s98, s98, 5')
        k(f's_add_u32 s98, s98, {F_P5}')
        k('v_min_u32 v250, 28, v2')
        k('v_add_u32 v250, s98, v250')
    stamp(k, 20)
    wait_flags(k, idx_p6)
    stamp(k, 21)
    k('s_add_u32 s57, s27, s22')
    k(f's_mul_i32 s57, s57, {86*1024}')
    k('s_add_u32 s57, s57, s58')
    k('s_mul_i32 s59, s23, 40960')
    k('s_mul_i32 s60, s22, 20480')
    k('s_add_u32 s59, s59, s60')
    def dma(g):
        k(f's_add_u32 m0, s59, {4096*g}')
        k(f's_add_u32 s60, s57, {4096*g}')
        for i in range(4):
            k(f'buffer_load_dwordx4 v3, s[8:11], s60 offen offset:{1024*i}{SC} lds')
        vm.issue(('g', g), 4)
    dma(0); dma(1)
    def tail_loads():
        k(f's_mul_i32 s60, s54, {86*1024}')
        k('s_add_u32 s60, s60, s58')
        k(f's_add_u32 s60, s60, {20*1024}')
        k('s_add_u32 s60, s60, s56')
        k(f'buffer_load_dwordx4 {vr(TD,4)}, v3, s[8:11], s60 offen{SC}')
        k(f'buffer_load_dwordx4 {vr(TD+8,4)}, v3, s[8:11], s60 offen offset:1024{SC}')
        k(f's_mul_i32 s60, s55, {86*1024}')
        k('s_add_u32 s60, s60, s58')
        k(f's_add_u32 s60, s60, {20*1024}')
        k('s_add_u32 s60, s60, s56')
        k(f'buffer_load_dwordx4 {vr(TD+4,4)}, v3, s[8:11], s60 offen{SC}')
        k(f'buffer_load_dwordx4 {vr(TD+12,4)}, v3, s[8:11], s60 offen offset:1024{SC}')
        k('s_lshl_b32 s60, s54, 15')
        k('s_lshl_b32 s61, s24, 11')
        k('s_add_u32 s60, s60, s61')
        k('s_lshl_b32 s61, s26, 10')
        k('s_add_u32 s60, s60, s61')
        k(f'buffer_load_dwordx4 {vr(RES,4)}, v3, s[36:39], s60 offen{SC}')
        vm.issue('tail', 5)
    k('s_mul_i32 s60, s23, 40960')
    k('s_mul_i32 s61, s25, 20480')
    k('s_add_u32 s61, s61, s60')
    k('v_add_u32 v9, s61, v3')
    k('s_xor_b32 s61, s25, 1')
    k('s_mul_i32 s61, s61, 20480')
    k('s_add_u32 s61, s61, s60')
    k('v_add_u32 v10, s61, v3')
    vm.wait('e')
    sum_partials8(k, G, G+8)
    GB = G + 8
    for g in range(5):
        vm.wait(('g', g))
        k('s_barrier')
        if g + 2 < 5: dma(g + 2)
        if g == 3: tail_loads()
        k(f'ds_read_b128 {vr(TB,4)}, v9 offset:{4096*g}')
        k(f'ds_read_b128 {vr(TB+4,4)}, v10 offset:{4096*g}')
        for i in range(4):
            s = 4*g + i
            b = TB + 8*(i & 1); nb = TB + 8*((i+1) & 1)
            if i < 3:
                k(f'ds_read_b128 {vr(nb,4)}, v9 offset:{4096*g + 1024*(i+1)}')
                k(f'ds_read_b128 {vr(nb+4,4)}, v10 offset:{4096*g + 1024*(i+1)}')
                k('s_waitcnt lgkmcnt(2)')
            else:
                k('s_waitcnt lgkmcnt(0)')
            k(f'{MF} {vr(ACC,16)}, {vr(WR+4*s,4)}, {vr(b,4)}, {vr(ACC,16) if s else 0}')
            k(f'{MF} {vr(ACC+16,16)}, {vr(WR+4*s,4)}, {vr(b+4,4)}, {vr(ACC+16,16) if s else 0}')
    vm.wait('tail')
    for i in range(2):
        k(f'{MF} {vr(ACC,16)}, {vr(WR+4*(20+i),4)}, {vr(TD+8*i,4)}, {vr(ACC,16)}')
        k(f'{MF} {vr(ACC+16,16)}, {vr(WR+4*(20+i),4)}, {vr(TD+8*i+4,4)}, {vr(ACC+16,16)}')
    stamp(k, 22)
    k('s_barrier')
    for x, src in ((1, ACC+8), (2, ACC+16), (3, ACC+24)):
        k(f's_xor_b32 s60, s23, {x}')
        k('s_lshl_b32 s60, s60, 1')
        k('s_add_u32 s60, s60, s22')
        k('s_mul_i32 s60, s60, 6144')
        k(f's_add_u32 s60, s60, {(x-1)*2048}')
        k(f'v_add_u32 v{10+x}, s60, v3')
    for x, src in ((1, ACC+8), (2, ACC+16), (3, ACC+24)):
        k(f'ds_write_b128 v{10+x}, {vr(src,4)}')
        k(f'ds_write_b128 v{10+x}, {vr(src+4,4)} offset:1024')
    k(f's_mul_i32 s60, s{S_W}, 6144')
    k('v_add_u32 v9, s60, v3')
    for d in range(4):
        k(f'v_lshlrev_b32 v{48+2*d}, 16, v{RES+d}')
        k(f'v_and_b32 v{48+2*d+1}, 0xffff0000, v{RES+d}')
    k('s_waitcnt lgkmcnt(0)')
    k('s_barrier')
    for j in range(6): k(f'ds_read_b128 {vr(64+4*j,4)}, v9 offset:{1024*j}')
    k('s_waitcnt lgkmcnt(0)')
    for x in range(3):
        for j in range(8): k(f'v_add_f32 v{ACC+j}, v{ACC+j}, v{64+8*x+j}')
    for j in range(8): k(f'v_fma_f32 v{ACC+j}, v{ACC+j}, v{GB+j}, v{48+j}')
    for d in range(4): k(f'v_cvt_pk_bf16_f32 v{56+d}, v{ACC+2*d}, v{ACC+2*d+1}')
    k('v_lshlrev_b32 v7, 10, v4')
    k('v_lshl_add_u32 v7, v5, 4, v7')
    k('v_permlane32_swap_b32 v56, v58')
    k('v_permlane32_swap_b32 v57, v59')
    k('s_lshl_b32 s60, s54, 15')
    k('s_lshl_b32 s61, s24, 6')
    k('s_add_u32 s60, s60, s61')
    k('s_lshl_b32 s61, s26, 5')
    k('s_add_u32 s60, s60, s61')
    k('buffer_store_dwordx4 v[56:59], v7, s[32:35], s60 offen')
    stamp(k, 23)
```

```python
from pk_common import *
from pk_p1 import prologue, gen_p1
from pk_p2 import gen_p2, gen_p3
from pk_p4 import gen_p4, gen_p5, gen_p6
NAME = 'adaLN_cond__mha_block__glu_gated_swiglu__prompt_kernel'
k = Kernel(NAME)
prologue(k)
phases = [gen_p1, gen_p2, gen_p3, gen_p4, gen_p5, gen_p6]
for i, g in enumerate(phases[:NPHASE]): g(k)
if TIMING:
    k('s_waitcnt vmcnt(0) lgkmcnt(0)')
    stamp(k, 24)
    k(f's_memrealtime s[{S_T0}:{S_T1}]')
    k('s_waitcnt lgkmcnt(0)')
    k(f'v_writelane_b32 v255, s{S_T0}, 63')
    k(f's_lshl_b32 s98, s{S_ID}, 3')
    k(f's_add_u32 s98, s98, s{S_W}')
    k('s_lshl_b32 s98, s98, 8')
    k(f's_add_u32 s98, s98, {WS_TIME}')
    k('v_lshlrev_b32 v250, 2, v2')
    k('v_add_u32 v250, s98, v250')
    k(f'global_store_dword v250, v255, s[{S_WS}:{S_WS+1}]')
k.label('PK_END')
k('s_endpgm')
hdr = open('adaLN_cond__mha_block__glu_gated_swiglu__prompt.s.ref').read().split('\n')
out = [hdr[0]] + [l for l in hdr if l.startswith(';   offset')]
out.append('; @launch grid=(256,1,1) block=(512,1,1) lds=163840')
out.append('.amdgcn_target "amdgcn-amd-amdhsa--gfx950"')
out.append('.text')
out.append(f'.globl {NAME}')
out.append('.p2align 8')
out.append(f'.type {NAME},@function')
out.append(f'{NAME}:')
lines = k.resolve(verbose=VERBOSE)
out += ['    ' + l if not l.endswith(':') else l for l in lines]
out.append('.section .rodata,"a"')
out.append('.p2align 6')
out.append(f'.amdhsa_kernel {NAME}')
out.append('  .amdhsa_next_free_vgpr 256')
out.append('  .amdhsa_next_free_sgpr 100')
out.append('  .amdhsa_accum_offset 256')
out.append('  .amdhsa_group_segment_fixed_size 0')
out.append('  .amdhsa_kernarg_size 96')
out.append('  .amdhsa_user_sgpr_count 2')
out.append('  .amdhsa_user_sgpr_kernarg_segment_ptr 1')
out.append('  .amdhsa_system_sgpr_workgroup_id_x 1')
out.append('.end_amdhsa_kernel')
path = 'pk_t.s' if TIMING else 'pk.s'
open(path, 'w').write('\n'.join(out) + '\n')
print('autonops', k.autonops, 'lines', len(lines))
```

```python
import sys, os, struct
from asmlib import Kernel

WS_MODP  = 0x0000000; SZ_MODP = 4*3072*4
WS_FLG   = 0x0010000; SZ_FLG = 1536*128
WS_H     = 0x0100000; SZ_H = 2048*1024
WS_WQKV  = 0x0300000; T_STRIDE = 32*3072; SZ_WQKV = 16*T_STRIDE
WS_Q     = 0x0500000; SZ_Q = 2048*1024
WS_K     = 0x0700000
WS_VT    = 0x0900000
WS_O     = 0x0B00000
WS_WO    = 0x0D00000; SZ_WO = 512*1024
WS_X1    = 0x0E00000
WS_STATS = 0x1000000; SZ_STATS = 4*2048*8
WS_W13   = 0x1100000; U_STRIDE = 33*1024; SZ_W13 = 86*U_STRIDE
WS_HM    = 0x1400000; SZ_HM = 64*86*1024
WS_W2    = 0x1A00000; SZ_W2 = 16*86*1024
WS_TIME  = 0x4000000

F_G, F_H, F_WQ, F_WO, F_W2, F_W13, F_P2, F_P3, F_P4, F_P5 = 0, 192, 256, 304, 320, 364, 512, 768, 1024, 1280

S_X, S_WQKV, S_WO, S_BX, S_W1, S_W3, S_W2, S_C, S_WMOD, S_OUT, S_DBG, S_WS = [64 + 2*i for i in range(12)]
S_NONCE, S_W, S_ID = 88, 89, 90
S_FLG = 92
S_T0, S_T1 = 96, 97

LOG2E = 1.4426950408889634
def f2u(f): return struct.unpack('<I', struct.pack('<f', f))[0]
QSCALE = f2u(0.25*LOG2E)
MF = 'v_mfma_f32_32x32x16_bf16'
SC = ' sc1'
TIMING = '-t' in sys.argv
VERBOSE = '-v' in sys.argv
NPHASE = int(os.environ.get('NPHASE', '6'))

def srd(k, s, ptr, off, size):
    if off:
        k(f's_add_u32 s{s}, s{ptr}, {hex(off)}')
        k(f's_addc_u32 s{s+1}, s{ptr+1}, 0')
    else:
        k(f's_mov_b32 s{s}, s{ptr}')
        k(f's_mov_b32 s{s+1}, s{ptr+1}')
    k(f's_mov_b32 s{s+2}, {hex(size)}')
    k(f's_mov_b32 s{s+3}, 0x20000')

def vr(a, n=1):
    return f'v{a}' if n == 1 else f'v[{a}:{a+n-1}]'

_uid = [0]
def uid(p):
    _uid[0] += 1
    return f'{p}_{_uid[0]}'

class VM:
    def __init__(self, k): self.k = k; self.q = []
    def issue(self, tag, n=1):
        for _ in range(n): self.q.append(tag)
    def wait(self, tag):
        idx = max((i for i, t in enumerate(self.q) if t == tag), default=-1)
        if idx < 0: return
        n = len(self.q) - 1 - idx
        assert n <= 63, n
        self.k(f's_waitcnt vmcnt({n})')
        self.q = self.q[idx+1:]
    def waitall(self):
        self.k('s_waitcnt vmcnt(0)'); self.q = []


DBGT = '-d' in sys.argv
DSLOT = {255: {0: 1, 45: 2, 2: 3, 3: 4, 5: 5, 8: 6, 11: 7, 15: 8, 19: 9, 24: 10}, 0: {0: 11, 42: 12, 1: 13, 3: 14, 5: 15}}
def stamp(k, i):
    if DBGT:
        for wg, m in DSLOT.items():
            if i in m:
                L = uid('DS')
                k(f's_cmp_eq_u32 s{S_ID}, {wg}')
                k(f's_cbranch_scc0 {L}')
                k(f's_cmp_eq_u32 s{S_W}, 0')
                k(f's_cbranch_scc0 {L}')
                k(f's_memrealtime s[{S_T0}:{S_T1}]')
                k('s_waitcnt lgkmcnt(0)')
                k(f'v_mov_b32 v250, {4*m[i]}')
                k(f'v_mov_b32 v251, s{S_T0}')
                k(f'global_store_dword v250, v251, s[{S_DBG}:{S_DBG+1}]')
                k.label(L)
    if TIMING:
        k(f's_memtime s[{S_T0}:{S_T1}]')
        k('s_waitcnt lgkmcnt(0)')
        k(f'v_writelane_b32 v255, s{S_T0}, {i}')

def get_nonce(k):
    L = uid('NONCE')
    k(f's_cmp_lg_u32 s{S_NONCE}, 0')
    k(f's_cbranch_scc1 {L}_OK')
    k('s_mov_b32 s98, 0')
    k.label(f'{L}_L')
    k(f'v_mov_b32 v250, 0')
    k(f'global_load_dword v251, v250, s[{S_DBG}:{S_DBG+1}] sc1')
    k('s_waitcnt vmcnt(0)')
    k(f'v_readfirstlane_b32 s{S_NONCE}, v251')
    k('s_add_u32 s98, s98, 1')
    k('s_cmp_gt_u32 s98, 0x20000')
    k(f's_cbranch_scc1 {L}_OK')
    k(f's_cmp_eq_u32 s{S_NONCE}, 0')
    k(f's_cbranch_scc1 {L}_L')
    k.label(f'{L}_OK')

def publish(k, sidx):
    L = uid('PUB')
    k('s_waitcnt vmcnt(0) lgkmcnt(0)')
    k('s_barrier')
    k(f's_cmp_eq_u32 s{S_W}, 0')
    k(f's_cbranch_scc0 {L}')
    get_nonce(k)
    k(f's_lshl_b32 s98, s{sidx}, 7')
    k(f'v_mov_b32 v250, s98')
    k(f'v_mov_b32 v251, s{S_NONCE}')
    k('s_mov_b64 exec, 1')
    k(f'buffer_store_dword v251, v250, s[{S_FLG}:{S_FLG+3}], 0 offen sc1')
    k('s_mov_b64 exec, -1')
    k.label(L)

def wait_flags(k, idxcode, pre=None):
    L = uid('WAIT')
    k(f's_cmp_eq_u32 s{S_W}, 0')
    k(f's_cbranch_scc0 {L}_B')
    get_nonce(k)
    idxcode(k)
    k('v_lshlrev_b32 v250, 7, v250')
    k('s_mov_b32 s98, 0')
    k.label(f'{L}_L')
    k(f'buffer_load_dword v251, v250, s[{S_FLG}:{S_FLG+3}], 0 offen sc1')
    k('s_add_u32 s98, s98, 1')
    k('s_cmp_gt_u32 s98, 0x20000')
    k(f's_cbranch_scc1 {L}_B')
    k('s_waitcnt vmcnt(0)')
    k(f'v_cmp_ne_u32 vcc, s{S_NONCE}, v251')
    k('s_nop 1')
    k('s_cmp_lg_u64 vcc, 0')
    k(f's_cbranch_scc1 {L}_L')
    k.label(f'{L}_B')
    if pre: k(pre)
    k('s_barrier')

def piecewise(k, segs, lane='v2'):
    start = 0
    first = True
    for (cnt, fn) in segs:
        k(f'v_subrev_u32 v252, {start}, {lane}')
        k(f'v_min_u32 v252, {cnt-1}, v252') if start + cnt >= 64 or (cnt, fn) == segs[-1] else None
        fn(k, 'v252', 'v253')
        if first:
            k('v_mov_b32 v250, v253'); first = False
        else:
            k(f'v_cmp_le_u32 vcc, {start}, {lane}')
            k('v_cndmask_b32 v250, v250, v253, vcc')
        start += cnt
```

```python
from pk_common import *
from pk_p1 import prologue, gen_p1
from pk_p2 import gen_p2, gen_p3
from pk_p4 import gen_p4, gen_p5, gen_p6
NAME = 'adaLN_cond__mha_block__glu_gated_swiglu__prompt_kernel'
k = Kernel(NAME)
prologue(k)
phases = [gen_p1, gen_p2, gen_p3, gen_p4, gen_p5, gen_p6]
for i, g in enumerate(phases[:NPHASE]): g(k)
if DBGT:
    k('s_waitcnt vmcnt(0) lgkmcnt(0)')
    stamp(k, 24)
if TIMING:
    k('s_waitcnt vmcnt(0) lgkmcnt(0)')
    stamp(k, 24)
    k(f's_memrealtime s[{S_T0}:{S_T1}]')
    k('s_waitcnt lgkmcnt(0)')
    k(f'v_writelane_b32 v255, s{S_T0}, 63')
    k(f's_lshl_b32 s98, s{S_ID}, 3')
    k(f's_add_u32 s98, s98, s{S_W}')
    k('s_lshl_b32 s98, s98, 8')
    k(f's_add_u32 s98, s98, {WS_TIME}')
    k('v_lshlrev_b32 v250, 2, v2')
    k('v_add_u32 v250, s98, v250')
    k(f'global_store_dword v250, v255, s[{S_WS}:{S_WS+1}]')
k.label('PK_END')
k('s_endpgm')
k.label('PK_CODE_END')
hdr = open('adaLN_cond__mha_block__glu_gated_swiglu__prompt.s.ref').read().split('\n')
out = [hdr[0]] + [l for l in hdr if l.startswith(';   offset')]
out.append('; @launch grid=(256,1,1) block=(512,1,1) lds=163840')
out.append('.amdgcn_target "amdgcn-amd-amdhsa--gfx950"')
out.append('.text')
out.append(f'.globl {NAME}')
out.append('.p2align 8')
out.append(f'.type {NAME},@function')
out.append(f'{NAME}:')
lines = k.resolve(verbose=VERBOSE)
out += ['    ' + l if not l.endswith(':') else l for l in lines]
out.append('.section .rodata,"a"')
out.append('.p2align 6')
out.append(f'.amdhsa_kernel {NAME}')
out.append('  .amdhsa_next_free_vgpr 256')
out.append('  .amdhsa_next_free_sgpr 100')
out.append('  .amdhsa_accum_offset 256')
out.append('  .amdhsa_group_segment_fixed_size 0')
out.append('  .amdhsa_kernarg_size 96')
out.append('  .amdhsa_user_sgpr_count 2')
out.append('  .amdhsa_user_sgpr_kernarg_segment_ptr 1')
out.append('  .amdhsa_system_sgpr_workgroup_id_x 1')
out.append('.end_amdhsa_kernel')
path = 'pk_t.s' if TIMING else 'pk_d.s' if DBGT else 'pk.s'
open(path, 'w').write('\n'.join(out) + '\n')
print('autonops', k.autonops, 'lines', len(lines))
```

```python
import sys, os, struct
from asmlib import Kernel

WS_MODP  = 0x0000000; SZ_MODP = 4*3072*4
WS_MODT  = 0x0010000; SZ_MODT = 4*1024*8
WS_CSB   = 0x0080000; SZ_CSB = 8*2*2752*4
WS_FLG   = 0x0030000; SZ_FLG = 1792*128
WS_H     = 0x0100000; SZ_H = 2048*1024
WS_WQKV  = 0x0300000; T_STRIDE = 32*3072; SZ_WQKV = 16*T_STRIDE
WS_Q     = 0x0500000; SZ_Q = 2048*1024
WS_K     = 0x0700000
WS_VT    = 0x0900000
WS_O     = 0x0B00000
WS_WO    = 0x0D00000; SZ_WO = 512*1024
WS_X1    = 0x0E00000
WS_STATS = 0x1000000; SZ_STATS = 4*2048*8
WS_W13   = 0x1100000; U_STRIDE = 33*1024; SZ_W13 = 86*U_STRIDE
WS_HM    = 0x1400000; SZ_HM = 64*86*1024
WS_W2    = 0x1A00000; SZ_W2 = 16*86*1024
WS_TIME  = 0x4000000

F_G, F_H, F_WQ, F_WO, F_W2, F_P2, F_P3, F_P4, F_P5, F_W13 = 0, 192, 256, 304, 320, 384, 640, 896, 1152, 1408

S_X, S_WQKV, S_WO, S_BX, S_W1, S_W3, S_W2, S_C, S_WMOD, S_OUT, S_DBG, S_WS = [64 + 2*i for i in range(12)]
S_NONCE, S_W, S_ID = 88, 89, 90
S_FLG = 92
S_T0, S_T1 = 96, 97

LOG2E = 1.4426950408889634
def f2u(f): return struct.unpack('<I', struct.pack('<f', f))[0]
QSCALE = f2u(0.25*LOG2E)
MF = 'v_mfma_f32_32x32x16_bf16'
SC = ' sc1'
TIMING = '-t' in sys.argv
VERBOSE = '-v' in sys.argv
NPHASE = int(os.environ.get('NPHASE', '6'))

def srd(k, s, ptr, off, size):
    if off:
        k(f's_add_u32 s{s}, s{ptr}, {hex(off)}')
        k(f's_addc_u32 s{s+1}, s{ptr+1}, 0')
    else:
        k(f's_mov_b32 s{s}, s{ptr}')
        k(f's_mov_b32 s{s+1}, s{ptr+1}')
    k(f's_mov_b32 s{s+2}, {hex(size)}')
    k(f's_mov_b32 s{s+3}, 0x20000')

def vr(a, n=1):
    return f'v{a}' if n == 1 else f'v[{a}:{a+n-1}]'

_uid = [0]
def uid(p):
    _uid[0] += 1
    return f'{p}_{_uid[0]}'

class VM:
    def __init__(self, k): self.k = k; self.q = []
    def issue(self, tag, n=1):
        for _ in range(n): self.q.append(tag)
    def wait(self, tag):
        idx = max((i for i, t in enumerate(self.q) if t == tag), default=-1)
        if idx < 0: return
        n = len(self.q) - 1 - idx
        assert n <= 63, n
        self.k(f's_waitcnt vmcnt({n})')
        self.q = self.q[idx+1:]
    def waitall(self):
        self.k('s_waitcnt vmcnt(0)'); self.q = []


DBGT = '-d' in sys.argv
DSLOT = {255: {0: 1, 45: 2, 2: 3, 3: 4, 5: 5, 8: 6, 11: 7, 15: 8, 19: 9, 24: 10}, 0: {0: 11, 42: 12, 1: 13, 3: 14, 5: 15}}
def stamp(k, i):
    if DBGT:
        for wg, m in DSLOT.items():
            if i in m:
                L = uid('DS')
                k(f's_cmp_eq_u32 s{S_ID}, {wg}')
                k(f's_cbranch_scc0 {L}')
                k(f's_cmp_eq_u32 s{S_W}, 0')
                k(f's_cbranch_scc0 {L}')
                k(f's_memrealtime s[{S_T0}:{S_T1}]')
                k('s_waitcnt lgkmcnt(0)')
                k(f'v_mov_b32 v250, {4*m[i]}')
                k(f'v_mov_b32 v251, s{S_T0}')
                k(f'global_store_dword v250, v251, s[{S_DBG}:{S_DBG+1}]')
                k.label(L)
    if TIMING:
        k(f's_memtime s[{S_T0}:{S_T1}]')
        k('s_waitcnt lgkmcnt(0)')
        k(f'v_writelane_b32 v255, s{S_T0}, {i}')

def get_nonce(k):
    L = uid('NONCE')
    k(f's_cmp_lg_u32 s{S_NONCE}, 0')
    k(f's_cbranch_scc1 {L}_OK')
    k('s_waitcnt vmcnt(0)')
    k(f'v_readfirstlane_b32 s{S_NONCE}, v249')
    k('s_nop 1')
    k(f's_cmp_lg_u32 s{S_NONCE}, 0')
    k(f's_cbranch_scc1 {L}_OK')
    k('s_mov_b32 s98, 0')
    k.label(f'{L}_L')
    k(f'v_mov_b32 v250, 0')
    k(f'global_load_dword v251, v250, s[{S_DBG}:{S_DBG+1}] sc1')
    k('s_waitcnt vmcnt(0)')
    k(f'v_readfirstlane_b32 s{S_NONCE}, v251')
    k('s_add_u32 s98, s98, 1')
    k('s_cmp_gt_u32 s98, 0x20000')
    k(f's_cbranch_scc1 {L}_OK')
    k(f's_cmp_eq_u32 s{S_NONCE}, 0')
    k(f's_cbranch_scc1 {L}_L')
    k.label(f'{L}_OK')

def publish0(k, sidx):
    k('s_waitcnt vmcnt(0)')
    get_nonce(k)
    k(f's_lshl_b32 s98, s{sidx}, 7')
    k(f'v_mov_b32 v250, s98')
    k(f'v_mov_b32 v251, s{S_NONCE}')
    k('s_mov_b64 exec, 1')
    k(f'buffer_store_dword v251, v250, s[{S_FLG}:{S_FLG+3}], 0 offen sc1')
    k('s_mov_b64 exec, -1')

def wave_publish(k, sidx):
    L = uid('WPUB')
    k(f's_cmp_lg_u32 s{S_NONCE}, 0')
    k(f's_cbranch_scc1 {L}_OK')
    k('s_mov_b32 s98, 0')
    k.label(f'{L}_L')
    k(f'v_mov_b32 v250, 0')
    k(f'global_load_dword v251, v250, s[{S_DBG}:{S_DBG+1}] sc1')
    k('s_waitcnt vmcnt(0)')
    k(f'v_readfirstlane_b32 s{S_NONCE}, v251')
    k('s_add_u32 s98, s98, 1')
    k('s_cmp_gt_u32 s98, 0x20000')
    k(f's_cbranch_scc1 {L}_OK')
    k(f's_cmp_eq_u32 s{S_NONCE}, 0')
    k(f's_cbranch_scc1 {L}_L')
    k.label(f'{L}_OK')
    k(f's_lshl_b32 s98, s{sidx}, 7')
    k(f'v_mov_b32 v250, s98')
    k(f'v_mov_b32 v251, s{S_NONCE}')
    k('s_mov_b64 exec, 1')
    k(f'buffer_store_dword v251, v250, s[{S_FLG}:{S_FLG+3}], 0 offen sc1')
    k('s_mov_b64 exec, -1')

def publish(k, sidx):
    L = uid('PUB')
    k('s_waitcnt vmcnt(0) lgkmcnt(0)')
    k('s_barrier')
    k(f's_cmp_eq_u32 s{S_W}, 0')
    k(f's_cbranch_scc0 {L}')
    get_nonce(k)
    k(f's_lshl_b32 s98, s{sidx}, 7')
    k(f'v_mov_b32 v250, s98')
    k(f'v_mov_b32 v251, s{S_NONCE}')
    k('s_mov_b64 exec, 1')
    k(f'buffer_store_dword v251, v250, s[{S_FLG}:{S_FLG+3}], 0 offen sc1')
    k('s_mov_b64 exec, -1')
    k.label(L)

def wait_flags(k, idxcode, pre=None, share_nonce=None, idxcode2=None):
    L = uid('WAIT')
    k(f's_cmp_eq_u32 s{S_W}, 0')
    k(f's_cbranch_scc0 {L}_B')
    get_nonce(k)
    idxcode(k)
    k('v_lshlrev_b32 v250, 7, v250')
    if idxcode2:
        k('v_mov_b32 v248, v250')
        idxcode2(k)
        k('v_lshlrev_b32 v250, 7, v250')
    k('s_mov_b32 s98, 0')
    k.label(f'{L}_L')
    k(f'buffer_load_dword v251, v250, s[{S_FLG}:{S_FLG+3}], 0 offen sc1')
    if idxcode2: k(f'buffer_load_dword v247, v248, s[{S_FLG}:{S_FLG+3}], 0 offen sc1')
    k('s_add_u32 s98, s98, 1')
    k('s_cmp_gt_u32 s98, 0x20000')
    k(f's_cbranch_scc1 {L}_E')
    k('s_waitcnt vmcnt(0)')
    if idxcode2:
        k(f'v_xor_b32 v251, s{S_NONCE}, v251')
        k(f'v_xor_b32 v247, s{S_NONCE}, v247')
        k('v_or_b32 v251, v251, v247')
        k('v_cmp_ne_u32 vcc, 0, v251')
    else:
        k(f'v_cmp_ne_u32 vcc, s{S_NONCE}, v251')
    k('s_nop 1')
    k('s_cmp_lg_u64 vcc, 0')
    k(f's_cbranch_scc1 {L}_L')
    k.label(f'{L}_E')
    if share_nonce is not None:
        k(f'v_mov_b32 v250, {share_nonce}')
        k(f'v_mov_b32 v251, s{S_NONCE}')
        k('ds_write_b32 v250, v251')
        k('s_waitcnt lgkmcnt(0)')
    k.label(f'{L}_B')
    if pre: k(pre)
    k('s_barrier')
    if share_nonce is not None:
        k(f'v_mov_b32 v250, {share_nonce}')
        k('ds_read_b32 v251, v250')
        k('s_waitcnt lgkmcnt(0)')
        k(f'v_readfirstlane_b32 s{S_NONCE}, v251')

def piecewise(k, segs, lane='v2'):
    start = 0
    first = True
    for (cnt, fn) in segs:
        k(f'v_subrev_u32 v252, {start}, {lane}')
        k(f'v_min_u32 v252, {cnt-1}, v252') if start + cnt >= 64 or (cnt, fn) == segs[-1] else None
        fn(k, 'v252', 'v253')
        if first:
            k('v_mov_b32 v250, v253'); first = False
        else:
            k(f'v_cmp_le_u32 vcc, {start}, {lane}')
            k('v_cndmask_b32 v250, v250, v253, vcc')
        start += cnt
```

```python
from pk_common import *

def prologue(k):
    k('s_cmp_ge_u32 s2, 256')
    k('s_cbranch_scc1 PK_END')
    k('s_load_dwordx16 s[64:79], s[0:1], 0')
    k('s_load_dwordx8 s[80:87], s[0:1], 64')
    k('v_lshrrev_b32 v1, 6, v0')
    k('v_and_b32 v2, 63, v0')
    k(f'v_readfirstlane_b32 s{S_W}, v1')
    k(f's_mov_b32 s{S_ID}, s2')
    k('v_lshlrev_b32 v3, 4, v2')
    k(f's_mov_b32 s{S_NONCE}, 0')
    if TIMING: k('v_mov_b32 v255, 0')
    k('v_mov_b32 v250, 0')
    k('s_waitcnt lgkmcnt(0)')
    stamp(k, 0)
    k(f's_cmp_eq_u32 s{S_W}, 0')
    k('s_cbranch_scc0 PK_NONONCE')
    k(f's_cmp_eq_u32 s{S_ID}, 0')
    k('s_cbranch_scc0 PK_LDNONCE')
    k(f's_memrealtime s[{S_T0}:{S_T1}]')
    k('s_waitcnt lgkmcnt(0)')
    k(f's_or_b32 s{S_NONCE}, s{S_T0}, 1')
    k(f'v_mov_b32 v251, s{S_NONCE}')
    k('s_mov_b64 exec, 1')
    k(f'global_store_dword v250, v251, s[{S_DBG}:{S_DBG+1}] sc1')
    k('s_mov_b64 exec, -1')
    k('s_branch PK_NONONCE')
    k.label('PK_LDNONCE')
    k(f'global_load_dword v249, v250, s[{S_DBG}:{S_DBG+1}] sc1')
    k.label('PK_NONONCE')
    srd(k, S_FLG, S_WS, WS_FLG, SZ_FLG)

def gen_p1(k):
    k(f's_cmp_ge_u32 s{S_ID}, 192')
    k('s_cbranch_scc1 P1_H')
    k(f's_cmp_ge_u32 s{S_ID}, 64')
    k('s_cbranch_scc1 P1_NC')
    k(f's_lshr_b32 s20, s{S_ID}, 4')
    k(f's_and_b32 s21, s{S_ID}, 15')
    k('s_mov_b32 s37, 0')
    k('s_branch P1_GEMV')
    k.label('P1_NC')
    k(f's_sub_u32 s22, s{S_ID}, 64')
    k('s_lshr_b32 s20, s22, 5')
    k('s_and_b32 s21, s22, 31')
    k('s_add_u32 s21, s21, 16')
    k(f's_cmp_ge_u32 s{S_ID}, 112')
    k('s_cbranch_scc1 P1_NC2')
    k('s_mov_b32 s37, 1')
    k(f's_sub_u32 s25, s{S_ID}, 64')
    k('s_branch P1_T')
    k.label('P1_NC2')
    k(f's_cmp_lt_u32 s{S_ID}, 171')
    k('s_cselect_b32 s37, 2, 0')
    k(f's_sub_u32 s25, s{S_ID}, 112')
    k('s_branch P1_GEMV')

    k.label('P1_T')
    R = 32
    k('s_cmp_eq_u32 s37, 1')
    k('s_cbranch_scc0 P1_TPI0')
    k('s_lshr_b32 s33, s25, 4')
    k(f's_add_u32 s35, s25, {F_WQ}')
    k('s_and_b32 s25, s25, 15')
    k('s_lshl_b32 s26, s33, 10')
    k('s_mov_b32 s33, s26')
    srd(k, 16, S_WQKV, 0, 512*3072)
    srd(k, 28, S_WS, WS_WQKV, SZ_WQKV)
    k('s_movk_i32 s24, 3072')
    k('s_mov_b32 s27, 8')
    k(f's_mov_b32 s32, {T_STRIDE}')
    k('s_movk_i32 s34, 3072')
    k('s_branch P1_TLD')
    k.label('P1_TPI0')
    k('s_cmp_ge_u32 s25, 16')
    k('s_cbranch_scc1 P1_TW2')
    srd(k, 16, S_WO, 0, 512*1024)
    srd(k, 28, S_WS, WS_WO, SZ_WO)
    k(f's_mov_b32 s32, {32*1024}')
    k(f's_add_u32 s35, s25, {F_WO}')
    k('s_branch P1_TPI')
    k.label('P1_TW2')
    k('s_sub_u32 s25, s25, 16')
    srd(k, 16, S_W2, 0, 1376*1024)
    srd(k, 28, S_WS, WS_W2, SZ_W2)
    k(f's_mov_b32 s32, {86*1024}')
    k(f's_add_u32 s35, s25, {F_W2}')
    k.label('P1_TPI')
    k('s_movk_i32 s24, 1024')
    k('s_mov_b32 s26, 0')
    k('s_mov_b32 s27, 4')
    k('s_mov_b32 s33, 0')
    k('s_movk_i32 s34, 1024')
    k.label('P1_TLD')
    k('s_lshl_b32 s25, s25, 1')
    k(f's_lshr_b32 s36, s{S_W}, 2')
    k('s_add_u32 s25, s25, s36')
    k('v_and_b32 v8, 31, v2')
    k('v_lshrrev_b32 v9, 5, v2')
    k('s_mul_i32 s38, s27, s24')
    k('v_mul_lo_u32 v10, v9, s38')
    k('v_lshl_add_u32 v10, v8, 3, v10')
    k(f's_and_b32 s36, s{S_W}, 3')
    k('s_lshl_b32 s39, s36, 8')
    k('s_add_u32 s39, s39, s26')
    k('v_add_u32 v10, s39, v10')
    k('s_lshl_b32 s38, s25, 4')
    k('s_mul_i32 s38, s38, s24')
    k('s_sub_u32 s39, 8, s27')
    k('s_mul_i32 s39, s39, s24')
    for j in range(8):
        k(f'buffer_load_dwordx2 {vr(R+2*j,2)}, v10, s[16:19], s38 offen')
        if j < 7: k('s_add_u32 s38, s38, s24')
        if j == 3: k('s_add_u32 s38, s38, s39')
    k('v_lshrrev_b32 v11, 3, v8')
    k('v_lshlrev_b32 v11, 10, v11')
    k('v_and_b32 v12, 7, v8')
    k('v_lshl_add_u32 v11, v12, 6, v11')
    k('v_lshl_add_u32 v11, v9, 9, v11')
    k(f's_lshl_b32 s38, s{S_W}, 12')
    k('s_add_u32 s38, s38, 32768')
    k('v_add_u32 v11, s38, v11')
    k('v_bfe_u32 v13, v8, 2, 1')
    k('v_lshl_or_b32 v13, v9, 1, v13')
    k('v_lshlrev_b32 v13, 4, v13')
    k('v_bfe_u32 v14, v2, 4, 1')
    k('v_lshrrev_b32 v15, 5, v2')
    k('v_lshl_or_b32 v14, v15, 1, v14')
    k('v_lshlrev_b32 v14, 4, v14')
    k('v_xor_b32 v12, v14, v3')
    k('v_add_u32 v12, s38, v12')
    k('s_mul_i32 s38, s25, s34')
    k('s_add_u32 s33, s33, s38')
    k('s_lshl_b32 s38, s36, 2')
    k('s_mul_i32 s38, s38, s32')
    k('s_add_u32 s33, s33, s38')
    k('s_mov_b32 s38, 0x05040100')
    k('s_mov_b32 s39, 0x07060302')
    k('s_waitcnt vmcnt(0)')
    OUT = 48
    for c in range(4):
        for d in range(4):
            k(f'v_perm_b32 v{OUT+4*c+d}, v{R+2*(2*d+1)+(c>>1)}, v{R+2*(2*d)+(c>>1)}, s{38+(c&1)}')
    for c in range(4):
        k(f'v_xor_b32 v14, {16*c}, v13')
        k('v_add_u32 v14, v14, v11')
        k(f'ds_write_b128 v14, {vr(OUT+4*c,4)}')
    k('s_waitcnt lgkmcnt(0)')
    for f in range(4):
        k(f'ds_read_b128 {vr(OUT+4*f,4)}, v12 offset:{1024*f}')
    for f in range(4):
        k(f's_waitcnt lgkmcnt({3-f})')
        k(f'buffer_store_dwordx4 {vr(OUT+4*f,4)}, v3, s[28:31], s33 offen{SC}')
        if f < 3: k('s_add_u32 s33, s33, s32')
    publish(k, 35)
    stamp(k, 46)
    k('s_cmp_eq_u32 s37, 1')
    k('s_cbranch_scc0 P1_DONE')
    k('s_mov_b32 s37, 0')

    k.label('P1_GEMV')
    srd(k, 8, S_WMOD, 0, 512*6144)
    srd(k, 12, S_C, 0, 1024)
    k('v_lshrrev_b32 v4, 3, v2')
    k('v_and_b32 v5, 7, v2')
    k('v_mul_u32_u24 v6, 6144, v4')
    k('v_lshl_add_u32 v6, v5, 4, v6')
    k('v_lshlrev_b32 v7, 1, v4')
    k('s_lshl_b32 s22, s20, 7')
    k(f's_lshl_b32 s23, s{S_W}, 4')
    k('s_add_u32 s22, s22, s23')
    k('s_lshl_b32 s23, s22, 1')
    k('buffer_load_ushort v16, v7, s[12:15], s23 offen')
    k('buffer_load_ushort v17, v7, s[12:15], s23 offen offset:16')
    k('s_mul_i32 s22, s22, 6144')
    k('s_lshl_b32 s23, s21, 7')
    k('s_add_u32 s22, s22, s23')
    k('buffer_load_dwordx4 v[20:23], v6, s[8:11], s22 offen')
    k(f's_add_u32 s22, s22, {8*6144}')
    k('buffer_load_dwordx4 v[24:27], v6, s[8:11], s22 offen')
    stamp(k, 40)
    k('v_lshrrev_b32 v56, 4, v0')
    k('v_lshlrev_b32 v56, 8, v56')
    k('v_lshl_add_u32 v56, v5, 5, v56')
    k('v_lshlrev_b32 v57, 2, v2')
    k('s_waitcnt vmcnt(2)')
    for m in range(2):
        k(f'v_lshlrev_b32 v{16+m}, 16, v{16+m}')
        k(f'v_mul_f32 v{18+m}, {hex(f2u(-LOG2E))}, v{16+m}')
    for m in range(2): k(f'v_exp_f32 v{18+m}, v{18+m}')
    for m in range(2): k(f'v_add_f32 v{18+m}, 1.0, v{18+m}')
    for m in range(2): k(f'v_rcp_f32 v{18+m}, v{18+m}')
    for m in range(2): k(f'v_mul_f32 v{16+m}, v{16+m}, v{18+m}')
    for m in range(2): k(f'v_cvt_pk_bf16_f32 v{16+m}, v{16+m}, v{16+m}')
    for m in range(2): k(f'v_lshlrev_b32 v{16+m}, 16, v{16+m}')
    k('s_waitcnt vmcnt(0)')
    stamp(k, 42)
    A = 48
    for d in range(4):
        k(f'v_lshlrev_b32 v{58+2*d}, 16, v{20+d}')
        k(f'v_and_b32 v{58+2*d+1}, 0xffff0000, v{20+d}')
    for e in range(8): k(f'v_mul_f32 v{A+e}, v{58+e}, v16')
    for d in range(4):
        k(f'v_lshlrev_b32 v{58+2*d}, 16, v{24+d}')
        k(f'v_and_b32 v{58+2*d+1}, 0xffff0000, v{24+d}')
    for e in range(8): k(f'v_fmac_f32 v{A+e}, v{58+e}, v17')
    for e in range(8):
        k(f'v_add_f32_dpp v{A+e}, v{A+e}, v{A+e} row_ror:8 row_mask:0xf bank_mask:0xf')
    k(f'ds_write_b128 v56, {vr(A,4)}')
    k(f'ds_write_b128 v56, {vr(A+4,4)} offset:16')
    k('s_waitcnt lgkmcnt(0)')
    k('s_barrier')
    k(f's_cmp_eq_u32 s{S_W}, 0')
    k('s_cbranch_scc0 P1_GPUB')
    for p in range(32): k(f'ds_read_b32 v{64+p}, v57 offset:{256*p}')
    get_nonce(k)
    k('s_waitcnt lgkmcnt(0)')
    for st in (16, 8, 4, 2, 1):
        for p in range(st): k(f'v_add_f32 v{64+p}, v{64+p}, v{64+p+st}')
    k('s_cmp_lt_u32 s21, 16')
    k('s_cbranch_scc0 P1_GPLAIN')
    srd(k, 8, S_WS, WS_MODT, SZ_MODT)
    k(f'v_mov_b32 v65, s{S_NONCE}')
    k('s_lshl_b32 s22, s20, 13')
    k('s_lshl_b32 s23, s21, 9')
    k('s_add_u32 s22, s22, s23')
    k('v_lshlrev_b32 v57, 3, v2')
    k(f'buffer_store_dwordx2 v[64:65], v57, s[8:11], s22 offen{SC}')
    k('s_branch P1_GPUB')
    k.label('P1_GPLAIN')
    srd(k, 8, S_WS, WS_MODP, SZ_MODP)
    k(f's_mul_i32 s22, s20, {3072*4}')
    k('s_lshl_b32 s23, s21, 8')
    k('s_add_u32 s22, s22, s23')
    k(f'buffer_store_dword v64, v57, s[8:11], s22 offen{SC}')
    k('s_mul_i32 s22, s20, 48')
    k('s_add_u32 s22, s22, s21')
    k(f's_add_u32 s22, s22, {F_G}')
    publish0(k, 22)
    k.label('P1_GPUB')
    stamp(k, 1)
    k('s_cmp_eq_u32 s37, 2')
    k('s_cbranch_scc1 P1_T')
    k('s_branch P1_DONE')

    k.label('P1_H')
    k(f's_sub_u32 s20, s{S_ID}, 192')
    srd(k, 8, S_X, 0, 2048*1024)
    k('v_and_b32 v4, 31, v2')
    k('v_lshrrev_b32 v5, 5, v2')
    k('v_lshlrev_b32 v6, 10, v4')
    k('v_lshl_add_u32 v6, v5, 4, v6')
    k(f's_lshl_b32 s21, s{S_W}, 7')
    k('s_lshl_b32 s22, s20, 15')
    k('s_add_u32 s21, s21, s22')
    X = 8
    for s in range(4):
        k(f'buffer_load_dwordx4 {vr(X+4*s,4)}, v6, s[8:11], s21 offen offset:{32*s}')
    F = 32
    for i in range(4): k(f'v_mov_b32 v{24+i}, 0')
    k('v_lshlrev_b32 v28, 3, v0')
    k('v_lshlrev_b32 v29, 3, v4')
    for s in range(4):
        k(f's_waitcnt vmcnt({3-s})')
        for d in range(4):
            k(f'v_lshlrev_b32 v{F+8*s+2*d}, 16, v{X+4*s+d}')
            k(f'v_and_b32 v{F+8*s+2*d+1}, 0xffff0000, v{X+4*s+d}')
        for d in range(4):
            k(f'v_add_f32 v24, v24, v{F+8*s+2*d}')
            k(f'v_add_f32 v25, v25, v{F+8*s+2*d+1}')
            k(f'v_fmac_f32 v26, v{F+8*s+2*d}, v{F+8*s+2*d}')
            k(f'v_fmac_f32 v27, v{F+8*s+2*d+1}, v{F+8*s+2*d+1}')
    k('v_add_f32 v24, v24, v25')
    k('v_add_f32 v25, v26, v27')
    k('ds_write_b64 v28, v[24:25]')
    k('s_waitcnt lgkmcnt(0)')
    k('s_barrier')
    for i in range(16): k(f'ds_read_b64 {vr(64+2*i,2)}, v29 offset:{256*i}')
    k('v_mov_b32 v30, 0')
    k(f'global_load_dword v31, v30, s[{S_DBG}:{S_DBG+1}] sc1')
    k('s_waitcnt lgkmcnt(0)')
    for st in (8, 4, 2, 1):
        for i in range(st):
            k(f'v_add_f32 v{64+2*i}, v{64+2*i}, v{64+2*(i+st)}')
            k(f'v_add_f32 v{65+2*i}, v{65+2*i}, v{65+2*(i+st)}')
    k(f'v_mul_f32 v24, {hex(f2u(1/512))}, v64')
    k(f'v_mul_f32 v25, {hex(f2u(1/512))}, v65')
    k('v_fma_f32 v25, -v24, v24, v25')
    k('v_max_f32 v25, 0, v25')
    k(f'v_add_f32 v25, {hex(f2u(1e-5))}, v25')
    k('v_rsq_f32 v25, v25')
    k('s_nop 0')
    k('v_mul_f32 v24, v24, v25')
    k('v_sub_f32 v24, 0, v24')
    for i in range(32): k(f'v_fma_f32 v{F+i}, v{F+i}, v25, v24')
    stamp(k, 45)
    srd(k, 8, S_WS, WS_MODT, SZ_MODT)
    k('s_mov_b32 s23, 0')
    k.label('P1_HPOLL')
    k('s_waitcnt vmcnt(0)')
    k('v_readfirstlane_b32 s22, v31')
    for vec in range(2):
        for rq in range(4):
            k(f's_mov_b32 s24, {vec*4096 + rq*8192}')
            k(f'buffer_load_dwordx2 {vr(64+8*vec+2*rq,2)}, v28, s[8:11], s24 offen{SC}')
    k(f'global_load_dword v31, v30, s[{S_DBG}:{S_DBG+1}] sc1')
    k('s_add_u32 s23, s23, 1')
    k('s_cmp_gt_u32 s23, 0x20000')
    k('s_cbranch_scc1 P1_HGOT')
    k('s_cmp_eq_u32 s22, 0')
    k('s_cbranch_scc1 P1_HPOLL')
    k('s_waitcnt vmcnt(1)')
    k('v_xor_b32 v26, s22, v65')
    for i in range(1, 8): k(f'v_xor_b32 v{80+i}, s22, v{65+2*i}')
    k('v_or3_b32 v26, v26, v81, v82')
    k('v_or3_b32 v26, v26, v83, v84')
    k('v_or3_b32 v26, v26, v85, v86')
    k('v_or_b32 v26, v26, v87')
    k('v_cmp_ne_u32 vcc, 0, v26')
    k('s_nop 1')
    k('s_cmp_lg_u64 vcc, 0')
    k('s_cbranch_scc1 P1_HPOLL')
    k.label('P1_HGOT')
    k(f's_mov_b32 s{S_NONCE}, s22')
    stamp(k, 2)
    k('s_waitcnt vmcnt(0)')
    for vec in range(2):
        b = 64 + 8*vec
        k(f'v_add_f32 v{b}, v{b}, v{b+2}')
        k(f'v_add_f32 v{b+4}, v{b+4}, v{b+6}')
    for vec in range(2): k(f'v_add_f32 v{64+8*vec}, v{64+8*vec}, v{64+8*vec+4}')
    k('v_cvt_pk_bf16_f32 v64, v64, v72')
    k('v_lshlrev_b32 v65, 16, v64')
    k('v_and_b32 v66, 0xffff0000, v64')
    k('v_add_f32 v66, 1.0, v66')
    k('v_cvt_pk_bf16_f32 v66, v66, v66')
    k('v_lshlrev_b32 v66, 16, v66')
    k('v_lshlrev_b32 v28, 2, v0')
    k('ds_write_b32 v28, v65 offset:4096')
    k('ds_write_b32 v28, v66 offset:6144')
    k(f's_lshl_b32 s22, s{S_W}, 8')
    k('v_lshlrev_b32 v28, 5, v5')
    k('v_add_u32 v28, s22, v28')
    k('s_waitcnt lgkmcnt(0)')
    k('s_barrier')
    SA, CA = 64, 96
    for s in range(4):
        k(f'ds_read_b128 {vr(SA+8*s,4)}, v28 offset:{4096+64*s}')
        k(f'ds_read_b128 {vr(SA+8*s+4,4)}, v28 offset:{4096+64*s+16}')
        k(f'ds_read_b128 {vr(CA+8*s,4)}, v28 offset:{6144+64*s}')
        k(f'ds_read_b128 {vr(CA+8*s+4,4)}, v28 offset:{6144+64*s+16}')
    srd(k, 8, S_WS, WS_H, SZ_H)
    k(f's_lshl_b32 s21, s{S_W}, 12')
    k('s_lshl_b32 s22, s20, 15')
    k('s_add_u32 s21, s21, s22')
    for s in range(4):
        k(f's_waitcnt lgkmcnt({12-4*s})')
        for i in range(8*s, 8*s+8): k(f'v_fma_f32 v{F+i}, v{F+i}, v{CA+i}, v{SA+i}')
        for i in range(4*s, 4*s+4): k(f'v_cvt_pk_bf16_f32 v{X+i}, v{F+2*i}, v{F+2*i+1}')
        k(f'buffer_store_dwordx4 {vr(X+4*s,4)}, v3, s[8:11], s21 offen offset:{1024*s}{SC}')
    k(f's_add_u32 s22, s20, {F_H}')
    publish(k, 22)
    k.label('P1_DONE')
    stamp(k, 3)


def gen_uprime_loads(k):
    k(f's_cmp_ge_u32 s{S_ID}, 88')
    k('s_cbranch_scc1 UP_LDEND')
    k(f's_lshl_b32 s40, s{S_ID}, 2')
    k(f's_add_u32 s40, s40, s{S_W}')
    k('s_sub_u32 s40, s40, 4')
    k('s_and_b32 s43, s40, 1')
    k('s_bfe_u32 s44, s40, 0x30001')
    k('s_lshr_b32 s41, s40, 4')
    R = 64
    k('s_cmp_eq_u32 s43, 0')
    k(f's_cselect_b32 s16, s{S_W1}, s{S_W3}')
    k(f's_cselect_b32 s17, s{S_W1+1}, s{S_W3+1}')
    k(f's_mov_b32 s18, {512*2752}')
    k('s_mov_b32 s19, 0x20000')
    k('v_and_b32 v10, 7, v2')
    k('v_bfe_u32 v11, v2, 3, 1')
    k('v_lshrrev_b32 v12, 4, v2')
    k('v_lshlrev_b32 v13, 4, v12')
    k('v_lshl_add_u32 v13, v11, 2, v13')
    k('v_mul_u32_u24 v14, 2752, v13')
    k('v_lshl_add_u32 v14, v10, 4, v14')
    k('s_lshl_b32 s45, s44, 6')
    k('s_mul_i32 s46, s45, 2752')
    k('s_lshl_b32 s47, s41, 7')
    k('s_add_u32 s46, s46, s47')
    for j in range(8):
        k(f'buffer_load_dwordx4 {vr(R+4*j,4)}, v14, s[16:19], s46 offen')
        if j < 7: k(f's_add_u32 s46, s46, {2752*(5 if j == 3 else 1)}')
    k.label('UP_LDEND')

def gen_uprime(k, LDSB):
    R = 64
    k(f's_cmp_ge_u32 s{S_ID}, 88')
    k('s_cbranch_scc1 UP_END')
    k('v_mov_b32 v20, 0')
    k('v_lshrrev_b32 v21, 4, v2')
    k('v_mul_u32_u24 v21, 48, v21')
    k('v_and_b32 v22, 15, v2')
    k(f'v_add3_u32 v21, v21, v22, {F_G+24}')
    k('v_lshlrev_b32 v21, 7, v21')
    k('s_mov_b32 s48, 0')
    k.label('UP_POLL')
    k(f'buffer_load_dword v23, v21, s[{S_FLG}:{S_FLG+3}], 0 offen sc1')
    k('s_add_u32 s48, s48, 1')
    k('s_cmp_gt_u32 s48, 0x20000')
    k('s_cbranch_scc1 UP_GO')
    k('s_waitcnt vmcnt(0)')
    k(f'v_cmp_ne_u32 vcc, s{S_NONCE}, v23')
    k('s_nop 1')
    k('s_cmp_lg_u64 vcc, 0')
    k('s_cbranch_scc1 UP_POLL')
    k.label('UP_GO')
    srd(k, 8, S_WS, WS_MODP, SZ_MODP)
    srd(k, 28, S_WS, WS_W13, SZ_W13)
    k('v_lshlrev_b32 v15, 2, v13')
    k('s_lshl_b32 s46, s45, 2')
    PB = 96
    for vec, idx in ((0, 3), (1, 4)):
        for rq in range(4):
            k(f's_add_u32 s47, s46, {idx*2048 + rq*3072*4}')
            k(f'buffer_load_dwordx4 {vr(PB+32*vec+8*rq,4)}, v15, s[8:11], s47 offen{SC}')
            k(f'buffer_load_dwordx4 {vr(PB+32*vec+8*rq+4,4)}, v15, s[8:11], s47 offen offset:32{SC}')
    k('v_lshrrev_b32 v16, 1, v10')
    k('v_and_b32 v17, 1, v16')
    k('v_lshl_or_b32 v17, v17, 2, v12')
    k('v_lshlrev_b32 v17, 4, v17')
    k('v_lshlrev_b32 v16, 11, v16')
    k('v_lshl_add_u32 v16, v12, 9, v16')
    k('v_lshl_add_u32 v16, v11, 8, v16')
    k('v_and_b32 v18, 1, v10')
    k('v_lshl_add_u32 v16, v18, 7, v16')
    k(f's_sub_u32 s46, s{S_W}, 4')
    k('s_lshl_b32 s46, s46, 13')
    k(f's_add_u32 s46, s46, {LDSB}')
    k('v_add_u32 v16, s46, v16')
    k('s_waitcnt vmcnt(0)')
    SB, CB = 32, 40
    for vec, dst in ((0, SB), (1, CB)):
        b = PB + 32*vec
        for j in range(8):
            k(f'v_add_f32 v{b+j}, v{b+j}, v{b+8+j}')
            k(f'v_add_f32 v{b+16+j}, v{b+16+j}, v{b+24+j}')
        for j in range(8): k(f'v_add_f32 v{b+j}, v{b+j}, v{b+16+j}')
        for j in range(8): k(f'v_cvt_pk_bf16_f32 v{b+j}, v{b+j}, v{b+j}')
        for j in range(8): k(f'v_lshlrev_b32 v{dst+j}, 16, v{b+j}')
    for j in range(8): k(f'v_add_f32 v{CB+j}, 1.0, v{CB+j}')
    for j in range(8): k(f'v_cvt_pk_bf16_f32 v{CB+j}, v{CB+j}, v{CB+j}')
    for j in range(8): k(f'v_lshlrev_b32 v{CB+j}, 16, v{CB+j}')
    F = 96
    for j in range(8):
        for d in range(4):
            k(f'v_lshlrev_b32 v{F+8*j+2*d}, 16, v{R+4*j+d}')
            k(f'v_and_b32 v{F+8*j+2*d+1}, 0xffff0000, v{R+4*j+d}')
    BP, CS = 48, 56
    for c in range(8): k(f'v_mul_f32 v{BP+c}, v{F+c}, v{SB}')
    for j in range(1, 8):
        for c in range(8): k(f'v_fmac_f32 v{BP+c}, v{F+8*j+c}, v{SB+j}')
    for j in range(8):
        for c in range(8): k(f'v_mul_f32 v{F+8*j+c}, v{F+8*j+c}, v{CB+j}')
    OUT = 160
    for c in range(8):
        for d in range(4): k(f'v_cvt_pk_bf16_f32 v{OUT+4*c+d}, v{F+16*d+c}, v{F+16*d+8+c}')
    for c in range(8):
        k(f'v_xor_b32 v18, {16*c}, v17')
        k('v_add_u32 v18, v18, v16')
        k(f'ds_write_b128 v18, {vr(OUT+4*c,4)}')
    k('s_mov_b32 s47, 0x3f803f80')
    for c in range(8):
        k(f'v_dot2_f32_bf16 v{CS+c}, v{OUT+4*c}, s47, 0')
    for d in range(1, 4):
        for c in range(8):
            k(f'v_dot2_f32_bf16 v{CS+c}, v{OUT+4*c+d}, s47, v{CS+c}')
    k('v_lshrrev_b32 v18, 5, v2')
    k('v_and_b32 v19, 15, v2')
    k('v_bfe_u32 v24, v2, 4, 1')
    k('v_lshlrev_b32 v24, 8, v24')
    k('v_lshl_add_u32 v24, v18, 9, v24')
    k('v_add_u32 v24, s46, v24')
    k('s_waitcnt lgkmcnt(0)')
    for i in range(8):
        ul, s2 = i >> 1, 2*(i & 1)
        k(f'v_or_b32 v25, {s2 | ((ul & 1) << 2)}, v18')
        k('v_xor_b32 v25, v25, v19')
        k('v_lshl_add_u32 v25, v25, 4, v24')
        k(f'ds_read_b128 {vr(F+4*i,4)}, v25 offset:{ul*2048 + s2*512}')
    for e in range(16):
        k(f'v_add_f32_dpp v{BP+e}, v{BP+e}, v{BP+e} row_ror:8 row_mask:0xf bank_mask:0xf')
    for op in ('v_permlane16_swap_b32', 'v_permlane32_swap_b32'):
        for e in range(16): k(f'v_mov_b32 v{OUT+e}, v{BP+e}')
        for e in range(16): k(f'{op} v{BP+e}, v{OUT+e}')
        for e in range(16): k(f'v_add_f32 v{BP+e}, v{BP+e}, v{OUT+e}')
    k('v_lshlrev_b32 v26, 10, v18')
    k('v_bfe_u32 v27, v2, 4, 1')
    k('v_lshl_add_u32 v26, v27, 9, v26')
    k('v_lshl_add_u32 v26, v19, 4, v26')
    k(f's_mul_i32 s46, s41, {4*U_STRIDE}')
    k('s_lshl_b32 s47, s44, 12')
    k('s_add_u32 s46, s46, s47')
    k('s_lshl_b32 s47, s43, 8')
    k('s_add_u32 s46, s46, s47')
    k('s_waitcnt lgkmcnt(0)')
    for i in range(8):
        ul, s2 = i >> 1, 2*(i & 1)
        k(f's_add_u32 s47, s46, {ul*U_STRIDE}')
        k(f'buffer_store_dwordx4 {vr(F+4*i,4)}, v26, s[28:31], s47 offen offset:{s2*1024}{SC}')
    k(f's_sub_u32 s46, s{S_W}, 4')
    k('s_lshl_b32 s46, s46, 13')
    k(f's_add_u32 s46, s46, {LDSB}')
    k('v_lshlrev_b32 v18, 6, v10')
    k('v_add_u32 v18, s46, v18')
    for q in range(4): k(f'ds_write_b128 v18, {vr(BP+4*q,4)} offset:{16*q}')
    k('v_lshrrev_b32 v19, 3, v2')
    k('v_lshlrev_b32 v19, 6, v19')
    k('v_and_b32 v24, 7, v2')
    k('v_lshl_add_u32 v19, v24, 2, v19')
    k('v_add_u32 v19, s46, v19')
    k('s_waitcnt lgkmcnt(0)')
    k('ds_read_b32 v24, v19')
    k('ds_read_b32 v25, v19 offset:32')
    srd(k, 8, S_WS, WS_CSB, SZ_CSB)
    k('s_lshl_b32 s47, s41, 6')
    k('v_add_u32 v19, s47, v2')
    k('v_cmp_gt_u32 vcc, 1376, v19')
    k('s_mul_i32 s47, s43, 1376')
    k('v_add_u32 v19, s47, v19')
    k('v_lshlrev_b32 v19, 2, v19')
    k('v_mov_b32 v20, 0x40000000')
    k('v_cndmask_b32 v19, v20, v19, vcc')
    k(f's_mul_i32 s47, s44, {2*2752*4}')
    k('s_waitcnt lgkmcnt(0)')
    k(f'buffer_store_dword v25, v19, s[8:11], s47 offen{SC}')
    k(f's_add_u32 s47, s47, {2752*4}')
    k(f'buffer_store_dword v24, v19, s[8:11], s47 offen{SC}')
    k('s_waitcnt vmcnt(0)')
    k(f's_add_u32 s40, s40, {F_W13}')
    k('s_lshl_b32 s40, s40, 7')
    k('v_mov_b32 v20, s40')
    k(f'v_mov_b32 v21, s{S_NONCE}')
    k('s_mov_b64 exec, 1')
    k(f'buffer_store_dword v21, v20, s[{S_FLG}:{S_FLG+3}], 0 offen sc1')
    k('s_mov_b64 exec, -1')
    k.label('UP_END')
```

```python
from pk_common import *
from pk_p1 import gen_uprime, gen_uprime_loads

LDS_CNT = 163840 - 16
def gen_p2(k):
    k(f's_and_b32 s6, s{S_ID}, 7')
    k(f's_lshr_b32 s7, s{S_ID}, 3')
    k('s_lshr_b32 s20, s6, 1')
    k('s_lshl_b32 s20, s20, 2')
    k('s_and_b32 s21, s7, 3')
    k('s_add_u32 s20, s20, s21')
    k('s_and_b32 s21, s6, 1')
    k('s_lshl_b32 s21, s21, 3')
    k('s_lshr_b32 s22, s7, 2')
    k('s_add_u32 s21, s21, s22')
    srd(k, 8, S_WS, WS_H, SZ_H)
    srd(k, 12, S_WS, WS_WQKV, SZ_WQKV)
    srd(k, 28, S_WS, WS_Q, 3*SZ_Q)
    k(f's_cmp_ge_u32 s{S_W}, 4')
    k('s_cbranch_scc0 P2_NOUL')
    gen_uprime_loads(k)
    k.label('P2_NOUL')
    k(f'v_mov_b32 v4, {LDS_CNT}')
    k('v_mov_b32 v5, 0')
    k('ds_write_b32 v4, v5')
    def idx_wq(k):
        k('v_min_u32 v250, 47, v2')
        k(f'v_add_u32 v250, {F_WQ}, v250')
    wait_flags(k, idx_wq, pre='s_waitcnt lgkmcnt(0)', share_nonce=LDS_CNT+4)
    k(f's_mul_i32 s25, s21, {T_STRIDE}')
    k(f's_mul_i32 s26, s{S_W}, 12288')
    k('s_add_u32 s25, s25, s26')
    for g in range(3):
        k(f's_add_u32 m0, s26, {4096*g}')
        k(f's_add_u32 s27, s25, {4096*g}')
        for i in range(4):
            k(f'buffer_load_dwordx4 v3, s[12:15], s27 offen offset:{1024*i}{SC} lds')
    def idx_h(k):
        k('s_lshl_b32 s98, s20, 2')
        k(f's_add_u32 s98, s98, {F_H}')
        k('v_add_u32 v250, s98, v2')
        k('v_subrev_u32 v252, 4, v2')
        k('v_min_u32 v252, 42, v252')
        k(f'v_add_u32 v252, {F_W2}, v252')
        k('v_cmp_le_u32 vcc, 4, v2')
        k('s_nop 1')
        k('v_cndmask_b32 v250, v250, v252, vcc')
    stamp(k, 4)
    wait_flags(k, idx_h, pre='s_waitcnt vmcnt(0)')
    stamp(k, 5)
    k(f's_cmp_ge_u32 s{S_W}, 4')
    k('s_cbranch_scc1 P2_HELP')
    k('s_lshl_b32 s20, s20, 2')
    k(f's_add_u32 s23, s20, s{S_W}')
    k('s_lshl_b32 s24, s23, 15')
    vm = VM(k)
    XR, WR, ACC = 64, 16, 192
    def ldx(s):
        k(f'buffer_load_dwordx4 {vr(XR+4*s,4)}, v3, s[8:11], s24 offen offset:{1024*(s&3)}{SC}')
        if (s & 3) == 3: k('s_add_u32 s24, s24, 4096')
        vm.issue(('x', s))
    PF = 10
    for s in range(PF): ldx(s)
    k('v_add_u32 v4, 0x10000, v3')
    def rd(s):
        st = s & 1
        for u in range(3):
            o = (s*3+u)*1024
            k(f'ds_read_b128 {vr(WR+12*st+4*u,4)}, v3 offset:{o}' if o < 65536 else
              f'ds_read_b128 {vr(WR+12*st+4*u,4)}, v4 offset:{o-65536}')
    rd(0)
    NST = 32
    for s in range(NST):
        st = s & 1
        if s + 1 < NST:
            rd(s+1)
        if s + PF < NST: ldx(s + PF)
        vm.wait(('x', s))
        k(f's_waitcnt lgkmcnt({3 if s+1 < NST else 0})')
        xf = vr(XR+4*s, 4)
        for u in range(3):
            acc = vr(ACC+16*u, 16); w = vr(WR+12*st+4*u, 4)
            cin = acc if s > 0 else '0'
            if u < 2: k(f'{MF} {acc}, {w}, {xf}, {cin}')
            else:     k(f'{MF} {acc}, {xf}, {w}, {cin}')
    stamp(k, 6)
    k('s_lshl_b32 s24, s21, 17')
    k('s_lshl_b32 s25, s23, 10')
    k('s_add_u32 s24, s24, s25')
    k('s_add_u32 s25, s24, 0x10000')
    k(f's_add_u32 s26, s24, {SZ_Q}')
    k(f's_add_u32 s27, s25, {SZ_Q}')
    k(f's_add_u32 s22, s24, {2*SZ_Q}')
    k('v_bfe_u32 v5, v2, 4, 1')
    k('v_lshlrev_b32 v5, 16, v5')
    k('v_lshrrev_b32 v6, 5, v2')
    k('v_lshl_add_u32 v5, v6, 8, v5')
    k('v_and_b32 v6, 15, v2')
    k('v_lshl_add_u32 v5, v6, 4, v5')
    k(f's_mov_b32 s98, {hex(QSCALE)}')
    for r in range(16): k(f'v_mul_f32 v{ACC+r}, s98, v{ACC+r}')
    for u in range(3):
        for d in range(8):
            k(f'v_cvt_pk_bf16_f32 v{XR+8*u+d}, v{ACC+16*u+2*d}, v{ACC+16*u+2*d+1}')
    k(f'buffer_store_dwordx4 {vr(XR,4)}, v3, s[28:31], s24 offen{SC}')
    k(f'buffer_store_dwordx4 {vr(XR+4,4)}, v3, s[28:31], s25 offen{SC}')
    k(f'buffer_store_dwordx4 {vr(XR+8,4)}, v3, s[28:31], s26 offen{SC}')
    k(f'buffer_store_dwordx4 {vr(XR+12,4)}, v3, s[28:31], s27 offen{SC}')
    k(f'buffer_store_dwordx4 {vr(XR+16,4)}, v5, s[28:31], s22 offen{SC}')
    k(f'buffer_store_dwordx4 {vr(XR+20,4)}, v5, s[28:31], s22 offen offset:512{SC}')
    k('s_waitcnt vmcnt(0)')
    k(f'v_mov_b32 v4, {LDS_CNT}')
    k('v_mov_b32 v5, 1')
    k('s_mov_b64 exec, 1')
    k('ds_add_rtn_u32 v6, v4, v5')
    k('s_mov_b64 exec, -1')
    k('s_waitcnt lgkmcnt(0)')
    k('v_readfirstlane_b32 s98, v6')
    k('s_cmp_eq_u32 s98, 3')
    k('s_cbranch_scc0 P2_PUB')
    k('s_lshr_b32 s20, s20, 2')
    k('s_lshl_b32 s20, s20, 4')
    k('s_add_u32 s22, s20, s21')
    k(f's_add_u32 s22, s22, {F_P2}')
    wave_publish(k, 22)
    k('s_branch P2_PUB')
    k.label('P2_HELP')
    gen_uprime(k, 98304)
    k.label('P2_PUB')
    stamp(k, 7)

LDS_ONES = 131072
LDS_CMB  = 131072 + 5120
def gen_p3(k):
    L = 'P3'
    k(f's_and_b32 s6, s{S_ID}, 7')
    k(f's_lshr_b32 s7, s{S_ID}, 3')
    k('s_lshl_b32 s20, s6, 2')
    k('s_lshr_b32 s21, s7, 3')
    k('s_add_u32 s20, s20, s21')
    k('s_and_b32 s36, s7, 7')
    k('s_lshl_b32 s21, s36, 3')
    srd(k, 8, S_WS, WS_Q, 3*SZ_Q)
    srd(k, 12, S_WS, WS_O, SZ_Q)
    QF, KF, VF, S, O, CN, P = 4, 12, 20, 36, 68, 100, 132
    T0 = 148
    vK, vV, vVb, vInc = T0, T0+1, T0+2, T0+3
    t0, t1, t2, t3 = T0+4, T0+5, T0+6, T0+7
    k(f's_lshr_b32 s19, s{S_W}, 2')
    k(f's_and_b32 s22, s{S_W}, 3')
    k('s_lshl_b32 s22, s22, 1')
    k('s_add_u32 s21, s21, s22')
    k('s_add_u32 s28, s21, s19')
    k('s_xor_b32 s29, s19, 1')
    k('s_add_u32 s29, s21, s29')
    k(f'v_and_b32 v{t0}, 31, v0')
    k(f'v_cmp_gt_u32 vcc, 2, v{t0}')
    k(f'v_mov_b32 v{t1}, 0x3f803f80')
    k(f'v_lshlrev_b32 v{t2}, 3, v0')
    k(f'v_cndmask_b32 v{t0}, 0, v{t1}, vcc')
    k(f'v_add_u32 v{t2}, {hex(LDS_ONES)}, v{t2}')
    k(f'v_mov_b32 v{t1}, v{t0}')
    k(f'ds_write_b64 v{t2}, v[{t0}:{t1}]')
    k(f'ds_write_b64 v{t2}, v[{t0}:{t1}] offset:1024')
    k(f'v_lshrrev_b32 v{t0}, 5, v2')
    k(f'v_lshlrev_b32 v{t0}, 8, v{t0}')
    k(f'v_and_b32 v{t1}, 15, v2')
    k(f'v_lshl_add_u32 v{t0}, v{t1}, 4, v{t0}')
    k(f'v_bfe_u32 v{t1}, v2, 4, 1')
    k(f'v_sub_u32 v{t2}, 1, v{t1}')
    k(f'v_lshlrev_b32 v{vInc}, 12, v{t2}')
    k('s_lshl_b32 s26, s19, 15')
    k(f's_add_u32 s26, s26, 0x10000')
    k(f'v_mul_lo_u32 v{t2}, v{t2}, s26')
    k(f'v_lshlrev_b32 v{t1}, 17, v{t1}')
    k(f'v_add3_u32 v{vVb}, v{t0}, v{t1}, v{t2}')
    k('s_lshl_b32 s26, s19, 15')
    k(f'v_add_u32 v{vK}, s26, v3')
    k(f'v_mov_b32 v{vV}, v{vVb}')
    for i in range(32): k(f'v_mov_b32 v{O+i}, 0')
    for i in range(4): k(f'v_mov_b32 v{P+8+4+i}, 0')
    for i in range(4): k(f'v_mov_b32 v{VF+8+4+i}, 0')
    def idx_p3(k):
        k('s_lshr_b32 s98, s20, 1')
        k(f's_add_u32 s98, s98, {F_P2}')
        k('v_lshl_add_u32 v250, v2, 4, s98')
        k(f'v_add_u32 v252, {F_WO-16}, v2')
        k('v_cmp_le_u32 vcc, 16, v2')
        k('s_nop 1')
        k('v_cndmask_b32 v250, v250, v252, vcc')
        k('v_bfe_u32 v252, v2, 3, 2')
        k('v_mul_u32_u24 v252, 48, v252')
        k('v_and_b32 v253, 7, v2')
        k(f'v_add3_u32 v252, v252, v253, {F_G+16}')
        k('v_cmp_le_u32 vcc, 32, v2')
        k('s_nop 1')
        k('v_cndmask_b32 v250, v250, v252, vcc')
    wait_flags(k, idx_p3)
    stamp(k, 8)
    k('s_lshl_b32 s22, s20, 16')
    k('s_lshl_b32 s23, s28, 10')
    k('s_add_u32 s23, s23, s22')
    k(f'buffer_load_dwordx4 {vr(QF,4)}, v3, s[8:11], s23 offen{SC}')
    k('s_lshl_b32 s23, s29, 10')
    k('s_add_u32 s23, s23, s22')
    k(f'buffer_load_dwordx4 {vr(QF+4,4)}, v3, s[8:11], s23 offen{SC}')
    k(f's_lshl_b32 s24, s{S_W}, 10')
    k('s_add_u32 s25, s22, s24')
    k(f's_add_u32 s25, s25, {SZ_Q}')
    def dma(c, which):
        if which == 0:
            k(f's_add_u32 m0, s24, {c*8192}')
            k(f's_add_u32 s26, s25, {c*8192}')
        else:
            k(f's_add_u32 m0, s24, {c*8192 + 65536}')
            k(f's_add_u32 s26, s25, {c*8192 + SZ_Q}')
        k(f'buffer_load_dwordx4 v3, s[8:11], s26 offen{SC} lds')
    for c in (0, 4):
        dma(c, 0); dma(c, 1)
    k('s_waitcnt vmcnt(0) lgkmcnt(0)')
    k('s_barrier')
    k(f'ds_read_b128 {vr(VF,4)}, v3')
    k(f'ds_read_b128 {vr(KF,4)}, v{vK}')
    k(f'ds_read_b128 {vr(KF+4,4)}, v{vK} offset:1024')
    k('s_waitcnt lgkmcnt(2)')
    for x in range(2):
        k(f'{MF} {vr(S+16*x,16)}, {vr(VF,4)}, {vr(QF+4*x,4)}, 0')
    k(f'ds_read_b128 {vr(VF,4)}, v{vV}')
    k(f'ds_read_b128 {vr(VF+4,4)}, v{vV} offset:512')
    for x in range(2):
        m = t0 + x; b = S + 16*x
        k(f'v_max3_f32 v{m}, v{b}, v{b+1}, v{b+2}')
        for i in range(3, 15, 2): k(f'v_max3_f32 v{m}, v{m}, v{b+i}, v{b+i+1}')
        k(f'v_max_f32 v{m}, v{m}, v{b+15}')
    k(f'v_mov_b32 v{t2}, v{t0}')
    k(f'v_mov_b32 v{t3}, v{t1}')
    k(f'v_permlane32_swap_b32 v{t0}, v{t2}')
    k(f'v_permlane32_swap_b32 v{t1}, v{t3}')
    k(f'v_max_f32 v{t0}, v{t0}, v{t2}')
    k(f'v_max_f32 v{t1}, v{t1}, v{t3}')
    k(f'v_sub_f32 v{t0}, {hex(f2u(-40.0))}, v{t0}')
    k(f'v_sub_f32 v{t1}, {hex(f2u(-40.0))}, v{t1}')
    for i in range(16): k(f'v_mov_b32 v{CN+i}, v{t0}')
    k('s_waitcnt lgkmcnt(2)')
    k(f'{MF} {vr(S,16)}, {vr(KF,4)}, {vr(QF,4)}, {vr(CN,16)}')
    for i in range(16): k(f'v_mov_b32 v{CN+16+i}, v{t1}')
    k(f'{MF} {vr(S+16,16)}, {vr(KF,4)}, {vr(QF+4,4)}, {vr(CN+16,16)}')
    srd(k, 40, S_WS, WS_WO, SZ_WO)
    k('s_and_b32 s37, s7, 3')
    k('s_lshl_b32 s37, s37, 2')
    k(f's_and_b32 s38, s{S_W}, 3')
    k('s_add_u32 s37, s37, s38')
    k('s_lshl_b32 s37, s37, 15')
    k('s_lshl_b32 s38, s19, 14')
    k('s_add_u32 s37, s37, s38')
    k('s_lshl_b32 s38, s19, 4')
    k('v_xor_b32 v156, s38, v2')
    k('v_lshlrev_b32 v156, 4, v156')
    k('s_mov_b32 s31, 0')
    k('s_nop 1')
    stamp(k, 9)
    def step(u, extra):
        kc, kn = KF + 4*(u & 1), KF + 4*((u+1) & 1)
        vc, vn = VF + 8*(u & 1), VF + 8*((u+1) & 1)
        ex = list(extra) if extra else []
        def X():
            if ex: ex.pop(0)()
        for x in range(2):
            cur = S + 16*x; o = O + 16*x; p = P + 8*x
            E = lambda i: k(f'v_exp_f32 v{cur+i}, v{cur+i}')
            if x == 0: k('s_waitcnt lgkmcnt(0)')
            E(0)
            if x == 0: k(f'ds_read_b128 {vr(kc,4)}, v{vK} offset:{1024*(u+2)}')
            E(1)
            if x == 0: k(f'ds_read_b128 {vr(vn,4)}, v{vV} offset:{1024*(u+1)}')
            E(2); X(); E(3)
            if x == 0: k(f'{MF} {vr(O+16,16)}, {vr(vn+4,4)}, {vr(P+8+4,4)}, {vr(O+16,16)}')
            else:      k(f'{MF} {vr(O,16)}, {vr(vc+4,4)}, {vr(P+4,4)}, {vr(O,16)}')
            E(4)
            if x == 0: k(f'ds_read_b128 {vr(vn+4,4)}, v{vV} offset:{1024*(u+1)+512}')
            E(5); X(); E(6); E(7)
            for d in range(4): k(f'v_cvt_pk_bf16_f32 v{p+d}, v{cur+2*d}, v{cur+2*d+1}')
            E(8); E(9)
            k(f'{MF} {vr(o,16)}, {vr(vc,4)}, {vr(p,4)}, {vr(o,16)}')
            for i in range(10, 16): E(i)
            for d in range(4): k(f'v_cvt_pk_bf16_f32 v{p+4+d}, v{cur+8+2*d}, v{cur+8+2*d+1}')
            k(f'{MF} {vr(cur,16)}, {vr(kn,4)}, {vr(QF+4*x,4)}, {vr(CN+16*x,16)}')
    def tail():
        k(f'v_add_u32 v{vK}, 0x1000, v{vK}')
        k(f'v_add_u32 v{vV}, v{vV}, v{vInc}')
    seq = []
    for c in (1, 5, 2, 6, 3, 7):
        seq += [(lambda c=c: dma(c, 0)), (lambda c=c: dma(c, 1))]
    for u in range(4): step(u, seq[3*u:3*u+3])
    tail()
    k('s_waitcnt vmcnt(0)')
    k('s_barrier')
    def wo(i):
        k(f'buffer_load_dwordx4 {vr(160+4*i,4)}, v156, s[40:43], s37 offen offset:{1024*(i&3)}{SC}')
        if (i & 3) == 3: k('s_add_u32 s37, s37, 4096')
    seq = [(lambda i=i: wo(i)) for i in range(16)]
    for u in range(4): step(u, seq[4*u:4*u+4])
    tail()
    k('s_mov_b32 s31, 2')
    k.label(f'{L}_LOOP')
    for u in range(4): step(u, None)
    tail()
    k('s_add_u32 s31, s31, 1')
    k('s_cmp_lt_u32 s31, 8')
    k(f's_cbranch_scc1 {L}_LOOP')
    stamp(k, 10)
    k('s_waitcnt lgkmcnt(0)')
    k(f'{MF} {vr(O+16,16)}, {vr(VF+8+4,4)}, {vr(P+8+4,4)}, {vr(O+16,16)}')
    k(f's_and_b32 s22, s{S_W}, 3')
    k('s_lshl_b32 s22, s22, 1')
    k('s_xor_b32 s23, s19, 1')
    k('s_add_u32 s23, s23, s22')
    k('s_mul_i32 s23, s23, 2304')
    k(f's_add_u32 s23, s23, {LDS_CMB}')
    k(f'v_lshlrev_b32 v{t0}, 2, v2')
    k(f'v_add_u32 v{t1}, s23, v{t0}')
    k('s_add_u32 s22, s22, s19')
    k('s_mul_i32 s22, s22, 2304')
    k(f's_add_u32 s22, s22, {LDS_CMB}')
    k(f'v_add_u32 v{t2}, s22, v{t0}')
    for r in range(9): k(f'ds_write_b32 v{t1}, v{O+16+r} offset:{256*r}')
    k('s_waitcnt lgkmcnt(0)')
    k('s_barrier')
    for r in range(9): k(f'ds_read_b32 v{S+r}, v{t2} offset:{256*r}')
    k('s_waitcnt lgkmcnt(0)')
    for r in range(9): k(f'v_add_f32 v{O+r}, v{O+r}, v{S+r}')
    k(f'v_mov_b32 v{t3}, v{O+8}')
    k(f'v_permlane32_swap_b32 v{t3}, v{O+8}')
    k(f'v_mul_f32 v{t0}, 0, v{t3}')
    for r in range(8): k(f'v_fmac_f32 v{t0}, 0, v{O+r}')
    k(f'v_mov_b32 v{t1}, {hex(f2u(2.0**64))}')
    k(f'v_cmp_u_f32 vcc, v{t0}, v{t0}')
    k(f'v_cmp_nlt_f32 s[34:35], v{t3}, v{t1}')
    k('s_or_b64 s[34:35], vcc, s[34:35]')
    k(f's_cbranch_scc0 {L}_FIN')
    k(f'v_mov_b32 v{vK}, v3')
    k(f'v_mov_b32 v{t0}, 0xff800000')
    k('s_mov_b32 s31, 0')
    k.label(f'{L}_MAXL')
    k(f'ds_read_b128 {vr(KF,4)}, v{vK}')
    k('s_waitcnt lgkmcnt(0)')
    k(f'{MF} {vr(S,16)}, {vr(KF,4)}, {vr(QF,4)}, 0')
    k(f'v_add_u32 v{vK}, 0x400, v{vK}')
    for i in range(0, 16, 2): k(f'v_max3_f32 v{t0}, v{t0}, v{S+i}, v{S+i+1}')
    k('s_add_u32 s31, s31, 1')
    k('s_cmp_lt_u32 s31, 64')
    k(f's_cbranch_scc1 {L}_MAXL')
    k(f'v_mov_b32 v{t1}, v{t0}')
    k(f'v_permlane32_swap_b32 v{t0}, v{t1}')
    k(f'v_max_f32 v{t0}, v{t0}, v{t1}')
    for i in range(16): k(f'v_sub_f32 v{CN+i}, 0, v{t0}')
    for i in range(16): k(f'v_mov_b32 v{O+i}, 0')
    k(f'v_mov_b32 v{vK}, v3')
    k('s_lshl_b32 s26, s19, 15')
    k(f'v_lshrrev_b32 v{t1}, 12, v{vInc}')
    k(f'v_mul_lo_u32 v{t1}, v{t1}, s26')
    k(f'v_sub_u32 v{vV}, v{vVb}, v{t1}')
    k(f'v_lshrrev_b32 v{t2}, 2, v{vInc}')
    k('s_mov_b32 s31, 0')
    k.label(f'{L}_FBL')
    k(f'ds_read_b128 {vr(KF,4)}, v{vK}')
    k(f'ds_read_b128 {vr(VF,4)}, v{vV}')
    k(f'ds_read_b128 {vr(VF+4,4)}, v{vV} offset:512')
    k('s_waitcnt lgkmcnt(0)')
    k(f'{MF} {vr(S,16)}, {vr(KF,4)}, {vr(QF,4)}, {vr(CN,16)}')
    k(f'v_add_u32 v{vK}, 0x400, v{vK}')
    k(f'v_add_u32 v{vV}, v{vV}, v{t2}')
    for i in range(16): k(f'v_exp_f32 v{S+i}, v{S+i}')
    for d in range(8): k(f'v_cvt_pk_bf16_f32 v{P+d}, v{S+2*d}, v{S+2*d+1}')
    k(f'{MF} {vr(O,16)}, {vr(VF,4)}, {vr(P,4)}, {vr(O,16)}')
    k(f'{MF} {vr(O,16)}, {vr(VF+4,4)}, {vr(P+4,4)}, {vr(O,16)}')
    k('s_add_u32 s31, s31, 1')
    k('s_cmp_lt_u32 s31, 64')
    k('s_nop 7')
    k(f's_cbranch_scc1 {L}_FBL')
    k('s_nop 7')
    k(f'v_mov_b32 v{t3}, v{O+8}')
    k(f'v_permlane32_swap_b32 v{t3}, v{O+8}')
    k.label(f'{L}_FIN')
    k(f'v_rcp_f32 v{t0}, v{t3}')
    for r in range(8): k(f'v_mul_f32 v{O+r}, v{O+r}, v{t0}')
    for d in range(4): k(f'v_cvt_pk_bf16_f32 v{P+d}, v{O+2*d}, v{O+2*d+1}')
    k('s_lshl_b32 s22, s28, 15')
    k('s_lshl_b32 s23, s20, 10')
    k('s_add_u32 s22, s22, s23')
    k(f'buffer_store_dwordx4 {vr(P,4)}, v3, s[12:15], s22 offen{SC}')
    k('s_lshl_b32 s22, s36, 5')
    k('s_add_u32 s22, s22, s20')
    k(f's_add_u32 s22, s22, {F_P3}')
    publish(k, 22)
    stamp(k, 11)
```

```python
from pk_common import *

LDS_W13 = 49152
LDS_EX4 = 32768
LDS_ST4 = LDS_W13 + 99*1024

def p5_decode(k):
    k(f's_and_b32 s6, s{S_ID}, 7')
    k(f's_lshr_b32 s7, s{S_ID}, 3')
    k('s_cmp_lt_u32 s7, 29')
    k('s_cselect_b32 s52, 1, 0')
    k('s_min_u32 s7, s7, 28')
    k('s_mul_i32 s6, s6, 29')
    k('s_add_u32 s6, s6, s7')
    k('s_cmp_ge_u32 s6, 116')
    k('s_cselect_b32 s7, 116, 0')
    k('s_cselect_b32 s19, 4, 0')
    k('s_sub_u32 s6, s6, s7')
    k('s_and_b32 s50, s6, 3')
    k('s_add_u32 s50, s50, s19')
    k('s_lshr_b32 s53, s6, 2')
    k('s_mul_i32 s51, s53, 3')
    k('s_min_u32 s51, s51, 83')

def sum_partials8(k, G, dst):
    for j in range(8):
        k(f'v_add_f32 v{G+j}, v{G+j}, v{G+8+j}')
        k(f'v_add_f32 v{G+16+j}, v{G+16+j}, v{G+24+j}')
    for j in range(8): k(f'v_add_f32 v{G+j}, v{G+j}, v{G+16+j}')
    for j in range(8): k(f'v_cvt_pk_bf16_f32 v{G+j}, v{G+j}, v{G+j}')
    for j in range(8): k(f'v_lshlrev_b32 v{dst+j}, 16, v{G+j}')

def gen_p4(k):
    k(f's_and_b32 s6, s{S_ID}, 7')
    k(f's_lshr_b32 s7, s{S_ID}, 3')
    k('s_lshl_b32 s20, s6, 3')
    k('s_lshr_b32 s21, s7, 2')
    k('s_add_u32 s20, s20, s21')
    k('s_and_b32 s21, s7, 3')
    k(f's_and_b32 s22, s{S_W}, 3')
    k('s_lshl_b32 s23, s21, 2')
    k('s_add_u32 s23, s23, s22')
    k(f's_lshr_b32 s24, s{S_W}, 2')
    p5_decode(k)
    srd(k, 8, S_WS, WS_O, SZ_Q)
    srd(k, 12, S_WS, WS_WO, SZ_WO)
    srd(k, 28, S_WS, WS_MODP, SZ_MODP)
    srd(k, 32, S_X, 0, 2048*1024)
    srd(k, 36, S_WS, WS_X1, SZ_Q)
    srd(k, 40, S_WS, WS_W13, SZ_W13)
    vm = VM(k)
    WR, G, RES, ACC, TB = 160, 128, 124, 16, 32
    k('v_and_b32 v4, 31, v2')
    k('v_lshrrev_b32 v5, 5, v2')
    k('v_lshlrev_b32 v7, 10, v4')
    k('v_lshl_add_u32 v7, v5, 3, v7')
    k('s_lshl_b32 s25, s20, 15')
    k('s_lshl_b32 s26, s23, 6')
    k('s_add_u32 s25, s25, s26')
    k('s_lshl_b32 s26, s24, 5')
    k('s_add_u32 s25, s25, s26')
    k(f'buffer_load_dwordx2 {vr(RES,2)}, v7, s[32:35], s25 offen')
    k(f'buffer_load_dwordx2 {vr(RES+2,2)}, v7, s[32:35], s25 offen offset:16')
    k('v_lshlrev_b32 v8, 4, v5')
    k('s_lshl_b32 s25, s23, 7')
    k('s_lshl_b32 s26, s24, 6')
    k('s_add_u32 s25, s25, s26')
    for rq in range(4):
        k(f's_add_u32 s26, s25, {2*2048 + rq*3072*4}')
        k(f'buffer_load_dwordx4 {vr(G+8*rq,4)}, v8, s[28:31], s26 offen{SC}')
        k(f'buffer_load_dwordx4 {vr(G+8*rq+4,4)}, v8, s[28:31], s26 offen offset:32{SC}')
    vm.issue('e', 10)
    def idx_p4(k):
        k('s_lshr_b32 s98, s20, 3')
        k('s_lshl_b32 s98, s98, 5')
        k(f's_add_u32 s98, s98, {F_P3}')
        k('v_add_u32 v250, s98, v2')
        k('s_lshr_b32 s98, s51, 2')
        k('s_lshl_b32 s98, s98, 4')
        k('v_mov_b32 v253, s98')
        k('s_add_u32 s98, s51, 2')
        k('s_lshr_b32 s98, s98, 2')
        k('s_lshl_b32 s98, s98, 4')
        k('v_mov_b32 v252, s98')
        k('v_cmp_le_u32 vcc, 48, v2')
        k('s_nop 1')
        k('v_cndmask_b32 v252, v253, v252, vcc')
        k('v_and_b32 v253, 15, v2')
        k('v_add_u32 v252, v252, v253')
        k(f'v_add_u32 v252, {F_W13}, v252')
        k('v_cmp_le_u32 vcc, 32, v2')
        k('s_nop 1')
        k('v_cndmask_b32 v250, v250, v252, vcc')
    stamp(k, 12)
    wait_flags(k, idx_p4)
    stamp(k, 13)
    k('s_lshl_b32 s25, s20, 15')
    k(f's_lshl_b32 s26, s{S_W}, 12')
    k('s_add_u32 s25, s25, s26')
    k('s_mov_b32 m0, s26')
    k('s_nop 0')
    for i in range(4):
        k(f'buffer_load_dwordx4 v3, s[8:11], s25 offen offset:{1024*i}{SC} lds')
    vm.issue('t', 4)
    vm.wait('e')
    sum_partials8(k, G, G+8)
    GA = G + 8
    vm.wait('t')
    k('s_barrier')
    k('s_lshl_b32 s25, s24, 14')
    k('v_add_u32 v9, s25, v3')
    for i in range(2): k(f'ds_read_b128 {vr(TB+4*i,4)}, v9 offset:{1024*i}')
    k(f's_mul_i32 s25, s51, {U_STRIDE}')
    k(f's_lshl_b32 s26, s{S_W}, 10')
    k('s_add_u32 s25, s25, s26')
    k(f's_mul_i32 s26, s{S_W}, 3072')
    for i in range(16):
        if i + 2 < 16: k(f'ds_read_b128 {vr(TB+4*((i+2)%4),4)}, v9 offset:{1024*(i+2)}')
        if i < 12:
            c, u = divmod(i, 3)
            k(f's_add_u32 m0, s26, {LDS_W13 + c*8*3072 + u*1024}')
            k(f's_add_u32 s27, s25, {c*8*1024 + u*U_STRIDE}')
        k(f's_waitcnt lgkmcnt({min(2, 15-i)})')
        k(f'{MF} {vr(ACC,16)}, {vr(WR+4*i,4)}, {vr(TB+4*(i%4),4)}, {vr(ACC,16) if i else 0}')
        if i < 12: k(f'buffer_load_dwordx4 v3, s[40:43], s27 offen{SC} lds')
    stamp(k, 14)
    k(f's_lshl_b32 s25, s{S_W}, 11')
    k(f's_add_u32 s25, s25, {LDS_EX4}')
    k('v_add_u32 v10, s25, v3')
    k(f's_xor_b32 s25, s{S_W}, 4')
    k('s_lshl_b32 s25, s25, 11')
    k(f's_add_u32 s25, s25, {LDS_EX4}')
    k('v_add_u32 v11, s25, v3')
    k(f'ds_write_b128 v10, {vr(ACC+8,4)}')
    k(f'ds_write_b128 v10, {vr(ACC+12,4)} offset:1024')
    for d in range(4):
        k(f'v_lshlrev_b32 v{48+2*d}, 16, v{RES+d}')
        k(f'v_and_b32 v{48+2*d+1}, 0xffff0000, v{RES+d}')
    k('s_waitcnt lgkmcnt(0)')
    k('s_barrier')
    k(f'ds_read_b128 {vr(56,4)}, v11')
    k(f'ds_read_b128 {vr(60,4)}, v11 offset:1024')
    k('s_waitcnt lgkmcnt(0)')
    for j in range(8): k(f'v_add_f32 v{ACC+j}, v{ACC+j}, v{56+j}')
    for j in range(8): k(f'v_fma_f32 v{ACC+j}, v{ACC+j}, v{GA+j}, v{48+j}')
    for d in range(4): k(f'v_cvt_pk_bf16_f32 v{56+d}, v{ACC+2*d}, v{ACC+2*d+1}')
    k('s_lshl_b32 s25, s20, 15')
    k('s_lshl_b32 s26, s23, 11')
    k('s_add_u32 s25, s25, s26')
    k('s_lshl_b32 s26, s24, 10')
    k('s_add_u32 s25, s25, s26')
    k(f'buffer_store_dwordx4 {vr(56,4)}, v3, s[36:39], s25 offen{SC}')
    for d in range(4):
        k(f'v_lshlrev_b32 v{48+2*d}, 16, v{56+d}')
        k(f'v_and_b32 v{48+2*d+1}, 0xffff0000, v{56+d}')
    k('v_add_f32 v12, v48, v49')
    k('v_mul_f32 v13, v48, v48')
    k('v_fmac_f32 v13, v49, v49')
    for j in range(2, 8):
        k(f'v_add_f32 v12, v12, v{48+j}')
        k(f'v_fmac_f32 v13, v{48+j}, v{48+j}')
    k('v_mov_b32 v14, v12')
    k('v_mov_b32 v15, v13')
    k('v_permlane32_swap_b32 v12, v14')
    k('v_permlane32_swap_b32 v13, v15')
    k('v_add_f32 v12, v12, v14')
    k('v_add_f32 v13, v13, v15')
    k(f's_lshl_b32 s25, s{S_W}, 8')
    k(f's_add_u32 s25, s25, {LDS_ST4}')
    k('v_lshlrev_b32 v14, 3, v4')
    k('v_add_u32 v15, s25, v14')
    k('ds_write_b64 v15, v[12:13]')
    k('s_waitcnt lgkmcnt(0)')
    k('s_barrier')

    k(f's_cmp_eq_u32 s{S_W}, 0')
    k('s_cbranch_scc0 P4_PUB')
    k(f'v_add_u32 v15, {LDS_ST4}, v14')
    for i in range(8): k(f'ds_read_b64 {vr(32+2*i,2)}, v15 offset:{256*i}')
    k('s_waitcnt lgkmcnt(0)')
    for st in (4, 2, 1):
        for i in range(st):
            k(f'v_add_f32 v{32+2*i}, v{32+2*i}, v{32+2*(i+st)}')
            k(f'v_add_f32 v{33+2*i}, v{33+2*i}, v{33+2*(i+st)}')
    srd(k, 28, S_WS, WS_STATS, SZ_STATS)
    k('s_lshl_b32 s25, s21, 14')
    k('s_lshl_b32 s26, s20, 8')
    k('s_add_u32 s25, s25, s26')
    k(f'buffer_store_dwordx2 v[32:33], v14, s[28:31], s25 offen{SC}')
    k.label('P4_PUB')
    k('s_lshl_b32 s22, s20, 2')
    k('s_add_u32 s22, s22, s21')
    k(f's_add_u32 s22, s22, {F_P4}')
    publish(k, 22)
    stamp(k, 15)
    k(f's_mul_i32 s26, s{S_W}, 0x5556')
    k('s_lshr_b32 s26, s26, 16')
    k('s_mul_i32 s26, s26, 3')
    k(f's_sub_u32 s26, s{S_W}, s26')
    k('s_add_u32 s27, s51, s26')
    k('s_lshl_b32 s27, s27, 4')
    k('v_and_b32 v36, 15, v2')
    k('v_bfe_u32 v37, v2, 4, 1')
    k('v_mul_u32_u24 v37, 1376, v37')
    k('v_add3_u32 v36, v36, v37, s27')
    k('v_lshlrev_b32 v36, 2, v36')
    srd(k, 44, S_WS, WS_CSB, SZ_CSB)
    for q in range(16):
        k(f's_mov_b32 s27, {q*2752*4}')
        k(f'buffer_load_dword v{48+q}, v36, s[44:47], s27 offen{SC}')
    k('s_waitcnt vmcnt(0)')
    for st in (8, 4, 2):
        for i in range(st): k(f'v_add_f32 v{48+i}, v{48+i}, v{48+i+st}')
    k('v_mov_b32 v40, v48')
    k('v_mov_b32 v41, v49')
    k('v_cvt_pk_bf16_f32 v42, v40, v41')
    k('v_lshlrev_b32 v43, 16, v42')
    k('v_and_b32 v44, 0xffff0000, v42')
    k('v_sub_f32 v43, v40, v43')
    k('v_sub_f32 v44, v41, v44')
    k('v_cvt_pk_bf16_f32 v43, v43, v44')
    k('s_mov_b32 s27, 0x05040100')
    k('s_mov_b32 s25, 0x07060302')
    k('v_perm_b32 v44, v43, v42, s27')
    k('v_mov_b32 v45, v42')
    k('v_perm_b32 v46, v42, v43, s25')
    k('v_mov_b32 v47, 0')
    k('v_cmp_gt_u32 vcc, 32, v2')
    k('s_lshl_b32 s26, s26, 10')
    k(f's_add_u32 s26, s26, {LDS_W13 + 96*1024}')
    k('v_add_u32 v36, s26, v3')
    for i in range(3): k(f'v_cndmask_b32 v{44+i}, 0, v{44+i}, vcc')
    k('ds_write_b128 v36, v[44:47]')


def gen_p5(k):
    srd(k, 8, S_WS, WS_X1, SZ_Q)
    srd(k, 28, S_WS, WS_STATS, SZ_STATS)
    srd(k, 32, S_WS, WS_HM, SZ_HM)
    k('s_lshl_b32 s20, s50, 3')
    k(f's_add_u32 s20, s20, s{S_W}')
    k('v_and_b32 v4, 31, v2')
    k('v_lshrrev_b32 v5, 5, v2')
    def idx_p5(k):
        k('s_lshl_b32 s98, s50, 5')
        k(f's_add_u32 s98, s98, {F_P4}')
        k('v_add_u32 v250, s98, v2')
        k('v_bfe_u32 v252, v2, 3, 2')
        k('v_mul_u32_u24 v252, 48, v252')
        k('v_and_b32 v253, 7, v2')
        k(f'v_add3_u32 v252, v252, v253, {F_G+40}')
        k('v_cmp_le_u32 vcc, 32, v2')
        k('s_nop 1')
        k('v_cndmask_b32 v250, v250, v252, vcc')
    srd(k, 12, S_WS, WS_W2, SZ_W2)
    k(f's_lshr_b32 s7, s{S_ID}, 3')
    k('s_and_b32 s21, s7, 7')
    k('s_lshl_b32 s21, s21, 1')
    k(f's_and_b32 s22, s{S_W}, 1')
    k('s_add_u32 s21, s21, s22')
    k(f's_lshr_b32 s23, s{S_W}, 1')
    k(f's_mul_i32 s61, s21, {86*1024}')
    k(f's_mul_i32 s22, s23, {22*1024}')
    k('s_add_u32 s61, s61, s22')
    k('s_cmp_eq_u32 s23, 3')
    k('s_cselect_b32 s56, 0x40000000, 0')
    k('s_and_b32 s23, s23, 1')
    k('s_lshl_b32 s23, s23, 4')
    k('v_xor_b32 v9, s23, v2')
    k('v_lshlrev_b32 v9, 4, v9')
    def w2(i, vm=None):
        if vm: vm.issue('w2')
        if i == 20: k('s_add_u32 s61, s61, s56')
        k(f'buffer_load_dwordx4 {vr(64+4*i,4)}, v9, s[12:15], s61 offen offset:{1024*(i&3)}{SC}')
        if (i & 3) == 3: k('s_add_u32 s61, s61, 4096')
    stamp(k, 16)
    wait_flags(k, idx_p5, pre='s_waitcnt vmcnt(0) lgkmcnt(0)')
    stamp(k, 17)
    k('s_cmp_eq_u32 s52, 0')
    k('s_cbranch_scc1 P5_SKIP')
    vm = VM(k)
    XR, WR, ACC, AUG, ST = 64, 16, 192, 40, 44
    k('v_lshlrev_b32 v6, 3, v4')
    k('v_lshl_add_u32 v6, v5, 15, v6')
    k('s_lshl_b32 s26, s20, 8')
    k(f'buffer_load_dwordx2 {vr(ST,2)}, v6, s[28:31], s26 offen{SC}')
    k('s_add_u32 s26, s26, 16384')
    k(f'buffer_load_dwordx2 {vr(ST+2,2)}, v6, s[28:31], s26 offen{SC}')
    vm.issue('st', 2)
    k('s_lshl_b32 s24, s20, 15')
    def ldx(s):
        k(f'buffer_load_dwordx4 {vr(XR+4*s,4)}, v3, s[8:11], s24 offen offset:{1024*(s&3)}{SC}')
        if (s & 3) == 3: k('s_add_u32 s24, s24, 4096')
        vm.issue(('x', s))
    PF = 6
    for s in range(PF): ldx(s)
    k(f'v_add_u32 v7, {LDS_W13}, v3')
    k(f'v_add_u32 v8, {LDS_W13 + 65536}, v3')
    def rd(s):
        st = s & 1
        for u in range(3):
            o = (s*3+u)*1024
            k(f'ds_read_b128 {vr(WR+12*st+4*u,4)}, v7 offset:{o}' if o < 65536 else
              f'ds_read_b128 {vr(WR+12*st+4*u,4)}, v8 offset:{o-65536}')
    rd(0)
    vm.wait('st')
    k(f'v_add_f32 v{ST}, v{ST}, v{ST+2}')
    k(f'v_add_f32 v{ST+1}, v{ST+1}, v{ST+3}')
    k(f'v_mov_b32 v12, v{ST}')
    k(f'v_mov_b32 v13, v{ST+1}')
    k(f'v_permlane32_swap_b32 v{ST}, v12')
    k(f'v_permlane32_swap_b32 v{ST+1}, v13')
    k(f'v_add_f32 v12, v12, v{ST}')
    k(f'v_add_f32 v13, v13, v{ST+1}')
    k(f'v_mul_f32 v12, {hex(f2u(-1/512))}, v12')
    k(f'v_mul_f32 v13, {hex(f2u(1/512))}, v13')
    k('v_fma_f32 v13, -v12, v12, v13')
    k('v_max_f32 v13, 0, v13')
    k(f'v_add_f32 v13, {hex(f2u(1e-5))}, v13')
    k('v_rsq_f32 v10, v13')
    k('s_nop 0')
    k('v_mul_f32 v13, v13, v10')
    k('v_cvt_pk_bf16_f32 v11, v12, v13')
    k('v_lshlrev_b32 v14, 16, v11')
    k('v_and_b32 v15, 0xffff0000, v11')
    k('v_sub_f32 v14, v12, v14')
    k('v_sub_f32 v15, v13, v15')
    k('v_cvt_pk_bf16_f32 v12, v14, v15')
    k('s_mov_b32 s36, 0x01000100')
    k('s_mov_b32 s37, 0x07060100')
    k('s_mov_b32 s38, 0x07060302')
    k(f'v_perm_b32 v{AUG}, v11, v11, s36')
    k(f'v_perm_b32 v{AUG+1}, v11, v12, s37')
    k(f'v_perm_b32 v{AUG+2}, v12, v11, s38')
    k(f'v_mov_b32 v{AUG+3}, 0')
    k('v_cmp_gt_u32 vcc, 32, v2')
    k('s_nop 1')
    for i in range(3): k(f'v_cndmask_b32 v{AUG+i}, 0, v{AUG+i}, vcc')
    NST = 33
    for s in range(NST):
        st = s & 1
        if s + 1 < NST: rd(s+1)
        if s + PF < 32: ldx(s + PF)
        if s < 32: vm.wait(('x', s))
        k(f's_waitcnt lgkmcnt({3 if s+1 < NST else 0})')
        xf = vr(XR+4*s, 4) if s < 32 else vr(AUG, 4)
        for u in range(3):
            acc = vr(ACC+16*u, 16); w = vr(WR+12*st+4*u, 4)
            k(f'{MF} {acc}, {w}, {xf}, {acc if s > 0 else 0}')
            if s >= 26:
                i = 3*(s-26) + u
                if i < 22 - 1: w2(i, vm)
    w2(21)
    stamp(k, 18)
    k(f'v_mul_f32 v11, {hex(f2u(-LOG2E))}, v10')
    k('v_mul_f32 v12, v10, v10')
    k('s_mul_i32 s24, s20, 86')
    k('s_add_u32 s24, s24, s51')
    k('s_lshl_b32 s24, s24, 10')
    T = 16
    for u in range(3):
        a = ACC + 16*u
        for r in range(8): k(f'v_mul_f32 v{T+r}, v{a+r}, v11')
        for r in range(8): k(f'v_exp_f32 v{T+r}, v{T+r}')
        for r in range(8): k(f'v_mul_f32 v{a+r}, v{a+r}, v{a+8+r}')
        for r in range(8): k(f'v_add_f32 v{T+r}, 1.0, v{T+r}')
        for r in range(8): k(f'v_rcp_f32 v{T+r}, v{T+r}')
        for r in range(8): k(f'v_mul_f32 v{a+r}, v{a+r}, v12')
        for r in range(8): k(f'v_mul_f32 v{a+r}, v{a+r}, v{T+r}')
        for d in range(4): k(f'v_cvt_pk_bf16_f32 v{T+8+4*u+d}, v{a+2*d}, v{a+2*d+1}')
        k(f'buffer_store_dwordx4 {vr(T+8+4*u,4)}, v3, s[32:35], s24 offen offset:{1024*u}{SC}')
    k('s_lshl_b32 s22, s50, 5')
    k('s_add_u32 s22, s22, s53')
    k(f's_add_u32 s22, s22, {F_P5}')
    publish(k, 22)
    k('s_branch P5_DONE')
    k.label('P5_SKIP')
    for i in range(22): w2(i)
    k.label('P5_DONE')
    stamp(k, 19)

def gen_p6(k):
    k(f's_and_b32 s6, s{S_ID}, 7')
    k(f's_lshr_b32 s7, s{S_ID}, 3')
    k('s_lshl_b32 s20, s6, 2')
    k('s_lshr_b32 s21, s7, 3')
    k('s_add_u32 s20, s20, s21')
    k('s_and_b32 s21, s7, 7')
    k(f's_and_b32 s22, s{S_W}, 1')
    k(f's_lshr_b32 s23, s{S_W}, 1')
    k('s_lshl_b32 s24, s21, 1')
    k('s_add_u32 s24, s24, s22')
    k('s_lshr_b32 s25, s23, 1')
    k('s_and_b32 s26, s23, 1')
    k('s_lshl_b32 s27, s20, 1')
    k('s_add_u32 s54, s27, s25')
    k('s_xor_b32 s55, s25, 1')
    k('s_add_u32 s55, s27, s55')
    srd(k, 8, S_WS, WS_HM, SZ_HM)
    srd(k, 12, S_WS, WS_W2, SZ_W2)
    srd(k, 28, S_WS, WS_MODP, SZ_MODP)
    srd(k, 32, S_OUT, 0, 2048*1024)
    srd(k, 36, S_WS, WS_X1, SZ_Q)
    vm = VM(k)
    ACC, TB, WR, TD, G, RES = 16, 48, 64, 152, 168, 200
    k('v_and_b32 v4, 31, v2')
    k('v_lshrrev_b32 v5, 5, v2')
    k('s_cmp_eq_u32 s23, 3')
    k('s_cselect_b32 s56, 0x40000000, 0')
    k(f's_mul_i32 s58, s23, {22*1024}')
    k('v_lshlrev_b32 v8, 4, v5')
    k('s_lshl_b32 s57, s24, 7')
    k('s_lshl_b32 s59, s26, 6')
    k('s_add_u32 s57, s57, s59')
    for rq in range(4):
        k(f's_add_u32 s59, s57, {5*2048 + rq*3072*4}')
        k(f'buffer_load_dwordx4 {vr(G+8*rq,4)}, v8, s[28:31], s59 offen{SC}')
        k(f'buffer_load_dwordx4 {vr(G+8*rq+4,4)}, v8, s[28:31], s59 offen offset:32{SC}')
    vm.issue('e', 8)
    def idx_p6(k):
        k('s_lshr_b32 s98, s20, 2')
        k('s_lshl_b32 s98, s98, 5')
        k(f's_add_u32 s98, s98, {F_P5}')
        k('v_min_u32 v250, 28, v2')
        k('v_add_u32 v250, s98, v250')
    stamp(k, 20)
    wait_flags(k, idx_p6)
    stamp(k, 21)
    k('s_add_u32 s57, s27, s22')
    k(f's_mul_i32 s57, s57, {86*1024}')
    k('s_add_u32 s57, s57, s58')
    k('s_mul_i32 s59, s23, 40960')
    k('s_mul_i32 s60, s22, 20480')
    k('s_add_u32 s59, s59, s60')
    def dma(g):
        k(f's_add_u32 m0, s59, {4096*g}')
        k(f's_add_u32 s60, s57, {4096*g}')
        for i in range(4):
            k(f'buffer_load_dwordx4 v3, s[8:11], s60 offen offset:{1024*i}{SC} lds')
        vm.issue(('g', g), 4)
    dma(0); dma(1)
    def tail_loads():
        k(f's_mul_i32 s60, s54, {86*1024}')
        k('s_add_u32 s60, s60, s58')
        k(f's_add_u32 s60, s60, {20*1024}')
        k('s_add_u32 s60, s60, s56')
        k(f'buffer_load_dwordx4 {vr(TD,4)}, v3, s[8:11], s60 offen{SC}')
        k(f'buffer_load_dwordx4 {vr(TD+8,4)}, v3, s[8:11], s60 offen offset:1024{SC}')
        k(f's_mul_i32 s60, s55, {86*1024}')
        k('s_add_u32 s60, s60, s58')
        k(f's_add_u32 s60, s60, {20*1024}')
        k('s_add_u32 s60, s60, s56')
        k(f'buffer_load_dwordx4 {vr(TD+4,4)}, v3, s[8:11], s60 offen{SC}')
        k(f'buffer_load_dwordx4 {vr(TD+12,4)}, v3, s[8:11], s60 offen offset:1024{SC}')
        k('s_lshl_b32 s60, s54, 15')
        k('s_lshl_b32 s61, s24, 11')
        k('s_add_u32 s60, s60, s61')
        k('s_lshl_b32 s61, s26, 10')
        k('s_add_u32 s60, s60, s61')
        k(f'buffer_load_dwordx4 {vr(RES,4)}, v3, s[36:39], s60 offen{SC}')
        vm.issue('tail', 5)
    k('s_mul_i32 s60, s23, 40960')
    k('s_mul_i32 s61, s25, 20480')
    k('s_add_u32 s61, s61, s60')
    k('v_add_u32 v9, s61, v3')
    k('s_xor_b32 s61, s25, 1')
    k('s_mul_i32 s61, s61, 20480')
    k('s_add_u32 s61, s61, s60')
    k('v_add_u32 v10, s61, v3')
    vm.wait('e')
    sum_partials8(k, G, G+8)
    GB = G + 8
    for g in range(5):
        vm.wait(('g', g))
        k('s_barrier')
        if g + 2 < 5: dma(g + 2)
        if g == 3: tail_loads()
        k(f'ds_read_b128 {vr(TB,4)}, v9 offset:{4096*g}')
        k(f'ds_read_b128 {vr(TB+4,4)}, v10 offset:{4096*g}')
        for i in range(4):
            s = 4*g + i
            b = TB + 8*(i & 1); nb = TB + 8*((i+1) & 1)
            if i < 3:
                k(f'ds_read_b128 {vr(nb,4)}, v9 offset:{4096*g + 1024*(i+1)}')
                k(f'ds_read_b128 {vr(nb+4,4)}, v10 offset:{4096*g + 1024*(i+1)}')
                k('s_waitcnt lgkmcnt(2)')
            else:
                k('s_waitcnt lgkmcnt(0)')
            k(f'{MF} {vr(ACC,16)}, {vr(WR+4*s,4)}, {vr(b,4)}, {vr(ACC,16) if s else 0}')
            k(f'{MF} {vr(ACC+16,16)}, {vr(WR+4*s,4)}, {vr(b+4,4)}, {vr(ACC+16,16) if s else 0}')
    vm.wait('tail')
    for i in range(2):
        k(f'{MF} {vr(ACC,16)}, {vr(WR+4*(20+i),4)}, {vr(TD+8*i,4)}, {vr(ACC,16)}')
        k(f'{MF} {vr(ACC+16,16)}, {vr(WR+4*(20+i),4)}, {vr(TD+8*i+4,4)}, {vr(ACC+16,16)}')
    stamp(k, 22)
    k('s_barrier')
    for x, src in ((1, ACC+8), (2, ACC+16), (3, ACC+24)):
        k(f's_xor_b32 s60, s23, {x}')
        k('s_lshl_b32 s60, s60, 1')
        k('s_add_u32 s60, s60, s22')
        k('s_mul_i32 s60, s60, 6144')
        k(f's_add_u32 s60, s60, {(x-1)*2048}')
        k(f'v_add_u32 v{10+x}, s60, v3')
    for x, src in ((1, ACC+8), (2, ACC+16), (3, ACC+24)):
        k(f'ds_write_b128 v{10+x}, {vr(src,4)}')
        k(f'ds_write_b128 v{10+x}, {vr(src+4,4)} offset:1024')
    k(f's_mul_i32 s60, s{S_W}, 6144')
    k('v_add_u32 v9, s60, v3')
    for d in range(4):
        k(f'v_lshlrev_b32 v{48+2*d}, 16, v{RES+d}')
        k(f'v_and_b32 v{48+2*d+1}, 0xffff0000, v{RES+d}')
    k('s_waitcnt lgkmcnt(0)')
    k('s_barrier')
    for j in range(6): k(f'ds_read_b128 {vr(64+4*j,4)}, v9 offset:{1024*j}')
    k('s_waitcnt lgkmcnt(0)')
    for x in range(3):
        for j in range(8): k(f'v_add_f32 v{ACC+j}, v{ACC+j}, v{64+8*x+j}')
    for j in range(8): k(f'v_fma_f32 v{ACC+j}, v{ACC+j}, v{GB+j}, v{48+j}')
    for d in range(4): k(f'v_cvt_pk_bf16_f32 v{56+d}, v{ACC+2*d}, v{ACC+2*d+1}')
    k('v_lshlrev_b32 v7, 10, v4')
    k('v_lshl_add_u32 v7, v5, 4, v7')
    k('v_permlane32_swap_b32 v56, v58')
    k('v_permlane32_swap_b32 v57, v59')
    k('s_lshl_b32 s60, s54, 15')
    k('s_lshl_b32 s61, s24, 6')
    k('s_add_u32 s60, s60, s61')
    k('s_lshl_b32 s61, s26, 5')
    k('s_add_u32 s60, s60, s61')
    k('buffer_store_dwordx4 v[56:59], v7, s[32:35], s60 offen')
    stamp(k, 23)
```

```python
import sys, os, struct
from asmlib import Kernel

WS_MODP  = 0x0000000; SZ_MODP = 4*3072*4
WS_MODT  = 0x0010000; SZ_MODT = 4*1024*8
WS_CSB   = 0x0080000; SZ_CSB = 8*2*2752*4
WS_FLG   = 0x0030000; SZ_FLG = 1792*128
WS_H     = 0x0100000; SZ_H = 2048*1024
WS_WQKV  = 0x0300000; T_STRIDE = 32*3072; SZ_WQKV = 16*T_STRIDE
WS_Q     = 0x0500000; SZ_Q = 2048*1024
WS_K     = 0x0700000
WS_VT    = 0x0900000
WS_O     = 0x0B00000
WS_WO    = 0x0D00000; SZ_WO = 512*1024
WS_X1    = 0x0E00000
WS_STATS = 0x1000000; SZ_STATS = 4*2048*8
WS_W13   = 0x1100000; U_STRIDE = 33*1024; SZ_W13 = 86*U_STRIDE
WS_HM    = 0x1400000; SZ_HM = 64*86*1024
WS_W2    = 0x1A00000; SZ_W2 = 16*86*1024
WS_TIME  = 0x4000000

F_G, F_H, F_WQ, F_WO, F_W2, F_P2, F_P3, F_P4, F_P5, F_W13 = 0, 192, 256, 304, 320, 384, 640, 896, 1152, 1408

S_X, S_WQKV, S_WO, S_BX, S_W1, S_W3, S_W2, S_C, S_WMOD, S_OUT, S_DBG, S_WS = [64 + 2*i for i in range(12)]
S_NONCE, S_W, S_ID = 88, 89, 90
S_FLG = 92
S_T0, S_T1 = 96, 97

LOG2E = 1.4426950408889634
def f2u(f): return struct.unpack('<I', struct.pack('<f', f))[0]
QSCALE = f2u(0.25*LOG2E)
MF = 'v_mfma_f32_32x32x16_bf16'
SC = ' sc1'
TIMING = '-t' in sys.argv
VERBOSE = '-v' in sys.argv
NPHASE = int(os.environ.get('NPHASE', '6'))

def srd(k, s, ptr, off, size):
    if off:
        k(f's_add_u32 s{s}, s{ptr}, {hex(off)}')
        k(f's_addc_u32 s{s+1}, s{ptr+1}, 0')
    else:
        k(f's_mov_b32 s{s}, s{ptr}')
        k(f's_mov_b32 s{s+1}, s{ptr+1}')
    k(f's_mov_b32 s{s+2}, {hex(size)}')
    k(f's_mov_b32 s{s+3}, 0x20000')

def vr(a, n=1):
    return f'v{a}' if n == 1 else f'v[{a}:{a+n-1}]'

_uid = [0]
def uid(p):
    _uid[0] += 1
    return f'{p}_{_uid[0]}'

class VM:
    def __init__(self, k): self.k = k; self.q = []
    def issue(self, tag, n=1):
        for _ in range(n): self.q.append(tag)
    def wait(self, tag):
        idx = max((i for i, t in enumerate(self.q) if t == tag), default=-1)
        if idx < 0: return
        n = len(self.q) - 1 - idx
        assert n <= 63, n
        self.k(f's_waitcnt vmcnt({n})')
        self.q = self.q[idx+1:]
    def waitall(self):
        self.k('s_waitcnt vmcnt(0)'); self.q = []


DBGT = '-d' in sys.argv
DSLOT = {255: {0: 1, 45: 2, 47: 3}, 0: {0: 4, 1: 5, 3: 6, 5: 7, 8: 8, 9: 9, 11: 10, 13: 11, 15: 12, 19: 13, 21: 14, 24: 15}}
def stamp(k, i):
    if DBGT:
        for wg, m in DSLOT.items():
            if i in m:
                L = uid('DS')
                k(f's_cmp_eq_u32 s{S_ID}, {wg}')
                k(f's_cbranch_scc0 {L}')
                k(f's_cmp_eq_u32 s{S_W}, 0')
                k(f's_cbranch_scc0 {L}')
                k(f's_memrealtime s[{S_T0}:{S_T1}]')
                k('s_waitcnt lgkmcnt(0)')
                k(f'v_mov_b32 v250, {4*m[i]}')
                k(f'v_mov_b32 v251, s{S_T0}')
                k(f'global_store_dword v250, v251, s[{S_DBG}:{S_DBG+1}]')
                k.label(L)
    if TIMING:
        k(f's_memtime s[{S_T0}:{S_T1}]')
        k('s_waitcnt lgkmcnt(0)')
        k(f'v_writelane_b32 v255, s{S_T0}, {i}')

def get_nonce(k):
    L = uid('NONCE')
    k(f's_cmp_lg_u32 s{S_NONCE}, 0')
    k(f's_cbranch_scc1 {L}_OK')
    k('s_waitcnt vmcnt(0)')
    k(f'v_readfirstlane_b32 s{S_NONCE}, v249')
    k('s_nop 1')
    k(f's_cmp_lg_u32 s{S_NONCE}, 0')
    k(f's_cbranch_scc1 {L}_OK')
    k('s_mov_b32 s98, 0')
    k.label(f'{L}_L')
    k(f'v_mov_b32 v250, 0')
    k(f'global_load_dword v251, v250, s[{S_DBG}:{S_DBG+1}] sc1')
    k('s_waitcnt vmcnt(0)')
    k(f'v_readfirstlane_b32 s{S_NONCE}, v251')
    k('s_add_u32 s98, s98, 1')
    k('s_cmp_gt_u32 s98, 0x4000')
    k(f's_cbranch_scc1 {L}_OK')
    k(f's_cmp_eq_u32 s{S_NONCE}, 0')
    k(f's_cbranch_scc1 {L}_L')
    k.label(f'{L}_OK')

def publish0(k, sidx):
    k('s_waitcnt vmcnt(0)')
    get_nonce(k)
    k(f's_lshl_b32 s98, s{sidx}, 7')
    k(f'v_mov_b32 v250, s98')
    k(f'v_mov_b32 v251, s{S_NONCE}')
    k('s_mov_b64 exec, 1')
    k(f'buffer_store_dword v251, v250, s[{S_FLG}:{S_FLG+3}], 0 offen sc1')
    k('s_mov_b64 exec, -1')

def wave_publish(k, sidx):
    L = uid('WPUB')
    k(f's_cmp_lg_u32 s{S_NONCE}, 0')
    k(f's_cbranch_scc1 {L}_OK')
    k('s_mov_b32 s98, 0')
    k.label(f'{L}_L')
    k(f'v_mov_b32 v250, 0')
    k(f'global_load_dword v251, v250, s[{S_DBG}:{S_DBG+1}] sc1')
    k('s_waitcnt vmcnt(0)')
    k(f'v_readfirstlane_b32 s{S_NONCE}, v251')
    k('s_add_u32 s98, s98, 1')
    k('s_cmp_gt_u32 s98, 0x4000')
    k(f's_cbranch_scc1 {L}_OK')
    k(f's_cmp_eq_u32 s{S_NONCE}, 0')
    k(f's_cbranch_scc1 {L}_L')
    k.label(f'{L}_OK')
    k(f's_lshl_b32 s98, s{sidx}, 7')
    k(f'v_mov_b32 v250, s98')
    k(f'v_mov_b32 v251, s{S_NONCE}')
    k('s_mov_b64 exec, 1')
    k(f'buffer_store_dword v251, v250, s[{S_FLG}:{S_FLG+3}], 0 offen sc1')
    k('s_mov_b64 exec, -1')

def publish(k, sidx):
    L = uid('PUB')
    k('s_waitcnt vmcnt(0) lgkmcnt(0)')
    k('s_barrier')
    k(f's_cmp_eq_u32 s{S_W}, 0')
    k(f's_cbranch_scc0 {L}')
    get_nonce(k)
    k(f's_lshl_b32 s98, s{sidx}, 7')
    k(f'v_mov_b32 v250, s98')
    k(f'v_mov_b32 v251, s{S_NONCE}')
    k('s_mov_b64 exec, 1')
    k(f'buffer_store_dword v251, v250, s[{S_FLG}:{S_FLG+3}], 0 offen sc1')
    k('s_mov_b64 exec, -1')
    k.label(L)

def wait_flags(k, idxcode, pre=None, share_nonce=None, idxcode2=None):
    L = uid('WAIT')
    k(f's_cmp_eq_u32 s{S_W}, 0')
    k(f's_cbranch_scc0 {L}_B')
    get_nonce(k)
    idxcode(k)
    k('v_lshlrev_b32 v250, 7, v250')
    if idxcode2:
        k('v_mov_b32 v248, v250')
        idxcode2(k)
        k('v_lshlrev_b32 v250, 7, v250')
    k('s_mov_b32 s98, 0')
    k.label(f'{L}_L')
    k(f'buffer_load_dword v251, v250, s[{S_FLG}:{S_FLG+3}], 0 offen sc1')
    if idxcode2: k(f'buffer_load_dword v247, v248, s[{S_FLG}:{S_FLG+3}], 0 offen sc1')
    k('s_add_u32 s98, s98, 1')
    k('s_cmp_gt_u32 s98, 0x4000')
    k(f's_cbranch_scc1 {L}_E')
    k('s_waitcnt vmcnt(0)')
    if idxcode2:
        k(f'v_xor_b32 v251, s{S_NONCE}, v251')
        k(f'v_xor_b32 v247, s{S_NONCE}, v247')
        k('v_or_b32 v251, v251, v247')
        k('v_cmp_ne_u32 vcc, 0, v251')
    else:
        k(f'v_cmp_ne_u32 vcc, s{S_NONCE}, v251')
    k('s_nop 1')
    k('s_cmp_lg_u64 vcc, 0')
    k(f's_cbranch_scc1 {L}_L')
    k.label(f'{L}_E')
    if share_nonce is not None:
        k(f'v_mov_b32 v250, {share_nonce}')
        k(f'v_mov_b32 v251, s{S_NONCE}')
        k('ds_write_b32 v250, v251')
        k('s_waitcnt lgkmcnt(0)')
    k.label(f'{L}_B')
    if pre: k(pre)
    k('s_barrier')
    if share_nonce is not None:
        k(f'v_mov_b32 v250, {share_nonce}')
        k('ds_read_b32 v251, v250')
        k('s_waitcnt lgkmcnt(0)')
        k(f'v_readfirstlane_b32 s{S_NONCE}, v251')

def piecewise(k, segs, lane='v2'):
    start = 0
    first = True
    for (cnt, fn) in segs:
        k(f'v_subrev_u32 v252, {start}, {lane}')
        k(f'v_min_u32 v252, {cnt-1}, v252') if start + cnt >= 64 or (cnt, fn) == segs[-1] else None
        fn(k, 'v252', 'v253')
        if first:
            k('v_mov_b32 v250, v253'); first = False
        else:
            k(f'v_cmp_le_u32 vcc, {start}, {lane}')
            k('v_cndmask_b32 v250, v250, v253, vcc')
        start += cnt
```

```python
from pk_common import *

def prologue(k):
    k('s_cmp_ge_u32 s2, 256')
    k('s_cbranch_scc1 PK_END')
    k('s_load_dwordx16 s[64:79], s[0:1], 0')
    k('s_load_dwordx8 s[80:87], s[0:1], 64')
    k('v_lshrrev_b32 v1, 6, v0')
    k('v_and_b32 v2, 63, v0')
    k(f'v_readfirstlane_b32 s{S_W}, v1')
    k(f's_mov_b32 s{S_ID}, s2')
    k('v_lshlrev_b32 v3, 4, v2')
    k(f's_mov_b32 s{S_NONCE}, 0')
    if TIMING: k('v_mov_b32 v255, 0')
    k('s_waitcnt lgkmcnt(0)')
    stamp(k, 0)
    k('v_mov_b32 v250, 0')
    k(f's_cmp_eq_u32 s{S_W}, 0')
    k('s_cbranch_scc0 PK_NONONCE')
    k(f's_cmp_eq_u32 s{S_ID}, 0')
    k('s_cbranch_scc0 PK_LDNONCE')
    k(f's_memrealtime s[{S_T0}:{S_T1}]')
    k('s_waitcnt lgkmcnt(0)')
    k(f's_or_b32 s{S_NONCE}, s{S_T0}, 1')
    k(f'v_mov_b32 v251, s{S_NONCE}')
    k('s_mov_b64 exec, 1')
    k(f'global_store_dword v250, v251, s[{S_DBG}:{S_DBG+1}] sc1')
    k('s_mov_b64 exec, -1')
    k('s_branch PK_NONONCE')
    k.label('PK_LDNONCE')
    k(f'global_load_dword v249, v250, s[{S_DBG}:{S_DBG+1}] sc1')
    k.label('PK_NONONCE')
    srd(k, S_FLG, S_WS, WS_FLG, SZ_FLG)

LDS_WQ = 32768
WQR = 128
def p2_decode(k):
    k(f's_and_b32 s58, s{S_ID}, 7')
    k(f's_lshr_b32 s59, s{S_ID}, 3')
    k('s_lshr_b32 s56, s58, 1')
    k('s_lshl_b32 s56, s56, 2')
    k('s_and_b32 s57, s59, 3')
    k('s_add_u32 s56, s56, s57')
    k('s_and_b32 s57, s58, 1')
    k('s_mul_i32 s57, s57, 6')
    k('s_lshr_b32 s59, s59, 2')
    k('s_add_u32 s57, s57, s59')

def wq_loads(k):
    p2_decode(k)
    srd(k, 60, S_WQKV, 0, 512*3072)
    k('v_and_b32 v224, 7, v2')
    k('v_bfe_u32 v225, v2, 3, 1')
    k('v_lshrrev_b32 v226, 4, v2')
    k('v_lshlrev_b32 v227, 4, v226')
    k('v_lshl_add_u32 v227, v225, 3, v227')
    k('v_mul_u32_u24 v227, 3072, v227')
    k('v_lshl_add_u32 v227, v224, 4, v227')
    k(f's_mul_i32 s58, s{S_W}, {64*3072}')
    k('s_lshl_b32 s59, s57, 8')
    k('s_add_u32 s58, s58, s59')
    for j in range(8):
        for ch in range(2):
            k(f'buffer_load_dwordx4 {vr(WQR+32*ch+4*j,4)}, v227, s[60:63], s58 offen offset:{128*ch}')
        if j < 7: k('s_add_u32 s58, s58, 3072')

def wq_finish(k):
    k('v_lshlrev_b32 v228, 12, v226')
    k('v_lshrrev_b32 v229, 2, v224')
    k('v_lshl_add_u32 v228, v229, 10, v228')
    k('v_lshl_add_u32 v228, v225, 9, v228')
    k('v_and_b32 v229, 3, v224')
    k('v_lshl_add_u32 v228, v229, 7, v228')
    k(f's_lshl_b32 s58, s{S_W}, 14')
    k(f's_add_u32 s58, s58, {LDS_WQ}')
    k('v_add_u32 v228, s58, v228')
    k('v_bfe_u32 v229, v224, 1, 1')
    k('v_lshl_or_b32 v229, v229, 2, v226')
    k('v_lshlrev_b32 v229, 4, v229')
    for c in range(8):
        k(f'v_xor_b32 v{230+c}, {16*c}, v229')
        k(f'v_add_u32 v{230+c}, v{230+c}, v228')
    k('s_mov_b32 s58, 0x05040100')
    k('s_mov_b32 s59, 0x07060302')
    for ch in range(2):
        k(f's_waitcnt vmcnt(0)' if ch == 0 else 's_nop 0')
        R = WQR + 32*ch
        for c in range(8):
            for d in range(4):
                k(f'v_perm_b32 v{192+4*c+d}, v{R+4*(2*d+1)+(c>>1)}, v{R+4*(2*d)+(c>>1)}, s{58+(c&1)}')
        for c in range(8):
            k(f'ds_write_b128 v{230+c}, {vr(192+4*c,4)} offset:{2048*ch}')

def gen_p1(k):
    k(f's_cmp_ge_u32 s{S_ID}, 192')
    k('s_cbranch_scc1 P1_H')
    k('s_mov_b32 s37, 0')
    k(f's_cmp_ge_u32 s{S_ID}, 64')
    k('s_cbranch_scc1 P1_NC')
    k(f's_lshr_b32 s20, s{S_ID}, 4')
    k(f's_and_b32 s21, s{S_ID}, 15')
    k('s_branch P1_GEMV')
    k.label('P1_NC')
    k(f's_cmp_ge_u32 s{S_ID}, 128')
    k('s_cbranch_scc1 P1_NC2')
    k(f's_sub_u32 s22, s{S_ID}, 64')
    k('s_lshr_b32 s20, s22, 4')
    k('s_and_b32 s21, s22, 15')
    k('s_add_u32 s21, s21, 24')
    k('s_branch P1_GEMV')
    k.label('P1_NC2')
    k(f's_sub_u32 s22, s{S_ID}, 128')
    k('s_lshr_b32 s20, s22, 4')
    k('s_and_b32 s21, s22, 15')
    k('s_cmp_ge_u32 s21, 8')
    k('s_cselect_b32 s23, 32, 16')
    k('s_add_u32 s21, s21, s23')
    k('s_branch P1_GEMV')

    k.label('P1_GEMV')
    srd(k, 8, S_WMOD, 0, 512*6144)
    srd(k, 12, S_C, 0, 1024)
    k('v_lshrrev_b32 v4, 3, v2')
    k('v_and_b32 v5, 7, v2')
    k('v_mul_u32_u24 v6, 6144, v4')
    k('v_lshl_add_u32 v6, v5, 4, v6')
    k('v_lshlrev_b32 v7, 1, v4')
    k('s_lshl_b32 s22, s20, 7')
    k(f's_lshl_b32 s23, s{S_W}, 4')
    k('s_add_u32 s22, s22, s23')
    k('s_lshl_b32 s23, s22, 1')
    k('buffer_load_ushort v16, v7, s[12:15], s23 offen')
    k('buffer_load_ushort v17, v7, s[12:15], s23 offen offset:16')
    k('s_mul_i32 s22, s22, 6144')
    k('s_lshl_b32 s23, s21, 7')
    k('s_add_u32 s22, s22, s23')
    k('buffer_load_dwordx4 v[20:23], v6, s[8:11], s22 offen')
    k(f's_add_u32 s22, s22, {8*6144}')
    k('buffer_load_dwordx4 v[24:27], v6, s[8:11], s22 offen')
    stamp(k, 40)
    k('v_lshrrev_b32 v56, 4, v0')
    k('v_lshlrev_b32 v56, 8, v56')
    k('v_lshl_add_u32 v56, v5, 5, v56')
    k('v_lshlrev_b32 v57, 2, v2')
    k('s_waitcnt vmcnt(2)')
    for m in range(2):
        k(f'v_lshlrev_b32 v{16+m}, 16, v{16+m}')
        k(f'v_mul_f32 v{18+m}, {hex(f2u(-LOG2E))}, v{16+m}')
    for m in range(2): k(f'v_exp_f32 v{18+m}, v{18+m}')
    for m in range(2): k(f'v_add_f32 v{18+m}, 1.0, v{18+m}')
    for m in range(2): k(f'v_rcp_f32 v{18+m}, v{18+m}')
    for m in range(2): k(f'v_mul_f32 v{16+m}, v{16+m}, v{18+m}')
    for m in range(2): k(f'v_cvt_pk_bf16_f32 v{16+m}, v{16+m}, v{16+m}')
    for m in range(2): k(f'v_lshlrev_b32 v{16+m}, 16, v{16+m}')
    k('s_waitcnt vmcnt(0)')
    stamp(k, 42)
    A = 48
    for d in range(4):
        k(f'v_lshlrev_b32 v{58+2*d}, 16, v{20+d}')
        k(f'v_and_b32 v{58+2*d+1}, 0xffff0000, v{20+d}')
    for e in range(8): k(f'v_mul_f32 v{A+e}, v{58+e}, v16')
    for d in range(4):
        k(f'v_lshlrev_b32 v{58+2*d}, 16, v{24+d}')
        k(f'v_and_b32 v{58+2*d+1}, 0xffff0000, v{24+d}')
    for e in range(8): k(f'v_fmac_f32 v{A+e}, v{58+e}, v17')
    for e in range(8):
        k(f'v_add_f32_dpp v{A+e}, v{A+e}, v{A+e} row_ror:8 row_mask:0xf bank_mask:0xf')
    k(f'ds_write_b128 v56, {vr(A,4)}')
    k(f'ds_write_b128 v56, {vr(A+4,4)} offset:16')
    k('s_waitcnt lgkmcnt(0)')
    k('s_barrier')
    k(f's_cmp_eq_u32 s{S_W}, 0')
    k('s_cbranch_scc0 P1_GPUB')
    for p in range(32): k(f'ds_read_b32 v{64+p}, v57 offset:{256*p}')
    get_nonce(k)
    k('s_waitcnt lgkmcnt(0)')
    for st in (16, 8, 4, 2, 1):
        for p in range(st): k(f'v_add_f32 v{64+p}, v{64+p}, v{64+p+st}')
    k('s_cmp_lt_u32 s21, 16')
    k('s_cbranch_scc0 P1_GPLAIN')
    srd(k, 8, S_WS, WS_MODT, SZ_MODT)
    k(f'v_mov_b32 v65, s{S_NONCE}')
    k('s_lshl_b32 s22, s20, 13')
    k('s_lshl_b32 s23, s21, 9')
    k('s_add_u32 s22, s22, s23')
    k('v_lshlrev_b32 v57, 3, v2')
    k(f'buffer_store_dwordx2 v[64:65], v57, s[8:11], s22 offen{SC}')
    k('s_branch P1_GPUB')
    k.label('P1_GPLAIN')
    srd(k, 8, S_WS, WS_MODP, SZ_MODP)
    k(f's_mul_i32 s22, s20, {3072*4}')
    k('s_lshl_b32 s23, s21, 8')
    k('s_add_u32 s22, s22, s23')
    k(f'buffer_store_dword v64, v57, s[8:11], s22 offen{SC}')
    k('s_mul_i32 s22, s20, 48')
    k('s_add_u32 s22, s22, s21')
    k(f's_add_u32 s22, s22, {F_G}')
    publish0(k, 22)
    k.label('P1_GPUB')
    stamp(k, 1)
    wq_loads(k)
    wq_finish(k)
    k('s_branch P1_DONE')

    k.label('P1_H')
    k(f's_cmp_ge_u32 s{S_W}, 4')
    k('s_cbranch_scc0 P1_H4')
    k('s_branch P1_DONE')
    k.label('P1_H4')
    LC = 24576 + 16
    k(f's_sub_u32 s20, s{S_ID}, 192')
    srd(k, 8, S_X, 0, 2048*1024)
    k('v_and_b32 v4, 31, v2')
    k('v_lshrrev_b32 v5, 5, v2')
    k('v_lshlrev_b32 v6, 10, v4')
    k('v_lshl_add_u32 v6, v5, 4, v6')
    k(f's_lshl_b32 s21, s{S_W}, 8')
    k('s_lshl_b32 s22, s20, 15')
    k('s_add_u32 s21, s21, s22')
    X = 8
    for s_ in range(8):
        k(f'buffer_load_dwordx4 {vr(X+4*s_,4)}, v6, s[8:11], s21 offen offset:{32*s_}')
    k('v_mov_b32 v44, 0')
    k(f'global_load_dword v45, v44, s[{S_DBG}:{S_DBG+1}] sc1')
    F = 64
    for i in range(4): k(f'v_mov_b32 v{40+i}, 0')
    k('v_lshlrev_b32 v46, 3, v0')
    k('v_lshlrev_b32 v47, 3, v4')
    for s_ in range(8):
        k(f's_waitcnt vmcnt({8-s_})')
        for d in range(4):
            k(f'v_lshlrev_b32 v{F+8*s_+2*d}, 16, v{X+4*s_+d}')
            k(f'v_and_b32 v{F+8*s_+2*d+1}, 0xffff0000, v{X+4*s_+d}')
        for d in range(4):
            k(f'v_add_f32 v40, v40, v{F+8*s_+2*d}')
            k(f'v_add_f32 v41, v41, v{F+8*s_+2*d+1}')
            k(f'v_fmac_f32 v42, v{F+8*s_+2*d}, v{F+8*s_+2*d}')
            k(f'v_fmac_f32 v43, v{F+8*s_+2*d+1}, v{F+8*s_+2*d+1}')
    k('v_add_f32 v40, v40, v41')
    k('v_add_f32 v41, v42, v43')
    k('s_mov_b32 s23, 0')
    k.label('P1_HN')
    k('s_waitcnt vmcnt(0)')
    k('v_readfirstlane_b32 s22, v45')
    k('s_add_u32 s23, s23, 1')
    k('s_cmp_gt_u32 s23, 0x4000')
    k('s_cbranch_scc1 P1_HNOK')
    k('s_cmp_lg_u32 s22, 0')
    k('s_cbranch_scc1 P1_HNOK')
    k(f'global_load_dword v45, v44, s[{S_DBG}:{S_DBG+1}] sc1')
    k('s_branch P1_HN')
    k.label('P1_HNOK')
    k(f's_mov_b32 s{S_NONCE}, s22')
    def lsync(stage):
        L = uid('LS')
        k('s_waitcnt lgkmcnt(0)')
        k(f's_add_u32 s24, s{S_NONCE}, {stage}')
        k(f's_lshl_b32 s25, s{S_W}, 2')
        k(f's_add_u32 s25, s25, {LC + 16*stage}')
        k('v_mov_b32 v48, s25')
        k('v_mov_b32 v49, s24')
        k('ds_write_b32 v48, v49')
        k('v_and_b32 v48, 3, v2')
        k('v_lshlrev_b32 v48, 2, v48')
        k(f'v_add_u32 v48, {LC + 16*stage}, v48')
        k('s_mov_b32 s25, 0')
        k.label(L)
        k('ds_read_b32 v49, v48')
        k('s_add_u32 s25, s25, 1')
        k('s_cmp_gt_u32 s25, 0x40000')
        k(f's_cbranch_scc1 {L}_E')
        k('s_waitcnt lgkmcnt(0)')
        k('v_cmp_ne_u32 vcc, s24, v49')
        k('s_nop 1')
        k('s_cmp_lg_u64 vcc, 0')
        k(f's_cbranch_scc1 {L}')
        k.label(f'{L}_E')
    k('ds_write_b64 v46, v[40:41]')
    srd(k, 8, S_WS, WS_MODT, SZ_MODT)
    G0 = 128
    def issue_poll():
        for half in range(2):
            for vec in range(2):
                for rq in range(4):
                    k(f's_mov_b32 s26, {vec*4096 + rq*8192 + half*2048}')
                    k(f'buffer_load_dwordx2 {vr(G0+16*half+8*vec+2*rq,2)}, v46, s[8:11], s26 offen{SC}')
    lsync(1)
    issue_poll()
    for i in range(8): k(f'ds_read_b64 {vr(160+2*i,2)}, v47 offset:{256*i}')
    k('s_waitcnt lgkmcnt(0)')
    for st in (4, 2, 1):
        for i in range(st):
            k(f'v_add_f32 v{160+2*i}, v{160+2*i}, v{160+2*(i+st)}')
            k(f'v_add_f32 v{161+2*i}, v{161+2*i}, v{161+2*(i+st)}')
    k(f'v_mul_f32 v40, {hex(f2u(1/512))}, v160')
    k(f'v_mul_f32 v41, {hex(f2u(1/512))}, v161')
    k('v_fma_f32 v41, -v40, v40, v41')
    k('v_max_f32 v41, 0, v41')
    k(f'v_add_f32 v41, {hex(f2u(1e-5))}, v41')
    k('v_rsq_f32 v41, v41')
    k('s_nop 0')
    k('v_mul_f32 v40, v40, v41')
    k('v_sub_f32 v40, 0, v40')
    for i in range(64): k(f'v_fma_f32 v{F+i}, v{F+i}, v41, v40')
    stamp(k, 45)
    k('s_mov_b32 s23, 0')
    k('s_branch P1_HCHK')
    k.label('P1_HPOLL')
    issue_poll()
    k.label('P1_HCHK')
    k('s_add_u32 s23, s23, 1')
    k('s_cmp_gt_u32 s23, 0x4000')
    k('s_cbranch_scc1 P1_HGOT')
    k('s_waitcnt vmcnt(0)')
    k(f'v_xor_b32 v42, s{S_NONCE}, v{G0+1}')
    for i in range(1, 16): k(f'v_xor_b32 v{160+i}, s{S_NONCE}, v{G0+1+2*i}')
    for i in range(1, 15, 2): k(f'v_or3_b32 v42, v42, v{160+i}, v{160+i+1}')
    k('v_or_b32 v42, v42, v175')
    k('v_cmp_ne_u32 vcc, 0, v42')
    k('s_nop 1')
    k('s_cmp_lg_u64 vcc, 0')
    k('s_cbranch_scc1 P1_HPOLL')
    k.label('P1_HGOT')
    stamp(k, 2)
    k('v_lshlrev_b32 v46, 2, v0')
    for half in range(2):
        b = G0 + 16*half
        for vec in range(2):
            bb = b + 8*vec
            k(f'v_add_f32 v{bb}, v{bb}, v{bb+2}')
            k(f'v_add_f32 v{bb+4}, v{bb+4}, v{bb+6}')
        for vec in range(2): k(f'v_add_f32 v{b+8*vec}, v{b+8*vec}, v{b+8*vec+4}')
        k(f'v_cvt_pk_bf16_f32 v{b}, v{b}, v{b+8}')
        k(f'v_lshlrev_b32 v{b+1}, 16, v{b}')
        k(f'v_and_b32 v{b+2}, 0xffff0000, v{b}')
        k(f'v_add_f32 v{b+2}, 1.0, v{b+2}')
        k(f'v_cvt_pk_bf16_f32 v{b+2}, v{b+2}, v{b+2}')
        k(f'v_lshlrev_b32 v{b+2}, 16, v{b+2}')
        k(f'ds_write_b32 v46, v{b+1} offset:{4096+1024*half}')
        k(f'ds_write_b32 v46, v{b+2} offset:{6144+1024*half}')
    lsync(2)
    stamp(k, 48)
    k(f's_lshl_b32 s22, s{S_W}, 9')
    k('v_lshlrev_b32 v46, 5, v5')
    k('v_add_u32 v46, s22, v46')
    srd(k, 8, S_WS, WS_H, SZ_H)
    k(f's_lshl_b32 s21, s{S_W}, 13')
    k('s_lshl_b32 s22, s20, 15')
    k('s_add_u32 s21, s21, s22')
    k('s_add_u32 s22, s21, 4096')
    SA, CA = 128, 144
    def rdm(s_):
        o = 16*(s_ & 1)*1 * 0
        b = 32*(s_ & 1)
        k(f'ds_read_b128 {vr(SA+b,4)}, v46 offset:{4096+64*s_}')
        k(f'ds_read_b128 {vr(SA+b+4,4)}, v46 offset:{4096+64*s_+16}')
        k(f'ds_read_b128 {vr(SA+b+8,4)}, v46 offset:{6144+64*s_}')
        k(f'ds_read_b128 {vr(SA+b+12,4)}, v46 offset:{6144+64*s_+16}')
    rdm(0)
    for s_ in range(8):
        b = 32*(s_ & 1)
        if s_ < 7: rdm(s_+1)
        k(f's_waitcnt lgkmcnt({4 if s_ < 7 else 0})')
        for j in range(8): k(f'v_fma_f32 v{F+8*s_+j}, v{F+8*s_+j}, v{SA+b+8+j}, v{SA+b+j}')
        for d in range(4): k(f'v_cvt_pk_bf16_f32 v{X+4*s_+d}, v{F+8*s_+2*d}, v{F+8*s_+2*d+1}')
        k(f'buffer_store_dwordx4 {vr(X+4*s_,4)}, v3, s[8:11], s{21 if s_ < 4 else 22} offen offset:{1024*(s_&3)}{SC}')
    k('s_waitcnt vmcnt(0)')
    lsync(3)
    k(f's_cmp_eq_u32 s{S_W}, 0')
    k('s_cbranch_scc0 P1_DONE')
    k(f's_add_u32 s22, s20, {F_H}')
    wave_publish(k, 22)
    stamp(k, 47)
    k.label('P1_DONE')
    stamp(k, 3)


def gen_uprime_loads(k):
    k(f's_sub_u32 s40, s{S_ID}, 192')
    k('s_mul_i32 s40, s40, 6')
    k(f's_add_u32 s40, s40, s{S_W}')
    k(f's_cmp_ge_u32 s{S_W}, 6')
    k('s_cselect_b32 s40, 1000, s40')
    k('s_cmp_ge_u32 s40, 352')
    k('s_cbranch_scc1 UP_END')
    k('s_and_b32 s43, s40, 1')
    k('s_bfe_u32 s44, s40, 0x30001')
    k('s_lshr_b32 s41, s40, 4')
    R = 64
    k('s_cmp_eq_u32 s43, 0')
    k(f's_cselect_b32 s16, s{S_W1}, s{S_W3}')
    k(f's_cselect_b32 s17, s{S_W1+1}, s{S_W3+1}')
    k(f's_mov_b32 s18, {512*2752}')
    k('s_mov_b32 s19, 0x20000')
    k('v_and_b32 v10, 7, v2')
    k('v_bfe_u32 v11, v2, 3, 1')
    k('v_lshrrev_b32 v12, 4, v2')
    k('v_lshlrev_b32 v13, 4, v12')
    k('v_lshl_add_u32 v13, v11, 2, v13')
    k('v_mul_u32_u24 v14, 2752, v13')
    k('v_lshl_add_u32 v14, v10, 4, v14')
    k('s_lshl_b32 s45, s44, 6')
    k('s_mul_i32 s46, s45, 2752')
    k('s_lshl_b32 s47, s41, 7')
    k('s_add_u32 s46, s46, s47')
    for j in range(8):
        k(f'buffer_load_dwordx4 {vr(R+4*j,4)}, v14, s[16:19], s46 offen')
        if j < 7: k(f's_add_u32 s46, s46, {2752*(5 if j == 3 else 1)}')

def gen_uprime(k, LDSB):
    R = 64
    k('v_mov_b32 v20, 0')
    k('v_lshrrev_b32 v21, 4, v2')
    k('v_mul_u32_u24 v21, 48, v21')
    k('v_and_b32 v22, 15, v2')
    k(f'v_add3_u32 v21, v21, v22, {F_G+24}')
    k('v_lshlrev_b32 v21, 7, v21')
    k('s_mov_b32 s48, 0')
    k.label('UP_POLL')
    k(f'buffer_load_dword v23, v21, s[{S_FLG}:{S_FLG+3}], 0 offen sc1')
    k('s_add_u32 s48, s48, 1')
    k('s_cmp_gt_u32 s48, 0x4000')
    k('s_cbranch_scc1 UP_GO')
    k('s_waitcnt vmcnt(0)')
    k(f'v_cmp_ne_u32 vcc, s{S_NONCE}, v23')
    k('s_nop 1')
    k('s_cmp_lg_u64 vcc, 0')
    k('s_cbranch_scc1 UP_POLL')
    k.label('UP_GO')
    srd(k, 8, S_WS, WS_MODP, SZ_MODP)
    srd(k, 28, S_WS, WS_W13, SZ_W13)
    k('v_lshlrev_b32 v15, 2, v13')
    k('s_lshl_b32 s46, s45, 2')
    PB = 96
    for vec, idx in ((0, 3), (1, 4)):
        for rq in range(4):
            k(f's_add_u32 s47, s46, {idx*2048 + rq*3072*4}')
            k(f'buffer_load_dwordx4 {vr(PB+32*vec+8*rq,4)}, v15, s[8:11], s47 offen{SC}')
            k(f'buffer_load_dwordx4 {vr(PB+32*vec+8*rq+4,4)}, v15, s[8:11], s47 offen offset:32{SC}')
    k('v_lshrrev_b32 v16, 1, v10')
    k('v_and_b32 v17, 1, v16')
    k('v_lshl_or_b32 v17, v17, 2, v12')
    k('v_lshlrev_b32 v17, 4, v17')
    k('v_lshlrev_b32 v16, 11, v16')
    k('v_lshl_add_u32 v16, v12, 9, v16')
    k('v_lshl_add_u32 v16, v11, 8, v16')
    k('v_and_b32 v18, 1, v10')
    k('v_lshl_add_u32 v16, v18, 7, v16')
    k(f's_lshl_b32 s46, s{S_W}, 13')
    k(f's_add_u32 s46, s46, {LDSB}')
    k('v_add_u32 v16, s46, v16')
    k('s_waitcnt vmcnt(0)')
    SB, CB = 32, 40
    for vec, dst in ((0, SB), (1, CB)):
        b = PB + 32*vec
        for j in range(8):
            k(f'v_add_f32 v{b+j}, v{b+j}, v{b+8+j}')
            k(f'v_add_f32 v{b+16+j}, v{b+16+j}, v{b+24+j}')
        for j in range(8): k(f'v_add_f32 v{b+j}, v{b+j}, v{b+16+j}')
        for j in range(8): k(f'v_cvt_pk_bf16_f32 v{b+j}, v{b+j}, v{b+j}')
        for j in range(8): k(f'v_lshlrev_b32 v{dst+j}, 16, v{b+j}')
    for j in range(8): k(f'v_add_f32 v{CB+j}, 1.0, v{CB+j}')
    for j in range(8): k(f'v_cvt_pk_bf16_f32 v{CB+j}, v{CB+j}, v{CB+j}')
    for j in range(8): k(f'v_lshlrev_b32 v{CB+j}, 16, v{CB+j}')
    F = 96
    for j in range(8):
        for d in range(4):
            k(f'v_lshlrev_b32 v{F+8*j+2*d}, 16, v{R+4*j+d}')
            k(f'v_and_b32 v{F+8*j+2*d+1}, 0xffff0000, v{R+4*j+d}')
    BP, CS = 48, 56
    for c in range(8): k(f'v_mul_f32 v{BP+c}, v{F+c}, v{SB}')
    for j in range(1, 8):
        for c in range(8): k(f'v_fmac_f32 v{BP+c}, v{F+8*j+c}, v{SB+j}')
    for j in range(8):
        for c in range(8): k(f'v_mul_f32 v{F+8*j+c}, v{F+8*j+c}, v{CB+j}')
    OUT = 160
    for c in range(8):
        for d in range(4): k(f'v_cvt_pk_bf16_f32 v{OUT+4*c+d}, v{F+16*d+c}, v{F+16*d+8+c}')
    for c in range(8):
        k(f'v_xor_b32 v18, {16*c}, v17')
        k('v_add_u32 v18, v18, v16')
        k(f'ds_write_b128 v18, {vr(OUT+4*c,4)}')
    k('s_mov_b32 s47, 0x3f803f80')
    for c in range(8):
        k(f'v_dot2_f32_bf16 v{CS+c}, v{OUT+4*c}, s47, 0')
    for d in range(1, 4):
        for c in range(8):
            k(f'v_dot2_f32_bf16 v{CS+c}, v{OUT+4*c+d}, s47, v{CS+c}')
    k('v_lshrrev_b32 v18, 5, v2')
    k('v_and_b32 v19, 15, v2')
    k('v_bfe_u32 v24, v2, 4, 1')
    k('v_lshlrev_b32 v24, 8, v24')
    k('v_lshl_add_u32 v24, v18, 9, v24')
    k('v_add_u32 v24, s46, v24')
    k('s_waitcnt lgkmcnt(0)')
    for i in range(8):
        ul, s2 = i >> 1, 2*(i & 1)
        k(f'v_or_b32 v25, {s2 | ((ul & 1) << 2)}, v18')
        k('v_xor_b32 v25, v25, v19')
        k('v_lshl_add_u32 v25, v25, 4, v24')
        k(f'ds_read_b128 {vr(F+4*i,4)}, v25 offset:{ul*2048 + s2*512}')
    for e in range(16):
        k(f'v_add_f32_dpp v{BP+e}, v{BP+e}, v{BP+e} row_ror:8 row_mask:0xf bank_mask:0xf')
    for op in ('v_permlane16_swap_b32', 'v_permlane32_swap_b32'):
        for e in range(16): k(f'v_mov_b32 v{OUT+e}, v{BP+e}')
        for e in range(16): k(f'{op} v{BP+e}, v{OUT+e}')
        for e in range(16): k(f'v_add_f32 v{BP+e}, v{BP+e}, v{OUT+e}')
    k('v_lshlrev_b32 v26, 10, v18')
    k('v_bfe_u32 v27, v2, 4, 1')
    k('v_lshl_add_u32 v26, v27, 9, v26')
    k('v_lshl_add_u32 v26, v19, 4, v26')
    k(f's_mul_i32 s46, s41, {4*U_STRIDE}')
    k('s_lshl_b32 s47, s44, 12')
    k('s_add_u32 s46, s46, s47')
    k('s_lshl_b32 s47, s43, 8')
    k('s_add_u32 s46, s46, s47')
    k('s_waitcnt lgkmcnt(0)')
    for i in range(8):
        ul, s2 = i >> 1, 2*(i & 1)
        k(f's_add_u32 s47, s46, {ul*U_STRIDE}')
        k(f'buffer_store_dwordx4 {vr(F+4*i,4)}, v26, s[28:31], s47 offen offset:{s2*1024}{SC}')
    k(f's_lshl_b32 s46, s{S_W}, 13')
    k(f's_add_u32 s46, s46, {LDSB}')
    k('v_lshlrev_b32 v18, 6, v10')
    k('v_add_u32 v18, s46, v18')
    for q in range(4): k(f'ds_write_b128 v18, {vr(BP+4*q,4)} offset:{16*q}')
    k('v_lshrrev_b32 v19, 3, v2')
    k('v_lshlrev_b32 v19, 6, v19')
    k('v_and_b32 v24, 7, v2')
    k('v_lshl_add_u32 v19, v24, 2, v19')
    k('v_add_u32 v19, s46, v19')
    k('s_waitcnt lgkmcnt(0)')
    k('ds_read_b32 v24, v19')
    k('ds_read_b32 v25, v19 offset:32')
    srd(k, 8, S_WS, WS_CSB, SZ_CSB)
    k('s_lshl_b32 s47, s41, 6')
    k('v_add_u32 v19, s47, v2')
    k('v_cmp_gt_u32 vcc, 1376, v19')
    k('s_mul_i32 s47, s43, 1376')
    k('v_add_u32 v19, s47, v19')
    k('v_lshlrev_b32 v19, 2, v19')
    k('v_mov_b32 v20, 0x40000000')
    k('v_cndmask_b32 v19, v20, v19, vcc')
    k(f's_mul_i32 s47, s44, {2*2752*4}')
    k('s_waitcnt lgkmcnt(0)')
    k(f'buffer_store_dword v25, v19, s[8:11], s47 offen{SC}')
    k(f's_add_u32 s47, s47, {2752*4}')
    k(f'buffer_store_dword v24, v19, s[8:11], s47 offen{SC}')
    k('s_waitcnt vmcnt(0)')
    k(f's_add_u32 s40, s40, {F_W13}')
    k('s_lshl_b32 s40, s40, 7')
    k('v_mov_b32 v20, s40')
    k(f'v_mov_b32 v21, s{S_NONCE}')
    k('s_mov_b64 exec, 1')
    k(f'buffer_store_dword v21, v20, s[{S_FLG}:{S_FLG+3}], 0 offen sc1')
    k('s_mov_b64 exec, -1')
    k.label('UP_END')


def gen_tlate(k, LDSB, LCNT):
    k(f's_mov_b32 s25, s{S_ID}')
    k('s_cmp_ge_u32 s25, 59')
    k('s_cbranch_scc1 TL_END')
    k('s_cmp_ge_u32 s25, 16')
    k('s_cbranch_scc1 TL_W2')
    srd(k, 16, S_WO, 0, 512*1024)
    srd(k, 28, S_WS, WS_WO, SZ_WO)
    k(f's_mov_b32 s32, {32*1024}')
    k(f's_add_u32 s35, s25, {F_WO}')
    k('s_branch TL_GO')
    k.label('TL_W2')
    k('s_sub_u32 s25, s25, 16')
    srd(k, 16, S_W2, 0, 1376*1024)
    srd(k, 28, S_WS, WS_W2, SZ_W2)
    k(f's_mov_b32 s32, {86*1024}')
    k(f's_add_u32 s35, s25, {F_W2}')
    k.label('TL_GO')
    k(f's_sub_u32 s36, s{S_W}, 4')
    k('v_and_b32 v8, 31, v2')
    k('v_lshrrev_b32 v9, 5, v2')
    k('v_lshlrev_b32 v10, 12, v9')
    k('v_lshl_add_u32 v10, v8, 3, v10')
    k('s_lshl_b32 s39, s36, 8')
    k('v_add_u32 v10, s39, v10')
    k('s_lshl_b32 s38, s25, 15')
    R = 64
    for rnd in range(2):
        for j in range(8):
            row = 16*rnd + (j % 4) + 8*(j // 4)
            k(f's_add_u32 s39, s38, {row*1024}')
            k(f'buffer_load_dwordx2 {vr(R+16*rnd+2*j,2)}, v10, s[16:19], s39 offen')
    k('v_lshrrev_b32 v11, 3, v8')
    k('v_lshlrev_b32 v11, 10, v11')
    k('v_and_b32 v12, 7, v8')
    k('v_lshl_add_u32 v11, v12, 6, v11')
    k('v_lshl_add_u32 v11, v9, 9, v11')
    k('s_lshl_b32 s38, s36, 12')
    k(f's_add_u32 s38, s38, {LDSB}')
    k('v_add_u32 v11, s38, v11')
    k('v_bfe_u32 v13, v8, 2, 1')
    k('v_lshl_or_b32 v13, v9, 1, v13')
    k('v_lshlrev_b32 v13, 4, v13')
    k('v_bfe_u32 v14, v2, 4, 1')
    k('v_lshrrev_b32 v15, 5, v2')
    k('v_lshl_or_b32 v14, v15, 1, v14')
    k('v_lshlrev_b32 v14, 4, v14')
    k('v_xor_b32 v12, v14, v3')
    k('v_add_u32 v12, s38, v12')
    for c in range(4):
        k(f'v_xor_b32 v{16+c}, {16*c}, v13')
        k(f'v_add_u32 v{16+c}, v{16+c}, v11')
    k('s_lshl_b32 s33, s25, 11')
    k('s_lshl_b32 s38, s36, 2')
    k('s_mul_i32 s38, s38, s32')
    k('s_add_u32 s33, s33, s38')
    k('s_mov_b32 s38, 0x05040100')
    k('s_mov_b32 s39, 0x07060302')
    OUT = 48
    for rnd in range(2):
        k(f's_waitcnt vmcnt({8 if rnd == 0 else 4})')
        for c in range(4):
            for d in range(4):
                k(f'v_perm_b32 v{OUT+4*c+d}, v{R+16*rnd+2*(2*d+1)+(c>>1)}, v{R+16*rnd+2*(2*d)+(c>>1)}, s{38+(c&1)}')
        for c in range(4): k(f'ds_write_b128 v{16+c}, {vr(OUT+4*c,4)}')
        k('s_waitcnt lgkmcnt(0)')
        for f in range(4): k(f'ds_read_b128 {vr(96+16*rnd+4*f,4)}, v12 offset:{1024*f}')
        k('s_mov_b32 s40, s33')
        for f in range(4):
            k(f's_waitcnt lgkmcnt({3-f})')
            k(f'buffer_store_dwordx4 {vr(96+16*rnd+4*f,4)}, v3, s[28:31], s40 offen offset:{1024*rnd}{SC}')
            if f < 3: k('s_add_u32 s40, s40, s32')
    k('s_waitcnt vmcnt(0)')
    k(f'v_mov_b32 v4, {LCNT}')
    k('v_mov_b32 v5, 1')
    k('s_mov_b64 exec, 1')
    k('ds_add_rtn_u32 v6, v4, v5')
    k('s_mov_b64 exec, -1')
    k('s_waitcnt lgkmcnt(0)')
    k('v_readfirstlane_b32 s98, v6')
    k('s_cmp_eq_u32 s98, 3')
    k('s_cbranch_scc0 TL_END')
    wave_publish(k, 35)
    k.label('TL_END')
```

```python
from pk_common import *
from pk_p1 import gen_uprime, gen_uprime_loads, gen_tlate

LDS_CNT = 24576
LDS_WQ = 32768
def gen_p2(k):
    k(f's_cmp_ge_u32 s{S_ID}, 192')
    k('s_cbranch_scc1 P2_UP')
    k(f'v_mov_b32 v4, {LDS_CNT}')
    k('v_mov_b32 v5, 0')
    k('ds_write_b32 v4, v5')
    k('ds_write_b32 v4, v5 offset:8')
    srd(k, 8, S_WS, WS_H, SZ_H)
    srd(k, 28, S_WS, WS_Q, 3*SZ_Q)
    def idx_h(k):
        k('s_lshl_b32 s98, s56, 2')
        k(f's_add_u32 s98, s98, {F_H}')
        k('v_and_b32 v250, 3, v2')
        k('v_add_u32 v250, s98, v250')
    stamp(k, 4)
    wait_flags(k, idx_h, pre='s_waitcnt lgkmcnt(0)', share_nonce=LDS_CNT+4)
    stamp(k, 5)
    k(f's_cmp_ge_u32 s{S_W}, 4')
    k('s_cbranch_scc1 P2_HELP')
    k('s_lshl_b32 s20, s56, 2')
    k(f's_add_u32 s23, s20, s{S_W}')
    k('s_lshl_b32 s24, s23, 15')
    XR, WR, ACC = 64, 16, 112
    NRING = 12
    k('v_bfe_u32 v4, v2, 4, 1')
    k('v_lshlrev_b32 v4, 2, v4')
    k('v_xor_b32 v4, v4, v2')
    for q in range(4):
        k(f'v_xor_b32 v{8+q}, {q}, v4')
        k(f'v_lshlrev_b32 v{8+q}, 4, v{8+q}')
        k(f'v_add_u32 v{8+q}, {LDS_WQ}, v{8+q}')
        k(f'v_add_u32 v{12+q}, 0x10000, v{8+q}')
    def mainloop(vtype):
        vm = VM(k)
        k('s_mov_b32 s25, s24')
        def ldx(s):
            k(f'buffer_load_dwordx4 {vr(XR+4*(s%NRING),4)}, v3, s[8:11], s25 offen offset:{1024*(s&3)}{SC}')
            if (s & 3) == 3: k('s_add_u32 s25, s25, 4096')
            vm.issue(('x', s))
        PF = 10
        for s in range(PF): ldx(s)
        def rd(s):
            st = s & 1
            for u in range(4):
                o = (s*4+u)*1024
                k(f'ds_read_b128 {vr(WR+16*st+4*u,4)}, v{8+(s&3)} offset:{o}' if o < 65536 else
                  f'ds_read_b128 {vr(WR+16*st+4*u,4)}, v{12+(s&3)} offset:{o-65536}')
        rd(0)
        NST = 32
        for s in range(NST):
            st = s & 1
            if s + 1 < NST: rd(s+1)
            if s + PF < NST: ldx(s + PF)
            vm.wait(('x', s))
            k(f's_waitcnt lgkmcnt({4 if s+1 < NST else 0})')
            xf = vr(XR+4*(s%NRING), 4)
            for u in range(4):
                acc = vr(ACC+16*u, 16); w = vr(WR+16*st+4*u, 4)
                cin = acc if s > 0 else '0'
                if not vtype: k(f'{MF} {acc}, {w}, {xf}, {cin}')
                else:         k(f'{MF} {acc}, {xf}, {w}, {cin}')
    k('s_cmp_ge_u32 s57, 8')
    k('s_cbranch_scc1 P2_V')
    mainloop(False)
    stamp(k, 6)
    k('s_and_b32 s25, s57, 3')
    k('s_lshl_b32 s25, s25, 19')
    k('s_lshr_b32 s26, s57, 2')
    k('s_lshl_b32 s26, s26, 21')
    k('s_add_u32 s25, s25, s26')
    k('s_lshl_b32 s26, s23, 10')
    k('s_add_u32 s25, s25, s26')
    k(f's_mov_b32 s98, {hex(QSCALE)}')
    k('s_cmp_lt_u32 s57, 4')
    k('s_cselect_b32 s98, s98, 1.0')
    for u in range(4):
        for r in range(16): k(f'v_mul_f32 v{ACC+16*u+r}, s98, v{ACC+16*u+r}')
        for d in range(8): k(f'v_cvt_pk_bf16_f32 v{XR+8*u+d}, v{ACC+16*u+2*d}, v{ACC+16*u+2*d+1}')
        for hh in range(2):
            k(f'buffer_store_dwordx4 {vr(XR+8*u+4*hh,4)}, v3, s[28:31], s25 offen{SC}')
            k('s_add_u32 s25, s25, 0x10000')
    k('s_branch P2_CPUB')
    k.label('P2_V')
    mainloop(True)
    k('s_and_b32 s25, s57, 3')
    k('s_lshl_b32 s25, s25, 19')
    k(f's_add_u32 s25, s25, {2*SZ_Q}')
    k('s_lshl_b32 s26, s23, 10')
    k('s_add_u32 s25, s25, s26')
    k('v_bfe_u32 v5, v2, 4, 1')
    k('v_lshlrev_b32 v5, 16, v5')
    k('v_lshrrev_b32 v6, 5, v2')
    k('v_lshl_add_u32 v5, v6, 8, v5')
    k('v_and_b32 v6, 15, v2')
    k('v_lshl_add_u32 v5, v6, 4, v5')
    for u in range(4):
        for d in range(8): k(f'v_cvt_pk_bf16_f32 v{XR+8*u+d}, v{ACC+16*u+2*d}, v{ACC+16*u+2*d+1}')
        k(f'buffer_store_dwordx4 {vr(XR+8*u,4)}, v5, s[28:31], s25 offen{SC}')
        k(f'buffer_store_dwordx4 {vr(XR+8*u+4,4)}, v5, s[28:31], s25 offen offset:512{SC}')
        k('s_add_u32 s25, s25, 0x20000')
    k.label('P2_CPUB')
    k('s_waitcnt vmcnt(0)')
    k(f'v_mov_b32 v4, {LDS_CNT}')
    k('v_mov_b32 v5, 1')
    k('s_mov_b64 exec, 1')
    k('ds_add_rtn_u32 v6, v4, v5')
    k('s_mov_b64 exec, -1')
    k('s_waitcnt lgkmcnt(0)')
    k('v_readfirstlane_b32 s98, v6')
    k('s_cmp_eq_u32 s98, 3')
    k('s_cbranch_scc0 P2_PUB')
    k('s_mul_i32 s22, s56, 12')
    k('s_add_u32 s22, s22, s57')
    k(f's_add_u32 s22, s22, {F_P2}')
    wave_publish(k, 22)
    k('s_branch P2_PUB')
    k.label('P2_HELP')
    gen_tlate(k, 8192, LDS_CNT+8)
    k('s_branch P2_PUB')
    k.label('P2_UP')
    k('v_mov_b32 v20, 0')
    k('s_mov_b32 s48, 0')
    k.label('P2_UPN')
    k(f'global_load_dword v22, v20, s[{S_DBG}:{S_DBG+1}] sc1')
    k('s_add_u32 s48, s48, 1')
    k('s_cmp_gt_u32 s48, 0x4000')
    k('s_cbranch_scc1 P2_UPG')
    k('s_waitcnt vmcnt(0)')
    k(f'v_readfirstlane_b32 s{S_NONCE}, v22')
    k('s_nop 1')
    k(f's_cmp_eq_u32 s{S_NONCE}, 0')
    k('s_cbranch_scc1 P2_UPN')
    k.label('P2_UPG')
    gen_uprime_loads(k)
    gen_uprime(k, 32768)
    k.label('P2_PUB')
    stamp(k, 7)

LDS_ONES = 131072
LDS_CMB  = 131072 + 5120
def gen_p3(k):
    L = 'P3'
    k(f's_and_b32 s6, s{S_ID}, 7')
    k(f's_lshr_b32 s7, s{S_ID}, 3')
    k('s_lshl_b32 s20, s6, 2')
    k('s_lshr_b32 s21, s7, 3')
    k('s_add_u32 s20, s20, s21')
    k('s_and_b32 s36, s7, 7')
    k('s_lshl_b32 s21, s36, 3')
    srd(k, 8, S_WS, WS_Q, 3*SZ_Q)
    srd(k, 12, S_WS, WS_O, SZ_Q)
    QF, KF, VF, S, O, CN, P = 4, 12, 20, 36, 68, 100, 132
    T0 = 148
    vK, vV, vVb, vInc = T0, T0+1, T0+2, T0+3
    t0, t1, t2, t3 = T0+4, T0+5, T0+6, T0+7
    k(f's_lshr_b32 s19, s{S_W}, 2')
    k(f's_and_b32 s22, s{S_W}, 3')
    k('s_lshl_b32 s22, s22, 1')
    k('s_add_u32 s21, s21, s22')
    k('s_add_u32 s28, s21, s19')
    k('s_xor_b32 s29, s19, 1')
    k('s_add_u32 s29, s21, s29')
    k(f'v_lshrrev_b32 v{t0}, 5, v2')
    k(f'v_lshlrev_b32 v{t0}, 8, v{t0}')
    k(f'v_and_b32 v{t1}, 15, v2')
    k(f'v_lshl_add_u32 v{t0}, v{t1}, 4, v{t0}')
    k(f'v_bfe_u32 v{t1}, v2, 4, 1')
    k(f'v_sub_u32 v{t2}, 1, v{t1}')
    k(f'v_lshlrev_b32 v{vInc}, 12, v{t2}')
    k('s_lshl_b32 s26, s19, 15')
    k(f's_add_u32 s26, s26, 0x10000')
    k(f'v_mul_lo_u32 v{t2}, v{t2}, s26')
    k(f'v_lshlrev_b32 v{t1}, 17, v{t1}')
    k(f'v_add3_u32 v{vVb}, v{t0}, v{t1}, v{t2}')
    k('s_lshl_b32 s26, s19, 15')
    k(f'v_add_u32 v{vK}, s26, v3')
    k(f'v_mov_b32 v{vV}, v{vVb}')
    for i in range(32): k(f'v_mov_b32 v{O+i}, 0')
    for i in range(4): k(f'v_mov_b32 v{P+8+4+i}, 0')
    for i in range(4): k(f'v_mov_b32 v{VF+8+4+i}, 0')
    def idx_p3(k):
        k('v_and_b32 v250, 15, v2')
        k('v_mul_u32_u24 v250, 12, v250')
        k('v_lshrrev_b32 v252, 4, v2')
        k('v_lshl_add_u32 v250, v252, 2, v250')
        k('s_lshr_b32 s98, s20, 3')
        k(f's_add_u32 s98, s98, {F_P2}')
        k('v_add_u32 v250, s98, v250')
        k(f'v_add_u32 v252, {F_WO-48}, v2')
        k('v_cmp_le_u32 vcc, 48, v2')
        k('s_nop 1')
        k('v_cndmask_b32 v250, v250, v252, vcc')
    def idx_ga(k):
        k('v_bfe_u32 v252, v2, 3, 2')
        k('v_mul_u32_u24 v252, 48, v252')
        k('v_and_b32 v253, 7, v2')
        k(f'v_add3_u32 v250, v252, v253, {F_G+16}')
    wait_flags(k, idx_p3, idxcode2=idx_ga)
    stamp(k, 8)
    k(f'v_and_b32 v{t0}, 31, v0')
    k(f'v_cmp_gt_u32 vcc, 2, v{t0}')
    k(f'v_mov_b32 v{t1}, 0x3f803f80')
    k(f'v_lshlrev_b32 v{t2}, 3, v0')
    k(f'v_cndmask_b32 v{t0}, 0, v{t1}, vcc')
    k(f'v_add_u32 v{t2}, {hex(LDS_ONES)}, v{t2}')
    k(f'v_mov_b32 v{t1}, v{t0}')
    k(f'ds_write_b64 v{t2}, v[{t0}:{t1}]')
    k(f'ds_write_b64 v{t2}, v[{t0}:{t1}] offset:1024')
    k('s_lshl_b32 s22, s20, 16')
    k('s_lshl_b32 s23, s28, 10')
    k('s_add_u32 s23, s23, s22')
    k(f'buffer_load_dwordx4 {vr(QF,4)}, v3, s[8:11], s23 offen{SC}')
    k('s_lshl_b32 s23, s29, 10')
    k('s_add_u32 s23, s23, s22')
    k(f'buffer_load_dwordx4 {vr(QF+4,4)}, v3, s[8:11], s23 offen{SC}')
    k(f's_lshl_b32 s24, s{S_W}, 10')
    k('s_add_u32 s25, s22, s24')
    k(f's_add_u32 s25, s25, {SZ_Q}')
    def dma(c, which):
        if which == 0:
            k(f's_add_u32 m0, s24, {c*8192}')
            k(f's_add_u32 s26, s25, {c*8192}')
        else:
            k(f's_add_u32 m0, s24, {c*8192 + 65536}')
            k(f's_add_u32 s26, s25, {c*8192 + SZ_Q}')
        k(f'buffer_load_dwordx4 v3, s[8:11], s26 offen{SC} lds')
    for c in (0, 4):
        dma(c, 0); dma(c, 1)
    k('s_waitcnt vmcnt(0) lgkmcnt(0)')
    k('s_barrier')
    k(f'ds_read_b128 {vr(VF,4)}, v3')
    k(f'ds_read_b128 {vr(KF,4)}, v{vK}')
    k(f'ds_read_b128 {vr(KF+4,4)}, v{vK} offset:1024')
    k('s_waitcnt lgkmcnt(2)')
    for x in range(2):
        k(f'{MF} {vr(S+16*x,16)}, {vr(VF,4)}, {vr(QF+4*x,4)}, 0')
    k(f'ds_read_b128 {vr(VF,4)}, v{vV}')
    k(f'ds_read_b128 {vr(VF+4,4)}, v{vV} offset:512')
    for x in range(2):
        m = t0 + x; b = S + 16*x
        k(f'v_max3_f32 v{m}, v{b}, v{b+1}, v{b+2}')
        for i in range(3, 15, 2): k(f'v_max3_f32 v{m}, v{m}, v{b+i}, v{b+i+1}')
        k(f'v_max_f32 v{m}, v{m}, v{b+15}')
    k(f'v_mov_b32 v{t2}, v{t0}')
    k(f'v_mov_b32 v{t3}, v{t1}')
    k(f'v_permlane32_swap_b32 v{t0}, v{t2}')
    k(f'v_permlane32_swap_b32 v{t1}, v{t3}')
    k(f'v_max_f32 v{t0}, v{t0}, v{t2}')
    k(f'v_max_f32 v{t1}, v{t1}, v{t3}')
    k(f'v_sub_f32 v{t0}, {hex(f2u(-40.0))}, v{t0}')
    k(f'v_sub_f32 v{t1}, {hex(f2u(-40.0))}, v{t1}')
    for i in range(16): k(f'v_mov_b32 v{CN+i}, v{t0}')
    k('s_waitcnt lgkmcnt(2)')
    k(f'{MF} {vr(S,16)}, {vr(KF,4)}, {vr(QF,4)}, {vr(CN,16)}')
    for i in range(16): k(f'v_mov_b32 v{CN+16+i}, v{t1}')
    k(f'{MF} {vr(S+16,16)}, {vr(KF,4)}, {vr(QF+4,4)}, {vr(CN+16,16)}')
    srd(k, 40, S_WS, WS_WO, SZ_WO)
    k('s_and_b32 s37, s7, 3')
    k('s_lshl_b32 s37, s37, 2')
    k(f's_and_b32 s38, s{S_W}, 3')
    k('s_add_u32 s37, s37, s38')
    k('s_lshl_b32 s37, s37, 15')
    k('s_lshl_b32 s38, s19, 14')
    k('s_add_u32 s37, s37, s38')
    k('s_lshl_b32 s38, s19, 4')
    k('v_xor_b32 v156, s38, v2')
    k('v_lshlrev_b32 v156, 4, v156')
    k('s_mov_b32 s31, 0')
    k('s_nop 1')
    stamp(k, 9)
    def step(u, extra):
        kc, kn = KF + 4*(u & 1), KF + 4*((u+1) & 1)
        vc, vn = VF + 8*(u & 1), VF + 8*((u+1) & 1)
        ex = list(extra) if extra else []
        def X():
            if ex: ex.pop(0)()
        for x in range(2):
            cur = S + 16*x; o = O + 16*x; p = P + 8*x
            E = lambda i: k(f'v_exp_f32 v{cur+i}, v{cur+i}')
            if x == 0: k('s_waitcnt lgkmcnt(0)')
            E(0)
            if x == 0: k(f'ds_read_b128 {vr(kc,4)}, v{vK} offset:{1024*(u+2)}')
            E(1)
            if x == 0: k(f'ds_read_b128 {vr(vn,4)}, v{vV} offset:{1024*(u+1)}')
            E(2); X(); E(3)
            if x == 0: k(f'{MF} {vr(O+16,16)}, {vr(vn+4,4)}, {vr(P+8+4,4)}, {vr(O+16,16)}')
            else:      k(f'{MF} {vr(O,16)}, {vr(vc+4,4)}, {vr(P+4,4)}, {vr(O,16)}')
            E(4)
            if x == 0: k(f'ds_read_b128 {vr(vn+4,4)}, v{vV} offset:{1024*(u+1)+512}')
            E(5); X(); E(6); E(7)
            for d in range(4): k(f'v_cvt_pk_bf16_f32 v{p+d}, v{cur+2*d}, v{cur+2*d+1}')
            E(8); E(9)
            k(f'{MF} {vr(o,16)}, {vr(vc,4)}, {vr(p,4)}, {vr(o,16)}')
            for i in range(10, 16): E(i)
            for d in range(4): k(f'v_cvt_pk_bf16_f32 v{p+4+d}, v{cur+8+2*d}, v{cur+8+2*d+1}')
            k(f'{MF} {vr(cur,16)}, {vr(kn,4)}, {vr(QF+4*x,4)}, {vr(CN+16*x,16)}')
    def tail():
        k(f'v_add_u32 v{vK}, 0x1000, v{vK}')
        k(f'v_add_u32 v{vV}, v{vV}, v{vInc}')
    seq = []
    for c in (1, 5, 2, 6, 3, 7):
        seq += [(lambda c=c: dma(c, 0)), (lambda c=c: dma(c, 1))]
    for u in range(4): step(u, seq[3*u:3*u+3])
    tail()
    k('s_waitcnt vmcnt(0)')
    k('s_barrier')
    def wo(i):
        k(f'buffer_load_dwordx4 {vr(160+4*i,4)}, v156, s[40:43], s37 offen offset:{1024*(i&3)}{SC}')
        if (i & 3) == 3: k('s_add_u32 s37, s37, 4096')
    seq = [(lambda i=i: wo(i)) for i in range(16)]
    for u in range(4): step(u, seq[4*u:4*u+4])
    tail()
    k('s_mov_b32 s31, 2')
    k.label(f'{L}_LOOP')
    for u in range(4): step(u, None)
    tail()
    k('s_add_u32 s31, s31, 1')
    k('s_cmp_lt_u32 s31, 8')
    k(f's_cbranch_scc1 {L}_LOOP')
    stamp(k, 10)
    k('s_waitcnt lgkmcnt(0)')
    k(f'{MF} {vr(O+16,16)}, {vr(VF+8+4,4)}, {vr(P+8+4,4)}, {vr(O+16,16)}')
    k(f's_and_b32 s22, s{S_W}, 3')
    k('s_lshl_b32 s22, s22, 1')
    k('s_xor_b32 s23, s19, 1')
    k('s_add_u32 s23, s23, s22')
    k('s_mul_i32 s23, s23, 2304')
    k(f's_add_u32 s23, s23, {LDS_CMB}')
    k(f'v_lshlrev_b32 v{t0}, 2, v2')
    k(f'v_add_u32 v{t1}, s23, v{t0}')
    k('s_add_u32 s22, s22, s19')
    k('s_mul_i32 s22, s22, 2304')
    k(f's_add_u32 s22, s22, {LDS_CMB}')
    k(f'v_add_u32 v{t2}, s22, v{t0}')
    for r in range(9): k(f'ds_write_b32 v{t1}, v{O+16+r} offset:{256*r}')
    k('s_waitcnt lgkmcnt(0)')
    k('s_barrier')
    for r in range(9): k(f'ds_read_b32 v{S+r}, v{t2} offset:{256*r}')
    k('s_waitcnt lgkmcnt(0)')
    for r in range(9): k(f'v_add_f32 v{O+r}, v{O+r}, v{S+r}')
    k(f'v_mov_b32 v{t3}, v{O+8}')
    k(f'v_permlane32_swap_b32 v{t3}, v{O+8}')
    k(f'v_mul_f32 v{t0}, 0, v{t3}')
    for r in range(8): k(f'v_fmac_f32 v{t0}, 0, v{O+r}')
    k(f'v_mov_b32 v{t1}, {hex(f2u(2.0**64))}')
    k(f'v_cmp_u_f32 vcc, v{t0}, v{t0}')
    k(f'v_cmp_nlt_f32 s[34:35], v{t3}, v{t1}')
    k('s_or_b64 s[34:35], vcc, s[34:35]')
    k(f's_cbranch_scc0 {L}_FIN')
    k(f'v_mov_b32 v{vK}, v3')
    k(f'v_mov_b32 v{t0}, 0xff800000')
    k('s_mov_b32 s31, 0')
    k.label(f'{L}_MAXL')
    k(f'ds_read_b128 {vr(KF,4)}, v{vK}')
    k('s_waitcnt lgkmcnt(0)')
    k(f'{MF} {vr(S,16)}, {vr(KF,4)}, {vr(QF,4)}, 0')
    k(f'v_add_u32 v{vK}, 0x400, v{vK}')
    for i in range(0, 16, 2): k(f'v_max3_f32 v{t0}, v{t0}, v{S+i}, v{S+i+1}')
    k('s_add_u32 s31, s31, 1')
    k('s_cmp_lt_u32 s31, 64')
    k(f's_cbranch_scc1 {L}_MAXL')
    k(f'v_mov_b32 v{t1}, v{t0}')
    k(f'v_permlane32_swap_b32 v{t0}, v{t1}')
    k(f'v_max_f32 v{t0}, v{t0}, v{t1}')
    for i in range(16): k(f'v_sub_f32 v{CN+i}, 0, v{t0}')
    for i in range(16): k(f'v_mov_b32 v{O+i}, 0')
    k(f'v_mov_b32 v{vK}, v3')
    k('s_lshl_b32 s26, s19, 15')
    k(f'v_lshrrev_b32 v{t1}, 12, v{vInc}')
    k(f'v_mul_lo_u32 v{t1}, v{t1}, s26')
    k(f'v_sub_u32 v{vV}, v{vVb}, v{t1}')
    k(f'v_lshrrev_b32 v{t2}, 2, v{vInc}')
    k('s_mov_b32 s31, 0')
    k.label(f'{L}_FBL')
    k(f'ds_read_b128 {vr(KF,4)}, v{vK}')
    k(f'ds_read_b128 {vr(VF,4)}, v{vV}')
    k(f'ds_read_b128 {vr(VF+4,4)}, v{vV} offset:512')
    k('s_waitcnt lgkmcnt(0)')
    k(f'{MF} {vr(S,16)}, {vr(KF,4)}, {vr(QF,4)}, {vr(CN,16)}')
    k(f'v_add_u32 v{vK}, 0x400, v{vK}')
    k(f'v_add_u32 v{vV}, v{vV}, v{t2}')
    for i in range(16): k(f'v_exp_f32 v{S+i}, v{S+i}')
    for d in range(8): k(f'v_cvt_pk_bf16_f32 v{P+d}, v{S+2*d}, v{S+2*d+1}')
    k(f'{MF} {vr(O,16)}, {vr(VF,4)}, {vr(P,4)}, {vr(O,16)}')
    k(f'{MF} {vr(O,16)}, {vr(VF+4,4)}, {vr(P+4,4)}, {vr(O,16)}')
    k('s_add_u32 s31, s31, 1')
    k('s_cmp_lt_u32 s31, 64')
    k('s_nop 7')
    k(f's_cbranch_scc1 {L}_FBL')
    k('s_nop 7')
    k(f'v_mov_b32 v{t3}, v{O+8}')
    k(f'v_permlane32_swap_b32 v{t3}, v{O+8}')
    k.label(f'{L}_FIN')
    k(f'v_rcp_f32 v{t0}, v{t3}')
    for r in range(8): k(f'v_mul_f32 v{O+r}, v{O+r}, v{t0}')
    for d in range(4): k(f'v_cvt_pk_bf16_f32 v{P+d}, v{O+2*d}, v{O+2*d+1}')
    k('s_lshl_b32 s22, s28, 15')
    k('s_lshl_b32 s23, s20, 10')
    k('s_add_u32 s22, s22, s23')
    k(f'buffer_store_dwordx4 {vr(P,4)}, v3, s[12:15], s22 offen{SC}')
    k('s_lshl_b32 s22, s36, 5')
    k('s_add_u32 s22, s22, s20')
    k(f's_add_u32 s22, s22, {F_P3}')
    publish(k, 22)
    stamp(k, 11)
```

```python
from pk_common import *

LDS_W13 = 49152
LDS_EX4 = 32768
LDS_ST4 = LDS_W13 + 99*1024

def p5_decode(k):
    k(f's_and_b32 s6, s{S_ID}, 7')
    k(f's_lshr_b32 s7, s{S_ID}, 3')
    k('s_cmp_lt_u32 s7, 29')
    k('s_cselect_b32 s52, 1, 0')
    k('s_min_u32 s7, s7, 28')
    k('s_mul_i32 s6, s6, 29')
    k('s_add_u32 s6, s6, s7')
    k('s_cmp_ge_u32 s6, 116')
    k('s_cselect_b32 s7, 116, 0')
    k('s_cselect_b32 s19, 4, 0')
    k('s_sub_u32 s6, s6, s7')
    k('s_and_b32 s50, s6, 3')
    k('s_add_u32 s50, s50, s19')
    k('s_lshr_b32 s53, s6, 2')
    k('s_mul_i32 s51, s53, 3')
    k('s_min_u32 s51, s51, 83')

def sum_partials8(k, G, dst):
    for j in range(8):
        k(f'v_add_f32 v{G+j}, v{G+j}, v{G+8+j}')
        k(f'v_add_f32 v{G+16+j}, v{G+16+j}, v{G+24+j}')
    for j in range(8): k(f'v_add_f32 v{G+j}, v{G+j}, v{G+16+j}')
    for j in range(8): k(f'v_cvt_pk_bf16_f32 v{G+j}, v{G+j}, v{G+j}')
    for j in range(8): k(f'v_lshlrev_b32 v{dst+j}, 16, v{G+j}')

def gen_p4(k):
    k(f's_and_b32 s6, s{S_ID}, 7')
    k(f's_lshr_b32 s7, s{S_ID}, 3')
    k('s_lshl_b32 s20, s6, 3')
    k('s_lshr_b32 s21, s7, 2')
    k('s_add_u32 s20, s20, s21')
    k('s_and_b32 s21, s7, 3')
    k(f's_and_b32 s22, s{S_W}, 3')
    k('s_lshl_b32 s23, s21, 2')
    k('s_add_u32 s23, s23, s22')
    k(f's_lshr_b32 s24, s{S_W}, 2')
    p5_decode(k)
    srd(k, 8, S_WS, WS_O, SZ_Q)
    srd(k, 12, S_WS, WS_WO, SZ_WO)
    srd(k, 28, S_WS, WS_MODP, SZ_MODP)
    srd(k, 32, S_X, 0, 2048*1024)
    srd(k, 36, S_WS, WS_X1, SZ_Q)
    srd(k, 40, S_WS, WS_W13, SZ_W13)
    vm = VM(k)
    WR, G, RES, ACC, TB = 160, 128, 124, 16, 32
    k('v_and_b32 v4, 31, v2')
    k('v_lshrrev_b32 v5, 5, v2')
    k('v_lshlrev_b32 v7, 10, v4')
    k('v_lshl_add_u32 v7, v5, 3, v7')
    k('s_lshl_b32 s25, s20, 15')
    k('s_lshl_b32 s26, s23, 6')
    k('s_add_u32 s25, s25, s26')
    k('s_lshl_b32 s26, s24, 5')
    k('s_add_u32 s25, s25, s26')
    k(f'buffer_load_dwordx2 {vr(RES,2)}, v7, s[32:35], s25 offen')
    k(f'buffer_load_dwordx2 {vr(RES+2,2)}, v7, s[32:35], s25 offen offset:16')
    k('v_lshlrev_b32 v8, 4, v5')
    k('s_lshl_b32 s25, s23, 7')
    k('s_lshl_b32 s26, s24, 6')
    k('s_add_u32 s25, s25, s26')
    for rq in range(4):
        k(f's_add_u32 s26, s25, {2*2048 + rq*3072*4}')
        k(f'buffer_load_dwordx4 {vr(G+8*rq,4)}, v8, s[28:31], s26 offen{SC}')
        k(f'buffer_load_dwordx4 {vr(G+8*rq+4,4)}, v8, s[28:31], s26 offen offset:32{SC}')
    vm.issue('e', 10)
    def idx_p4(k):
        k('s_lshr_b32 s98, s20, 3')
        k('s_lshl_b32 s98, s98, 5')
        k(f's_add_u32 s98, s98, {F_P3}')
        k('v_add_u32 v250, s98, v2')
        k('s_lshr_b32 s98, s51, 2')
        k('s_lshl_b32 s98, s98, 4')
        k('v_mov_b32 v253, s98')
        k('s_add_u32 s98, s51, 2')
        k('s_lshr_b32 s98, s98, 2')
        k('s_lshl_b32 s98, s98, 4')
        k('v_mov_b32 v252, s98')
        k('v_cmp_le_u32 vcc, 48, v2')
        k('s_nop 1')
        k('v_cndmask_b32 v252, v253, v252, vcc')
        k('v_and_b32 v253, 15, v2')
        k('v_add_u32 v252, v252, v253')
        k(f'v_add_u32 v252, {F_W13}, v252')
        k('v_cmp_le_u32 vcc, 32, v2')
        k('s_nop 1')
        k('v_cndmask_b32 v250, v250, v252, vcc')
    def idx_w2(k):
        k('v_min_u32 v250, 42, v2')
        k(f'v_add_u32 v250, {F_W2}, v250')
    stamp(k, 12)
    wait_flags(k, idx_p4, idxcode2=idx_w2)
    stamp(k, 13)
    k('s_lshl_b32 s25, s20, 15')
    k(f's_lshl_b32 s26, s{S_W}, 12')
    k('s_add_u32 s25, s25, s26')
    k('s_mov_b32 m0, s26')
    k('s_nop 0')
    for i in range(4):
        k(f'buffer_load_dwordx4 v3, s[8:11], s25 offen offset:{1024*i}{SC} lds')
    vm.issue('t', 4)
    vm.wait('e')
    sum_partials8(k, G, G+8)
    GA = G + 8
    vm.wait('t')
    k('s_barrier')
    k('s_lshl_b32 s25, s24, 14')
    k('v_add_u32 v9, s25, v3')
    for i in range(2): k(f'ds_read_b128 {vr(TB+4*i,4)}, v9 offset:{1024*i}')
    k(f's_mul_i32 s25, s51, {U_STRIDE}')
    k(f's_lshl_b32 s26, s{S_W}, 10')
    k('s_add_u32 s25, s25, s26')
    k(f's_mul_i32 s26, s{S_W}, 3072')
    for i in range(16):
        if i + 2 < 16: k(f'ds_read_b128 {vr(TB+4*((i+2)%4),4)}, v9 offset:{1024*(i+2)}')
        if i < 12:
            c, u = divmod(i, 3)
            k(f's_add_u32 m0, s26, {LDS_W13 + c*8*3072 + u*1024}')
            k(f's_add_u32 s27, s25, {c*8*1024 + u*U_STRIDE}')
        k(f's_waitcnt lgkmcnt({min(2, 15-i)})')
        k(f'{MF} {vr(ACC,16)}, {vr(WR+4*i,4)}, {vr(TB+4*(i%4),4)}, {vr(ACC,16) if i else 0}')
        if i < 12: k(f'buffer_load_dwordx4 v3, s[40:43], s27 offen{SC} lds')
    stamp(k, 14)
    k(f's_lshl_b32 s25, s{S_W}, 11')
    k(f's_add_u32 s25, s25, {LDS_EX4}')
    k('v_add_u32 v10, s25, v3')
    k(f's_xor_b32 s25, s{S_W}, 4')
    k('s_lshl_b32 s25, s25, 11')
    k(f's_add_u32 s25, s25, {LDS_EX4}')
    k('v_add_u32 v11, s25, v3')
    k(f'ds_write_b128 v10, {vr(ACC+8,4)}')
    k(f'ds_write_b128 v10, {vr(ACC+12,4)} offset:1024')
    for d in range(4):
        k(f'v_lshlrev_b32 v{48+2*d}, 16, v{RES+d}')
        k(f'v_and_b32 v{48+2*d+1}, 0xffff0000, v{RES+d}')
    k('s_waitcnt lgkmcnt(0)')
    k('s_barrier')
    k(f'ds_read_b128 {vr(56,4)}, v11')
    k(f'ds_read_b128 {vr(60,4)}, v11 offset:1024')
    k('s_waitcnt lgkmcnt(0)')
    for j in range(8): k(f'v_add_f32 v{ACC+j}, v{ACC+j}, v{56+j}')
    for j in range(8): k(f'v_fma_f32 v{ACC+j}, v{ACC+j}, v{GA+j}, v{48+j}')
    for d in range(4): k(f'v_cvt_pk_bf16_f32 v{56+d}, v{ACC+2*d}, v{ACC+2*d+1}')
    k('s_lshl_b32 s25, s20, 15')
    k('s_lshl_b32 s26, s23, 11')
    k('s_add_u32 s25, s25, s26')
    k('s_lshl_b32 s26, s24, 10')
    k('s_add_u32 s25, s25, s26')
    k(f'buffer_store_dwordx4 {vr(56,4)}, v3, s[36:39], s25 offen{SC}')
    for d in range(4):
        k(f'v_lshlrev_b32 v{48+2*d}, 16, v{56+d}')
        k(f'v_and_b32 v{48+2*d+1}, 0xffff0000, v{56+d}')
    k('v_add_f32 v12, v48, v49')
    k('v_mul_f32 v13, v48, v48')
    k('v_fmac_f32 v13, v49, v49')
    for j in range(2, 8):
        k(f'v_add_f32 v12, v12, v{48+j}')
        k(f'v_fmac_f32 v13, v{48+j}, v{48+j}')
    k('v_mov_b32 v14, v12')
    k('v_mov_b32 v15, v13')
    k('v_permlane32_swap_b32 v12, v14')
    k('v_permlane32_swap_b32 v13, v15')
    k('v_add_f32 v12, v12, v14')
    k('v_add_f32 v13, v13, v15')
    k(f's_lshl_b32 s25, s{S_W}, 8')
    k(f's_add_u32 s25, s25, {LDS_ST4}')
    k('v_lshlrev_b32 v14, 3, v4')
    k('v_add_u32 v15, s25, v14')
    k('ds_write_b64 v15, v[12:13]')
    k('s_waitcnt lgkmcnt(0)')
    k('s_barrier')

    k(f's_cmp_eq_u32 s{S_W}, 0')
    k('s_cbranch_scc0 P4_PUB')
    k(f'v_add_u32 v15, {LDS_ST4}, v14')
    for i in range(8): k(f'ds_read_b64 {vr(32+2*i,2)}, v15 offset:{256*i}')
    k('s_waitcnt lgkmcnt(0)')
    for st in (4, 2, 1):
        for i in range(st):
            k(f'v_add_f32 v{32+2*i}, v{32+2*i}, v{32+2*(i+st)}')
            k(f'v_add_f32 v{33+2*i}, v{33+2*i}, v{33+2*(i+st)}')
    srd(k, 28, S_WS, WS_STATS, SZ_STATS)
    k('s_lshl_b32 s25, s21, 14')
    k('s_lshl_b32 s26, s20, 8')
    k('s_add_u32 s25, s25, s26')
    k(f'buffer_store_dwordx2 v[32:33], v14, s[28:31], s25 offen{SC}')
    k.label('P4_PUB')
    k('s_lshl_b32 s22, s20, 2')
    k('s_add_u32 s22, s22, s21')
    k(f's_add_u32 s22, s22, {F_P4}')
    publish(k, 22)
    stamp(k, 15)
    k(f's_mul_i32 s26, s{S_W}, 0x5556')
    k('s_lshr_b32 s26, s26, 16')
    k('s_mul_i32 s26, s26, 3')
    k(f's_sub_u32 s26, s{S_W}, s26')
    k('s_add_u32 s27, s51, s26')
    k('s_lshl_b32 s27, s27, 4')
    k('v_and_b32 v36, 15, v2')
    k('v_bfe_u32 v37, v2, 4, 1')
    k('v_mul_u32_u24 v37, 1376, v37')
    k('v_add3_u32 v36, v36, v37, s27')
    k('v_lshlrev_b32 v36, 2, v36')
    srd(k, 44, S_WS, WS_CSB, SZ_CSB)
    for q in range(16):
        k(f's_mov_b32 s27, {q*2752*4}')
        k(f'buffer_load_dword v{48+q}, v36, s[44:47], s27 offen{SC}')
    k('s_waitcnt vmcnt(0)')
    for st in (8, 4, 2):
        for i in range(st): k(f'v_add_f32 v{48+i}, v{48+i}, v{48+i+st}')
    k('v_mov_b32 v40, v48')
    k('v_mov_b32 v41, v49')
    k('v_cvt_pk_bf16_f32 v42, v40, v41')
    k('v_lshlrev_b32 v43, 16, v42')
    k('v_and_b32 v44, 0xffff0000, v42')
    k('v_sub_f32 v43, v40, v43')
    k('v_sub_f32 v44, v41, v44')
    k('v_cvt_pk_bf16_f32 v43, v43, v44')
    k('s_mov_b32 s27, 0x05040100')
    k('s_mov_b32 s25, 0x07060302')
    k('v_perm_b32 v44, v43, v42, s27')
    k('v_mov_b32 v45, v42')
    k('v_perm_b32 v46, v42, v43, s25')
    k('v_mov_b32 v47, 0')
    k('v_cmp_gt_u32 vcc, 32, v2')
    k('s_lshl_b32 s26, s26, 10')
    k(f's_add_u32 s26, s26, {LDS_W13 + 96*1024}')
    k('v_add_u32 v36, s26, v3')
    for i in range(3): k(f'v_cndmask_b32 v{44+i}, 0, v{44+i}, vcc')
    k('ds_write_b128 v36, v[44:47]')


def gen_p5(k):
    srd(k, 8, S_WS, WS_X1, SZ_Q)
    srd(k, 28, S_WS, WS_STATS, SZ_STATS)
    srd(k, 32, S_WS, WS_HM, SZ_HM)
    k('s_lshl_b32 s20, s50, 3')
    k(f's_add_u32 s20, s20, s{S_W}')
    k('v_and_b32 v4, 31, v2')
    k('v_lshrrev_b32 v5, 5, v2')
    def idx_p5(k):
        k('s_lshl_b32 s98, s50, 5')
        k(f's_add_u32 s98, s98, {F_P4}')
        k('v_add_u32 v250, s98, v2')
        k('v_bfe_u32 v252, v2, 3, 2')
        k('v_mul_u32_u24 v252, 48, v252')
        k('v_and_b32 v253, 7, v2')
        k(f'v_add3_u32 v252, v252, v253, {F_G+40}')
        k('v_cmp_le_u32 vcc, 32, v2')
        k('s_nop 1')
        k('v_cndmask_b32 v250, v250, v252, vcc')
    srd(k, 12, S_WS, WS_W2, SZ_W2)
    k(f's_lshr_b32 s7, s{S_ID}, 3')
    k('s_and_b32 s21, s7, 7')
    k('s_lshl_b32 s21, s21, 1')
    k(f's_and_b32 s22, s{S_W}, 1')
    k('s_add_u32 s21, s21, s22')
    k(f's_lshr_b32 s23, s{S_W}, 1')
    k(f's_mul_i32 s61, s21, {86*1024}')
    k(f's_mul_i32 s22, s23, {22*1024}')
    k('s_add_u32 s61, s61, s22')
    k('s_cmp_eq_u32 s23, 3')
    k('s_cselect_b32 s56, 0x40000000, 0')
    k('s_and_b32 s23, s23, 1')
    k('s_lshl_b32 s23, s23, 4')
    k('v_xor_b32 v9, s23, v2')
    k('v_lshlrev_b32 v9, 4, v9')
    def w2(i, vm=None):
        if vm: vm.issue('w2')
        if i == 20: k('s_add_u32 s61, s61, s56')
        k(f'buffer_load_dwordx4 {vr(64+4*i,4)}, v9, s[12:15], s61 offen offset:{1024*(i&3)}{SC}')
        if (i & 3) == 3: k('s_add_u32 s61, s61, 4096')
    stamp(k, 16)
    wait_flags(k, idx_p5, pre='s_waitcnt vmcnt(0) lgkmcnt(0)')
    stamp(k, 17)
    k('s_cmp_eq_u32 s52, 0')
    k('s_cbranch_scc1 P5_SKIP')
    vm = VM(k)
    XR, WR, ACC, AUG, ST = 64, 16, 192, 40, 44
    k('v_lshlrev_b32 v6, 3, v4')
    k('v_lshl_add_u32 v6, v5, 15, v6')
    k('s_lshl_b32 s26, s20, 8')
    k(f'buffer_load_dwordx2 {vr(ST,2)}, v6, s[28:31], s26 offen{SC}')
    k('s_add_u32 s26, s26, 16384')
    k(f'buffer_load_dwordx2 {vr(ST+2,2)}, v6, s[28:31], s26 offen{SC}')
    vm.issue('st', 2)
    k('s_lshl_b32 s24, s20, 15')
    def ldx(s):
        k(f'buffer_load_dwordx4 {vr(XR+4*s,4)}, v3, s[8:11], s24 offen offset:{1024*(s&3)}{SC}')
        if (s & 3) == 3: k('s_add_u32 s24, s24, 4096')
        vm.issue(('x', s))
    PF = 6
    for s in range(PF): ldx(s)
    k(f'v_add_u32 v7, {LDS_W13}, v3')
    k(f'v_add_u32 v8, {LDS_W13 + 65536}, v3')
    def rd(s):
        st = s & 1
        for u in range(3):
            o = (s*3+u)*1024
            k(f'ds_read_b128 {vr(WR+12*st+4*u,4)}, v7 offset:{o}' if o < 65536 else
              f'ds_read_b128 {vr(WR+12*st+4*u,4)}, v8 offset:{o-65536}')
    rd(0)
    vm.wait('st')
    k(f'v_add_f32 v{ST}, v{ST}, v{ST+2}')
    k(f'v_add_f32 v{ST+1}, v{ST+1}, v{ST+3}')
    k(f'v_mov_b32 v12, v{ST}')
    k(f'v_mov_b32 v13, v{ST+1}')
    k(f'v_permlane32_swap_b32 v{ST}, v12')
    k(f'v_permlane32_swap_b32 v{ST+1}, v13')
    k(f'v_add_f32 v12, v12, v{ST}')
    k(f'v_add_f32 v13, v13, v{ST+1}')
    k(f'v_mul_f32 v12, {hex(f2u(-1/512))}, v12')
    k(f'v_mul_f32 v13, {hex(f2u(1/512))}, v13')
    k('v_fma_f32 v13, -v12, v12, v13')
    k('v_max_f32 v13, 0, v13')
    k(f'v_add_f32 v13, {hex(f2u(1e-5))}, v13')
    k('v_rsq_f32 v10, v13')
    k('s_nop 0')
    k('v_mul_f32 v13, v13, v10')
    k('v_cvt_pk_bf16_f32 v11, v12, v13')
    k('v_lshlrev_b32 v14, 16, v11')
    k('v_and_b32 v15, 0xffff0000, v11')
    k('v_sub_f32 v14, v12, v14')
    k('v_sub_f32 v15, v13, v15')
    k('v_cvt_pk_bf16_f32 v12, v14, v15')
    k('s_mov_b32 s36, 0x01000100')
    k('s_mov_b32 s37, 0x07060100')
    k('s_mov_b32 s38, 0x07060302')
    k(f'v_perm_b32 v{AUG}, v11, v11, s36')
    k(f'v_perm_b32 v{AUG+1}, v11, v12, s37')
    k(f'v_perm_b32 v{AUG+2}, v12, v11, s38')
    k(f'v_mov_b32 v{AUG+3}, 0')
    k('v_cmp_gt_u32 vcc, 32, v2')
    k('s_nop 1')
    for i in range(3): k(f'v_cndmask_b32 v{AUG+i}, 0, v{AUG+i}, vcc')
    NST = 33
    for s in range(NST):
        st = s & 1
        if s + 1 < NST: rd(s+1)
        if s + PF < 32: ldx(s + PF)
        if s < 32: vm.wait(('x', s))
        k(f's_waitcnt lgkmcnt({3 if s+1 < NST else 0})')
        xf = vr(XR+4*s, 4) if s < 32 else vr(AUG, 4)
        for u in range(3):
            acc = vr(ACC+16*u, 16); w = vr(WR+12*st+4*u, 4)
            k(f'{MF} {acc}, {w}, {xf}, {acc if s > 0 else 0}')
            if s >= 26:
                i = 3*(s-26) + u
                if i < 22 - 1: w2(i, vm)
    w2(21)
    stamp(k, 18)
    k(f'v_mul_f32 v11, {hex(f2u(-LOG2E))}, v10')
    k('v_mul_f32 v12, v10, v10')
    k('s_mul_i32 s24, s20, 86')
    k('s_add_u32 s24, s24, s51')
    k('s_lshl_b32 s24, s24, 10')
    T = 16
    for u in range(3):
        a = ACC + 16*u
        for r in range(8): k(f'v_mul_f32 v{T+r}, v{a+r}, v11')
        for r in range(8): k(f'v_exp_f32 v{T+r}, v{T+r}')
        for r in range(8): k(f'v_mul_f32 v{a+r}, v{a+r}, v{a+8+r}')
        for r in range(8): k(f'v_add_f32 v{T+r}, 1.0, v{T+r}')
        for r in range(8): k(f'v_rcp_f32 v{T+r}, v{T+r}')
        for r in range(8): k(f'v_mul_f32 v{a+r}, v{a+r}, v12')
        for r in range(8): k(f'v_mul_f32 v{a+r}, v{a+r}, v{T+r}')
        for d in range(4): k(f'v_cvt_pk_bf16_f32 v{T+8+4*u+d}, v{a+2*d}, v{a+2*d+1}')
        k(f'buffer_store_dwordx4 {vr(T+8+4*u,4)}, v3, s[32:35], s24 offen offset:{1024*u}{SC}')
    k('s_lshl_b32 s22, s50, 5')
    k('s_add_u32 s22, s22, s53')
    k(f's_add_u32 s22, s22, {F_P5}')
    publish(k, 22)
    k('s_branch P5_DONE')
    k.label('P5_SKIP')
    for i in range(22): w2(i)
    k.label('P5_DONE')
    stamp(k, 19)

def gen_p6(k):
    k(f's_and_b32 s6, s{S_ID}, 7')
    k(f's_lshr_b32 s7, s{S_ID}, 3')
    k('s_lshl_b32 s20, s6, 2')
    k('s_lshr_b32 s21, s7, 3')
    k('s_add_u32 s20, s20, s21')
    k('s_and_b32 s21, s7, 7')
    k(f's_and_b32 s22, s{S_W}, 1')
    k(f's_lshr_b32 s23, s{S_W}, 1')
    k('s_lshl_b32 s24, s21, 1')
    k('s_add_u32 s24, s24, s22')
    k('s_lshr_b32 s25, s23, 1')
    k('s_and_b32 s26, s23, 1')
    k('s_lshl_b32 s27, s20, 1')
    k('s_add_u32 s54, s27, s25')
    k('s_xor_b32 s55, s25, 1')
    k('s_add_u32 s55, s27, s55')
    srd(k, 8, S_WS, WS_HM, SZ_HM)
    srd(k, 12, S_WS, WS_W2, SZ_W2)
    srd(k, 28, S_WS, WS_MODP, SZ_MODP)
    srd(k, 32, S_OUT, 0, 2048*1024)
    srd(k, 36, S_WS, WS_X1, SZ_Q)
    vm = VM(k)
    ACC, TB, WR, TD, G, RES = 16, 48, 64, 152, 168, 200
    k('v_and_b32 v4, 31, v2')
    k('v_lshrrev_b32 v5, 5, v2')
    k('s_cmp_eq_u32 s23, 3')
    k('s_cselect_b32 s56, 0x40000000, 0')
    k(f's_mul_i32 s58, s23, {22*1024}')
    k('v_lshlrev_b32 v8, 4, v5')
    k('s_lshl_b32 s57, s24, 7')
    k('s_lshl_b32 s59, s26, 6')
    k('s_add_u32 s57, s57, s59')
    for rq in range(4):
        k(f's_add_u32 s59, s57, {5*2048 + rq*3072*4}')
        k(f'buffer_load_dwordx4 {vr(G+8*rq,4)}, v8, s[28:31], s59 offen{SC}')
        k(f'buffer_load_dwordx4 {vr(G+8*rq+4,4)}, v8, s[28:31], s59 offen offset:32{SC}')
    vm.issue('e', 8)
    def idx_p6(k):
        k('s_lshr_b32 s98, s20, 2')
        k('s_lshl_b32 s98, s98, 5')
        k(f's_add_u32 s98, s98, {F_P5}')
        k('v_min_u32 v250, 28, v2')
        k('v_add_u32 v250, s98, v250')
    stamp(k, 20)
    wait_flags(k, idx_p6)
    stamp(k, 21)
    k('s_add_u32 s57, s27, s22')
    k(f's_mul_i32 s57, s57, {86*1024}')
    k('s_add_u32 s57, s57, s58')
    k('s_mul_i32 s59, s23, 40960')
    k('s_mul_i32 s60, s22, 20480')
    k('s_add_u32 s59, s59, s60')
    def dma(g):
        k(f's_add_u32 m0, s59, {4096*g}')
        k(f's_add_u32 s60, s57, {4096*g}')
        for i in range(4):
            k(f'buffer_load_dwordx4 v3, s[8:11], s60 offen offset:{1024*i}{SC} lds')
        vm.issue(('g', g), 4)
    dma(0); dma(1)
    def tail_loads():
        k(f's_mul_i32 s60, s54, {86*1024}')
        k('s_add_u32 s60, s60, s58')
        k(f's_add_u32 s60, s60, {20*1024}')
        k('s_add_u32 s60, s60, s56')
        k(f'buffer_load_dwordx4 {vr(TD,4)}, v3, s[8:11], s60 offen{SC}')
        k(f'buffer_load_dwordx4 {vr(TD+8,4)}, v3, s[8:11], s60 offen offset:1024{SC}')
        k(f's_mul_i32 s60, s55, {86*1024}')
        k('s_add_u32 s60, s60, s58')
        k(f's_add_u32 s60, s60, {20*1024}')
        k('s_add_u32 s60, s60, s56')
        k(f'buffer_load_dwordx4 {vr(TD+4,4)}, v3, s[8:11], s60 offen{SC}')
        k(f'buffer_load_dwordx4 {vr(TD+12,4)}, v3, s[8:11], s60 offen offset:1024{SC}')
        k('s_lshl_b32 s60, s54, 15')
        k('s_lshl_b32 s61, s24, 11')
        k('s_add_u32 s60, s60, s61')
        k('s_lshl_b32 s61, s26, 10')
        k('s_add_u32 s60, s60, s61')
        k(f'buffer_load_dwordx4 {vr(RES,4)}, v3, s[36:39], s60 offen{SC}')
        vm.issue('tail', 5)
    k('s_mul_i32 s60, s23, 40960')
    k('s_mul_i32 s61, s25, 20480')
    k('s_add_u32 s61, s61, s60')
    k('v_add_u32 v9, s61, v3')
    k('s_xor_b32 s61, s25, 1')
    k('s_mul_i32 s61, s61, 20480')
    k('s_add_u32 s61, s61, s60')
    k('v_add_u32 v10, s61, v3')
    vm.wait('e')
    sum_partials8(k, G, G+8)
    GB = G + 8
    for g in range(5):
        vm.wait(('g', g))
        k('s_barrier')
        if g + 2 < 5: dma(g + 2)
        if g == 3: tail_loads()
        k(f'ds_read_b128 {vr(TB,4)}, v9 offset:{4096*g}')
        k(f'ds_read_b128 {vr(TB+4,4)}, v10 offset:{4096*g}')
        for i in range(4):
            s = 4*g + i
            b = TB + 8*(i & 1); nb = TB + 8*((i+1) & 1)
            if i < 3:
                k(f'ds_read_b128 {vr(nb,4)}, v9 offset:{4096*g + 1024*(i+1)}')
                k(f'ds_read_b128 {vr(nb+4,4)}, v10 offset:{4096*g + 1024*(i+1)}')
                k('s_waitcnt lgkmcnt(2)')
            else:
                k('s_waitcnt lgkmcnt(0)')
            k(f'{MF} {vr(ACC,16)}, {vr(WR+4*s,4)}, {vr(b,4)}, {vr(ACC,16) if s else 0}')
            k(f'{MF} {vr(ACC+16,16)}, {vr(WR+4*s,4)}, {vr(b+4,4)}, {vr(ACC+16,16) if s else 0}')
    vm.wait('tail')
    for i in range(2):
        k(f'{MF} {vr(ACC,16)}, {vr(WR+4*(20+i),4)}, {vr(TD+8*i,4)}, {vr(ACC,16)}')
        k(f'{MF} {vr(ACC+16,16)}, {vr(WR+4*(20+i),4)}, {vr(TD+8*i+4,4)}, {vr(ACC+16,16)}')
    stamp(k, 22)
    k('s_barrier')
    for x, src in ((1, ACC+8), (2, ACC+16), (3, ACC+24)):
        k(f's_xor_b32 s60, s23, {x}')
        k('s_lshl_b32 s60, s60, 1')
        k('s_add_u32 s60, s60, s22')
        k('s_mul_i32 s60, s60, 6144')
        k(f's_add_u32 s60, s60, {(x-1)*2048}')
        k(f'v_add_u32 v{10+x}, s60, v3')
    for x, src in ((1, ACC+8), (2, ACC+16), (3, ACC+24)):
        k(f'ds_write_b128 v{10+x}, {vr(src,4)}')
        k(f'ds_write_b128 v{10+x}, {vr(src+4,4)} offset:1024')
    k(f's_mul_i32 s60, s{S_W}, 6144')
    k('v_add_u32 v9, s60, v3')
    for d in range(4):
        k(f'v_lshlrev_b32 v{48+2*d}, 16, v{RES+d}')
        k(f'v_and_b32 v{48+2*d+1}, 0xffff0000, v{RES+d}')
    k('s_waitcnt lgkmcnt(0)')
    k('s_barrier')
    for j in range(6): k(f'ds_read_b128 {vr(64+4*j,4)}, v9 offset:{1024*j}')
    k('s_waitcnt lgkmcnt(0)')
    for x in range(3):
        for j in range(8): k(f'v_add_f32 v{ACC+j}, v{ACC+j}, v{64+8*x+j}')
    for j in range(8): k(f'v_fma_f32 v{ACC+j}, v{ACC+j}, v{GB+j}, v{48+j}')
    for d in range(4): k(f'v_cvt_pk_bf16_f32 v{56+d}, v{ACC+2*d}, v{ACC+2*d+1}')
    k('v_lshlrev_b32 v7, 10, v4')
    k('v_lshl_add_u32 v7, v5, 4, v7')
    k('v_permlane32_swap_b32 v56, v58')
    k('v_permlane32_swap_b32 v57, v59')
    k('s_lshl_b32 s60, s54, 15')
    k('s_lshl_b32 s61, s24, 6')
    k('s_add_u32 s60, s60, s61')
    k('s_lshl_b32 s61, s26, 5')
    k('s_add_u32 s60, s60, s61')
    k('buffer_store_dwordx4 v[56:59], v7, s[32:35], s60 offen')
    stamp(k, 23)
```

```python
import sys, os, struct
from asmlib import Kernel

WS_MODP  = 0x0000000; SZ_MODP = 4*3072*4
WS_MODT  = 0x0010000; SZ_MODT = 4*1024*8
WS_CSB   = 0x0080000; SZ_CSB = 8*2*2752*4
WS_FLG   = 0x0030000; SZ_FLG = 1792*128
WS_H     = 0x0100000; SZ_H = 2048*1024
WS_WQKV  = 0x0300000; T_STRIDE = 32*3072; SZ_WQKV = 16*T_STRIDE
WS_Q     = 0x0500000; SZ_Q = 2048*1024
WS_K     = 0x0700000
WS_VT    = 0x0900000
WS_O     = 0x0B00000
WS_WO    = 0x0D00000; SZ_WO = 512*1024
WS_X1    = 0x0E00000
WS_STATS = 0x1000000; SZ_STATS = 4*2048*8
WS_W13   = 0x1100000; U_STRIDE = 33*1024; SZ_W13 = 86*U_STRIDE
WS_HM    = 0x1400000; SZ_HM = 64*86*1024
WS_W2    = 0x1A00000; SZ_W2 = 16*86*1024
WS_TIME  = 0x4000000

F_G, F_H, F_WQ, F_WO, F_W2, F_P2, F_P3, F_P4, F_P5, F_W13 = 0, 192, 256, 304, 320, 384, 640, 896, 1152, 1408

S_X, S_WQKV, S_WO, S_BX, S_W1, S_W3, S_W2, S_C, S_WMOD, S_OUT, S_DBG, S_WS = [64 + 2*i for i in range(12)]
S_NONCE, S_W, S_ID, S_VID = 88, 89, 90, 91
S_FLG = 92
S_T0, S_T1 = 96, 97

LOG2E = 1.4426950408889634
def f2u(f): return struct.unpack('<I', struct.pack('<f', f))[0]
QSCALE = f2u(0.25*LOG2E)
MF = 'v_mfma_f32_32x32x16_bf16'
SC = ' sc1'
TIMING = '-t' in sys.argv
VERBOSE = '-v' in sys.argv
NPHASE = int(os.environ.get('NPHASE', '6'))

def srd(k, s, ptr, off, size):
    if off:
        k(f's_add_u32 s{s}, s{ptr}, {hex(off)}')
        k(f's_addc_u32 s{s+1}, s{ptr+1}, 0')
    else:
        k(f's_mov_b32 s{s}, s{ptr}')
        k(f's_mov_b32 s{s+1}, s{ptr+1}')
    k(f's_mov_b32 s{s+2}, {hex(size)}')
    k(f's_mov_b32 s{s+3}, 0x20000')

def vr(a, n=1):
    return f'v{a}' if n == 1 else f'v[{a}:{a+n-1}]'

_uid = [0]
def uid(p):
    _uid[0] += 1
    return f'{p}_{_uid[0]}'

class VM:
    def __init__(self, k): self.k = k; self.q = []
    def issue(self, tag, n=1):
        for _ in range(n): self.q.append(tag)
    def wait(self, tag):
        idx = max((i for i, t in enumerate(self.q) if t == tag), default=-1)
        if idx < 0: return
        n = len(self.q) - 1 - idx
        assert n <= 63, n
        self.k(f's_waitcnt vmcnt({n})')
        self.q = self.q[idx+1:]
    def waitall(self):
        self.k('s_waitcnt vmcnt(0)'); self.q = []


DBGT = '-d' in sys.argv
DSLOT = {64: {0: 1, 45: 2, 2: 3, 47: 4}, 0: {0: 5, 1: 6, 3: 7, 5: 8, 6: 9, 8: 10, 9: 11, 11: 12, 15: 13, 19: 14, 24: 15}}
def stamp(k, i):
    if DBGT:
        for wg, m in DSLOT.items():
            if i in m:
                L = uid('DS')
                k(f's_cmp_eq_u32 s{S_ID}, {wg}')
                k(f's_cbranch_scc0 {L}')
                k(f's_cmp_eq_u32 s{S_W}, 0')
                k(f's_cbranch_scc0 {L}')
                k(f's_memrealtime s[{S_T0}:{S_T1}]')
                k('s_waitcnt lgkmcnt(0)')
                k(f'v_mov_b32 v250, {4*m[i]}')
                k(f'v_mov_b32 v251, s{S_T0}')
                k(f'global_store_dword v250, v251, s[{S_DBG}:{S_DBG+1}]')
                k.label(L)
    if TIMING:
        k(f's_memtime s[{S_T0}:{S_T1}]')
        k('s_waitcnt lgkmcnt(0)')
        k(f'v_writelane_b32 v255, s{S_T0}, {i}')

def get_nonce(k):
    L = uid('NONCE')
    k(f's_cmp_lg_u32 s{S_NONCE}, 0')
    k(f's_cbranch_scc1 {L}_OK')
    k('s_waitcnt vmcnt(0)')
    k(f'v_readfirstlane_b32 s{S_NONCE}, v249')
    k('s_nop 1')
    k(f's_cmp_lg_u32 s{S_NONCE}, 0')
    k(f's_cbranch_scc1 {L}_OK')
    k('s_mov_b32 s98, 0')
    k.label(f'{L}_L')
    k(f'v_mov_b32 v250, 0')
    k(f'global_load_dword v251, v250, s[{S_DBG}:{S_DBG+1}] sc1')
    k('s_waitcnt vmcnt(0)')
    k(f'v_readfirstlane_b32 s{S_NONCE}, v251')
    k('s_add_u32 s98, s98, 1')
    k('s_cmp_gt_u32 s98, 0x4000')
    k(f's_cbranch_scc1 {L}_OK')
    k(f's_cmp_eq_u32 s{S_NONCE}, 0')
    k(f's_cbranch_scc1 {L}_L')
    k.label(f'{L}_OK')

def publish0(k, sidx):
    k('s_waitcnt vmcnt(0)')
    get_nonce(k)
    k(f's_lshl_b32 s98, s{sidx}, 7')
    k(f'v_mov_b32 v250, s98')
    k(f'v_mov_b32 v251, s{S_NONCE}')
    k('s_mov_b64 exec, 1')
    k(f'buffer_store_dword v251, v250, s[{S_FLG}:{S_FLG+3}], 0 offen sc1')
    k('s_mov_b64 exec, -1')

def wave_publish(k, sidx):
    L = uid('WPUB')
    k(f's_cmp_lg_u32 s{S_NONCE}, 0')
    k(f's_cbranch_scc1 {L}_OK')
    k('s_mov_b32 s98, 0')
    k.label(f'{L}_L')
    k(f'v_mov_b32 v250, 0')
    k(f'global_load_dword v251, v250, s[{S_DBG}:{S_DBG+1}] sc1')
    k('s_waitcnt vmcnt(0)')
    k(f'v_readfirstlane_b32 s{S_NONCE}, v251')
    k('s_add_u32 s98, s98, 1')
    k('s_cmp_gt_u32 s98, 0x4000')
    k(f's_cbranch_scc1 {L}_OK')
    k(f's_cmp_eq_u32 s{S_NONCE}, 0')
    k(f's_cbranch_scc1 {L}_L')
    k.label(f'{L}_OK')
    k(f's_lshl_b32 s98, s{sidx}, 7')
    k(f'v_mov_b32 v250, s98')
    k(f'v_mov_b32 v251, s{S_NONCE}')
    k('s_mov_b64 exec, 1')
    k(f'buffer_store_dword v251, v250, s[{S_FLG}:{S_FLG+3}], 0 offen sc1')
    k('s_mov_b64 exec, -1')

def publish(k, sidx):
    L = uid('PUB')
    k('s_waitcnt vmcnt(0) lgkmcnt(0)')
    k('s_barrier')
    k(f's_cmp_eq_u32 s{S_W}, 0')
    k(f's_cbranch_scc0 {L}')
    get_nonce(k)
    k(f's_lshl_b32 s98, s{sidx}, 7')
    k(f'v_mov_b32 v250, s98')
    k(f'v_mov_b32 v251, s{S_NONCE}')
    k('s_mov_b64 exec, 1')
    k(f'buffer_store_dword v251, v250, s[{S_FLG}:{S_FLG+3}], 0 offen sc1')
    k('s_mov_b64 exec, -1')
    k.label(L)

def wait_flags(k, idxcode, pre=None, share_nonce=None, idxcode2=None):
    L = uid('WAIT')
    k(f's_cmp_eq_u32 s{S_W}, 0')
    k(f's_cbranch_scc0 {L}_B')
    get_nonce(k)
    idxcode(k)
    k('v_lshlrev_b32 v250, 7, v250')
    if idxcode2:
        k('v_mov_b32 v248, v250')
        idxcode2(k)
        k('v_lshlrev_b32 v250, 7, v250')
    k('s_mov_b32 s98, 0')
    def issue(a, b):
        k(f'buffer_load_dword v{a}, v250, s[{S_FLG}:{S_FLG+3}], 0 offen sc1')
        if idxcode2: k(f'buffer_load_dword v{b}, v248, s[{S_FLG}:{S_FLG+3}], 0 offen sc1')
    def check(a, b):
        if idxcode2:
            k(f'v_xor_b32 v{a}, s{S_NONCE}, v{a}')
            k(f'v_xor_b32 v{b}, s{S_NONCE}, v{b}')
            k(f'v_or_b32 v{a}, v{a}, v{b}')
            k(f'v_cmp_ne_u32 vcc, 0, v{a}')
        else:
            k(f'v_cmp_ne_u32 vcc, s{S_NONCE}, v{a}')
        k('s_nop 1')
        k('s_cmp_eq_u64 vcc, 0')
    n = 2 if idxcode2 else 1
    issue(251, 247)
    k.label(f'{L}_L')
    issue(254, 246)
    k(f's_waitcnt vmcnt({n})')
    check(251, 247)
    k(f's_cbranch_scc1 {L}_E')
    issue(251, 247)
    k('s_add_u32 s98, s98, 1')
    k(f's_waitcnt vmcnt({n})')
    check(254, 246)
    k(f's_cbranch_scc1 {L}_E')
    k('s_cmp_gt_u32 s98, 0x2000')
    k(f's_cbranch_scc0 {L}_L')
    k.label(f'{L}_E')
    if share_nonce is not None:
        k(f'v_mov_b32 v252, {share_nonce}')
        k(f'v_mov_b32 v253, s{S_NONCE}')
        k('ds_write_b32 v252, v253')
        k('s_waitcnt lgkmcnt(0)')
    k.label(f'{L}_B')
    if pre: k(pre)
    k('s_barrier')
    if share_nonce is not None:
        k(f'v_mov_b32 v252, {share_nonce}')
        k('ds_read_b32 v253, v252')
        k('s_waitcnt lgkmcnt(0)')
        k(f'v_readfirstlane_b32 s{S_NONCE}, v253')

def piecewise(k, segs, lane='v2'):
    start = 0
    first = True
    for (cnt, fn) in segs:
        k(f'v_subrev_u32 v252, {start}, {lane}')
        k(f'v_min_u32 v252, {cnt-1}, v252') if start + cnt >= 64 or (cnt, fn) == segs[-1] else None
        fn(k, 'v252', 'v253')
        if first:
            k('v_mov_b32 v250, v253'); first = False
        else:
            k(f'v_cmp_le_u32 vcc, {start}, {lane}')
            k('v_cndmask_b32 v250, v250, v253, vcc')
        start += cnt
```

```python
from pk_common import *

def prologue(k):
    k('s_cmp_ge_u32 s2, 256')
    k('s_cbranch_scc1 PK_END')
    k('s_load_dwordx16 s[64:79], s[0:1], 0')
    k('s_load_dwordx8 s[80:87], s[0:1], 64')
    k('v_lshrrev_b32 v1, 6, v0')
    k('v_and_b32 v2, 63, v0')
    k(f'v_readfirstlane_b32 s{S_W}, v1')
    k(f's_mov_b32 s{S_ID}, s2')
    k('s_add_u32 s98, s2, 128')
    k('s_sub_u32 s99, s2, 64')
    k('s_cmp_lt_u32 s2, 128')
    k(f's_cselect_b32 s{S_VID}, s98, s99')
    k('s_cmp_lt_u32 s2, 64')
    k(f's_cselect_b32 s{S_VID}, s2, s{S_VID}')
    k('v_lshlrev_b32 v3, 4, v2')
    k(f's_mov_b32 s{S_NONCE}, 0')
    if TIMING: k('v_mov_b32 v255, 0')
    k('s_waitcnt lgkmcnt(0)')
    stamp(k, 0)
    k('v_mov_b32 v250, 0')
    k(f's_cmp_eq_u32 s{S_W}, 0')
    k('s_cbranch_scc0 PK_NONONCE')
    k(f's_cmp_eq_u32 s{S_ID}, 0')
    k('s_cbranch_scc0 PK_LDNONCE')
    k(f's_memrealtime s[{S_T0}:{S_T1}]')
    k('s_waitcnt lgkmcnt(0)')
    k(f's_or_b32 s{S_NONCE}, s{S_T0}, 1')
    k(f'v_mov_b32 v251, s{S_NONCE}')
    k('s_mov_b64 exec, 1')
    k(f'global_store_dword v250, v251, s[{S_DBG}:{S_DBG+1}] sc1')
    k('s_mov_b64 exec, -1')
    k('s_branch PK_NONONCE')
    k.label('PK_LDNONCE')
    k(f'global_load_dword v249, v250, s[{S_DBG}:{S_DBG+1}] sc1')
    k.label('PK_NONONCE')
    srd(k, S_FLG, S_WS, WS_FLG, SZ_FLG)

CODE_BYTES = 49152
def code_prefetch(k):
    L = uid('PC')
    k(f's_getpc_b64 s[{S_T0}:{S_T1}]')
    k.label(L)
    k(f's_sub_u32 s{S_T0}, s{S_T0}, {L}-adaLN_cond__mha_block__glu_gated_swiglu__prompt_kernel')
    k(f's_subb_u32 s{S_T1}, s{S_T1}, 0')
    k(f's_lshl_b32 s98, s{S_W}, 13')
    k('v_lshlrev_b32 v246, 7, v2')
    k('v_add_u32 v246, s98, v246')
    k('v_min_u32 v246, PK_CODE_END-adaLN_cond__mha_block__glu_gated_swiglu__prompt_kernel-4, v246')
    k(f'global_load_dword v245, v246, s[{S_T0}:{S_T1}]')

LDS_WQ = 32768
WQR = 128
def p2_decode(k):
    k(f's_and_b32 s58, s{S_VID}, 7')
    k(f's_lshr_b32 s59, s{S_VID}, 3')
    k('s_lshr_b32 s56, s58, 1')
    k('s_lshl_b32 s56, s56, 2')
    k('s_and_b32 s57, s59, 3')
    k('s_add_u32 s56, s56, s57')
    k('s_and_b32 s57, s58, 1')
    k('s_mul_i32 s57, s57, 6')
    k('s_lshr_b32 s59, s59, 2')
    k('s_add_u32 s57, s57, s59')

def wq_loads(k):
    p2_decode(k)
    srd(k, 60, S_WQKV, 0, 512*3072)
    k('v_and_b32 v224, 7, v2')
    k('v_bfe_u32 v225, v2, 3, 1')
    k('v_lshrrev_b32 v226, 4, v2')
    k('v_lshlrev_b32 v227, 4, v226')
    k('v_lshl_add_u32 v227, v225, 3, v227')
    k('v_mul_u32_u24 v227, 3072, v227')
    k('v_lshl_add_u32 v227, v224, 4, v227')
    k(f's_mul_i32 s58, s{S_W}, {64*3072}')
    k('s_lshl_b32 s59, s57, 8')
    k('s_add_u32 s58, s58, s59')
    for j in range(8):
        for ch in range(2):
            k(f'buffer_load_dwordx4 {vr(WQR+32*ch+4*j,4)}, v227, s[60:63], s58 offen offset:{128*ch}')
        if j < 7: k('s_add_u32 s58, s58, 3072')

def wq_finish(k):
    k('v_lshlrev_b32 v228, 12, v226')
    k('v_lshrrev_b32 v229, 2, v224')
    k('v_lshl_add_u32 v228, v229, 10, v228')
    k('v_lshl_add_u32 v228, v225, 9, v228')
    k('v_and_b32 v229, 3, v224')
    k('v_lshl_add_u32 v228, v229, 7, v228')
    k(f's_lshl_b32 s58, s{S_W}, 14')
    k(f's_add_u32 s58, s58, {LDS_WQ}')
    k('v_add_u32 v228, s58, v228')
    k('v_mov_b32 v229, v224')
    k('v_lshlrev_b32 v229, 4, v229')
    for c in range(8):
        k(f'v_xor_b32 v{230+c}, {16*c}, v229')
        k(f'v_add_u32 v{230+c}, v{230+c}, v228')
    k('s_mov_b32 s58, 0x05040100')
    k('s_mov_b32 s59, 0x07060302')
    for ch in range(2):
        k(f's_waitcnt vmcnt(0)' if ch == 0 else 's_nop 0')
        R = WQR + 32*ch
        for c in range(8):
            for d in range(4):
                k(f'v_perm_b32 v{192+4*c+d}, v{R+4*(2*d+1)+(c>>1)}, v{R+4*(2*d)+(c>>1)}, s{58+(c&1)}')
        for c in range(8):
            k(f'ds_write_b128 v{230+c}, {vr(192+4*c,4)} offset:{2048*ch}')

def gen_p1(k):
    k(f's_cmp_ge_u32 s{S_VID}, 192')
    k('s_cbranch_scc1 P1_H')
    k('s_mov_b32 s37, 0')
    k(f's_cmp_ge_u32 s{S_VID}, 64')
    k('s_cbranch_scc1 P1_NC')
    k(f's_lshr_b32 s20, s{S_VID}, 4')
    k(f's_and_b32 s21, s{S_VID}, 15')
    k('s_branch P1_GEMV')
    k.label('P1_NC')
    k(f's_cmp_ge_u32 s{S_VID}, 128')
    k('s_cbranch_scc1 P1_NC2')
    k(f's_sub_u32 s22, s{S_VID}, 64')
    k('s_lshr_b32 s20, s22, 4')
    k('s_and_b32 s21, s22, 15')
    k('s_add_u32 s21, s21, 24')
    k('s_branch P1_GEMV')
    k.label('P1_NC2')
    k(f's_sub_u32 s22, s{S_VID}, 128')
    k('s_lshr_b32 s20, s22, 4')
    k('s_and_b32 s21, s22, 15')
    k('s_cmp_ge_u32 s21, 8')
    k('s_cselect_b32 s23, 32, 16')
    k('s_add_u32 s21, s21, s23')
    k('s_branch P1_GEMV')

    k.label('P1_GEMV')
    srd(k, 8, S_WMOD, 0, 512*6144)
    srd(k, 12, S_C, 0, 1024)
    k('v_lshrrev_b32 v4, 3, v2')
    k('v_and_b32 v5, 7, v2')
    k('v_mul_u32_u24 v6, 6144, v4')
    k('v_lshl_add_u32 v6, v5, 4, v6')
    k('v_lshlrev_b32 v7, 1, v4')
    k('s_lshl_b32 s22, s20, 7')
    k(f's_lshl_b32 s23, s{S_W}, 4')
    k('s_add_u32 s22, s22, s23')
    k('s_lshl_b32 s23, s22, 1')
    k('buffer_load_ushort v16, v7, s[12:15], s23 offen')
    k('buffer_load_ushort v17, v7, s[12:15], s23 offen offset:16')
    k('s_mul_i32 s22, s22, 6144')
    k('s_lshl_b32 s23, s21, 7')
    k('s_add_u32 s22, s22, s23')
    k('buffer_load_dwordx4 v[20:23], v6, s[8:11], s22 offen')
    k(f's_add_u32 s22, s22, {8*6144}')
    k('buffer_load_dwordx4 v[24:27], v6, s[8:11], s22 offen')
    code_prefetch(k)
    stamp(k, 40)
    k('v_lshrrev_b32 v56, 4, v0')
    k('v_lshlrev_b32 v56, 8, v56')
    k('v_lshl_add_u32 v56, v5, 5, v56')
    k('v_lshlrev_b32 v57, 2, v2')
    k('s_waitcnt vmcnt(3)')
    for m in range(2):
        k(f'v_lshlrev_b32 v{16+m}, 16, v{16+m}')
        k(f'v_mul_f32 v{18+m}, {hex(f2u(-LOG2E))}, v{16+m}')
    for m in range(2): k(f'v_exp_f32 v{18+m}, v{18+m}')
    for m in range(2): k(f'v_add_f32 v{18+m}, 1.0, v{18+m}')
    for m in range(2): k(f'v_rcp_f32 v{18+m}, v{18+m}')
    for m in range(2): k(f'v_mul_f32 v{16+m}, v{16+m}, v{18+m}')
    for m in range(2): k(f'v_cvt_pk_bf16_f32 v{16+m}, v{16+m}, v{16+m}')
    for m in range(2): k(f'v_lshlrev_b32 v{16+m}, 16, v{16+m}')
    k('s_waitcnt vmcnt(1)')
    stamp(k, 42)
    A = 48
    for d in range(4):
        k(f'v_lshlrev_b32 v{58+2*d}, 16, v{20+d}')
        k(f'v_and_b32 v{58+2*d+1}, 0xffff0000, v{20+d}')
    for e in range(8): k(f'v_mul_f32 v{A+e}, v{58+e}, v16')
    for d in range(4):
        k(f'v_lshlrev_b32 v{58+2*d}, 16, v{24+d}')
        k(f'v_and_b32 v{58+2*d+1}, 0xffff0000, v{24+d}')
    for e in range(8): k(f'v_fmac_f32 v{A+e}, v{58+e}, v17')
    for e in range(8):
        k(f'v_add_f32_dpp v{A+e}, v{A+e}, v{A+e} row_ror:8 row_mask:0xf bank_mask:0xf')
    k(f'ds_write_b128 v56, {vr(A,4)}')
    k(f'ds_write_b128 v56, {vr(A+4,4)} offset:16')
    k('s_waitcnt lgkmcnt(0)')
    k('s_barrier')
    k(f's_cmp_eq_u32 s{S_W}, 0')
    k('s_cbranch_scc0 P1_GPUB')
    for p in range(32): k(f'ds_read_b32 v{64+p}, v57 offset:{256*p}')
    get_nonce(k)
    k('s_waitcnt lgkmcnt(0)')
    for st in (16, 8, 4, 2, 1):
        for p in range(st): k(f'v_add_f32 v{64+p}, v{64+p}, v{64+p+st}')
    k('s_cmp_lt_u32 s21, 16')
    k('s_cbranch_scc0 P1_GPLAIN')
    srd(k, 8, S_WS, WS_MODT, SZ_MODT)
    k(f'v_mov_b32 v65, s{S_NONCE}')
    k('s_lshl_b32 s22, s20, 13')
    k('s_lshl_b32 s23, s21, 9')
    k('s_add_u32 s22, s22, s23')
    k('v_lshlrev_b32 v57, 3, v2')
    k(f'buffer_store_dwordx2 v[64:65], v57, s[8:11], s22 offen{SC}')
    k('s_branch P1_GPUB')
    k.label('P1_GPLAIN')
    srd(k, 8, S_WS, WS_MODP, SZ_MODP)
    k(f's_mul_i32 s22, s20, {3072*4}')
    k('s_lshl_b32 s23, s21, 8')
    k('s_add_u32 s22, s22, s23')
    k(f'buffer_store_dword v64, v57, s[8:11], s22 offen{SC}')
    k('s_mul_i32 s22, s20, 48')
    k('s_add_u32 s22, s22, s21')
    k(f's_add_u32 s22, s22, {F_G}')
    publish0(k, 22)
    k.label('P1_GPUB')
    stamp(k, 1)
    wq_loads(k)
    wq_finish(k)
    k('s_branch P1_DONE')

    k.label('P1_H')
    k(f's_sub_u32 s20, s{S_VID}, 192')
    srd(k, 8, S_X, 0, 2048*1024)
    k('v_and_b32 v4, 31, v2')
    k('v_lshrrev_b32 v5, 5, v2')
    k('v_lshlrev_b32 v6, 10, v4')
    k('v_lshl_add_u32 v6, v5, 4, v6')
    k(f's_lshl_b32 s21, s{S_W}, 7')
    k('s_lshl_b32 s22, s20, 15')
    k('s_add_u32 s21, s21, s22')
    X = 8
    for s_ in range(4):
        k(f'buffer_load_dwordx4 {vr(X+4*s_,4)}, v6, s[8:11], s21 offen offset:{32*s_}')
    k('v_mov_b32 v30, 0')
    k(f'global_load_dword v31, v30, s[{S_DBG}:{S_DBG+1}] sc1')
    code_prefetch(k)
    gen_uprime_raw(k)
    F = 32
    for i_ in range(4): k(f'v_mov_b32 v{24+i_}, 0')
    k('v_lshlrev_b32 v28, 3, v0')
    k('v_lshlrev_b32 v29, 3, v4')
    srd(k, 8, S_WS, WS_MODT, SZ_MODT)
    for s_ in range(4):
        k(f's_waitcnt vmcnt({8+2+3-s_})')
        for d in range(4):
            k(f'v_lshlrev_b32 v{F+8*s_+2*d}, 16, v{X+4*s_+d}')
            k(f'v_and_b32 v{F+8*s_+2*d+1}, 0xffff0000, v{X+4*s_+d}')
        for d in range(4):
            k(f'v_add_f32 v24, v24, v{F+8*s_+2*d}')
            k(f'v_add_f32 v25, v25, v{F+8*s_+2*d+1}')
            k(f'v_fmac_f32 v26, v{F+8*s_+2*d}, v{F+8*s_+2*d}')
            k(f'v_fmac_f32 v27, v{F+8*s_+2*d+1}, v{F+8*s_+2*d+1}')
    k('v_add_f32 v24, v24, v25')
    k('v_add_f32 v25, v26, v27')
    k('ds_write_b64 v28, v[24:25]')
    def issue_poll():
        for vec in range(2):
            for rq in range(4):
                k(f's_mov_b32 s24, {vec*4096 + rq*8192}')
                k(f'buffer_load_dwordx2 {vr(96+8*vec+2*rq,2)}, v28, s[8:11], s24 offen{SC}')
        k(f'global_load_dword v31, v30, s[{S_DBG}:{S_DBG+1}] sc1')
    k('s_waitcnt vmcnt(9)')
    k('v_readfirstlane_b32 s22, v31')
    issue_poll()
    k('s_waitcnt lgkmcnt(0)')
    k('s_barrier')
    for i_ in range(16): k(f'ds_read_b64 {vr(64+2*i_,2)}, v29 offset:{256*i_}')
    k('s_waitcnt lgkmcnt(0)')
    for st in (8, 4, 2, 1):
        for i_ in range(st):
            k(f'v_add_f32 v{64+2*i_}, v{64+2*i_}, v{64+2*(i_+st)}')
            k(f'v_add_f32 v{65+2*i_}, v{65+2*i_}, v{65+2*(i_+st)}')
    k(f'v_mul_f32 v24, {hex(f2u(1/512))}, v64')
    k(f'v_mul_f32 v25, {hex(f2u(1/512))}, v65')
    k('v_fma_f32 v25, -v24, v24, v25')
    k('v_max_f32 v25, 0, v25')
    k(f'v_add_f32 v25, {hex(f2u(1e-5))}, v25')
    k('v_rsq_f32 v25, v25')
    k('s_nop 0')
    k('v_mul_f32 v24, v24, v25')
    k('v_sub_f32 v24, 0, v24')
    for i_ in range(32): k(f'v_fma_f32 v{F+i_}, v{F+i_}, v25, v24')
    stamp(k, 45)
    k('s_mov_b32 s23, 0')
    k('s_branch P1_HCHK')
    k.label('P1_HPOLL')
    k('s_waitcnt vmcnt(0)')
    k('v_readfirstlane_b32 s22, v31')
    issue_poll()
    k.label('P1_HCHK')
    k('s_add_u32 s23, s23, 1')
    k('s_cmp_gt_u32 s23, 0x4000')
    k('s_cbranch_scc1 P1_HGOT')
    k('s_cmp_eq_u32 s22, 0')
    k('s_cbranch_scc1 P1_HPOLL')
    k('s_waitcnt vmcnt(1)')
    k('v_xor_b32 v26, s22, v97')
    for i_ in range(1, 8): k(f'v_xor_b32 v{80+i_}, s22, v{97+2*i_}')
    k('v_or3_b32 v26, v26, v81, v82')
    k('v_or3_b32 v26, v26, v83, v84')
    k('v_or3_b32 v26, v26, v85, v86')
    k('v_or_b32 v26, v26, v87')
    k('v_cmp_ne_u32 vcc, 0, v26')
    k('s_nop 1')
    k('s_cmp_lg_u64 vcc, 0')
    k('s_cbranch_scc1 P1_HPOLL')
    k.label('P1_HGOT')
    k(f's_mov_b32 s{S_NONCE}, s22')
    stamp(k, 2)
    for vec in range(2):
        b = 96 + 8*vec
        k(f'v_add_f32 v{b}, v{b}, v{b+2}')
        k(f'v_add_f32 v{b+4}, v{b+4}, v{b+6}')
    for vec in range(2): k(f'v_add_f32 v{96+8*vec}, v{96+8*vec}, v{96+8*vec+4}')
    k('v_cvt_pk_bf16_f32 v64, v96, v104')
    k('v_lshlrev_b32 v65, 16, v64')
    k('v_and_b32 v66, 0xffff0000, v64')
    k('v_add_f32 v66, 1.0, v66')
    k('v_cvt_pk_bf16_f32 v66, v66, v66')
    k('v_lshlrev_b32 v66, 16, v66')
    k('v_lshlrev_b32 v28, 2, v0')
    k('ds_write_b32 v28, v65 offset:4096')
    k('ds_write_b32 v28, v66 offset:6144')
    k(f's_lshl_b32 s22, s{S_W}, 8')
    k('v_lshlrev_b32 v28, 5, v5')
    k('v_add_u32 v28, s22, v28')
    srd(k, 8, S_WS, WS_H, SZ_H)
    k(f's_lshl_b32 s21, s{S_W}, 12')
    k('s_lshl_b32 s22, s20, 15')
    k('s_add_u32 s21, s21, s22')
    k('s_waitcnt lgkmcnt(0)')
    k('s_barrier')
    stamp(k, 48)
    SA, CA = 64, 96
    for s_ in range(4):
        k(f'ds_read_b128 {vr(SA+8*s_,4)}, v28 offset:{4096+64*s_}')
        k(f'ds_read_b128 {vr(SA+8*s_+4,4)}, v28 offset:{4096+64*s_+16}')
        k(f'ds_read_b128 {vr(CA+8*s_,4)}, v28 offset:{6144+64*s_}')
        k(f'ds_read_b128 {vr(CA+8*s_+4,4)}, v28 offset:{6144+64*s_+16}')
    for s_ in range(4):
        k(f's_waitcnt lgkmcnt({12-4*s_})')
        for i_ in range(8*s_, 8*s_+8): k(f'v_fma_f32 v{F+i_}, v{F+i_}, v{CA+i_}, v{SA+i_}')
        for i_ in range(4*s_, 4*s_+4): k(f'v_cvt_pk_bf16_f32 v{X+i_}, v{F+2*i_}, v{F+2*i_+1}')
        k(f'buffer_store_dwordx4 {vr(X+4*s_,4)}, v3, s[8:11], s21 offen offset:{1024*s_}{SC}')
    k(f's_add_u32 s22, s20, {F_H}')
    publish(k, 22)
    stamp(k, 47)
    k.label('P1_DONE')
    stamp(k, 3)


def gen_uprime_raw(k):
    k(f's_sub_u32 s40, s{S_VID}, 192')
    k('s_mul_i32 s40, s40, 6')
    k(f's_add_u32 s40, s40, s{S_W}')
    k(f's_cmp_ge_u32 s{S_W}, 6')
    k('s_cselect_b32 s40, 1000, s40')
    k('s_min_u32 s40, s40, 352')
    k('s_and_b32 s43, s40, 1')
    k('s_bfe_u32 s44, s40, 0x30001')
    k('s_lshr_b32 s41, s40, 4')
    R = 192
    k('s_cmp_eq_u32 s43, 0')
    k(f's_cselect_b32 s52, s{S_W1}, s{S_W3}')
    k(f's_cselect_b32 s53, s{S_W1+1}, s{S_W3+1}')
    k(f's_mov_b32 s54, {512*2752}')
    k('s_mov_b32 s55, 0x20000')
    k('v_and_b32 v224, 7, v2')
    k('v_bfe_u32 v225, v2, 3, 1')
    k('v_lshrrev_b32 v226, 4, v2')
    k('v_lshlrev_b32 v227, 4, v226')
    k('v_lshl_add_u32 v227, v225, 2, v227')
    k('v_mul_u32_u24 v228, 2752, v227')
    k('v_lshl_add_u32 v228, v224, 4, v228')
    k('s_lshl_b32 s45, s44, 6')
    k('s_mul_i32 s46, s45, 2752')
    k('s_lshl_b32 s47, s41, 7')
    k('s_add_u32 s46, s46, s47')
    for j in range(8):
        k(f'buffer_load_dwordx4 {vr(R+4*j,4)}, v228, s[52:55], s46 offen')
        if j < 7: k(f's_add_u32 s46, s46, {2752*(5 if j == 3 else 1)}')

def gen_uprime_pre(k):
    k('s_cmp_ge_u32 s40, 352')
    k('s_cbranch_scc1 UP_END')
    k('v_mov_b32 v20, 0')
    k('v_lshrrev_b32 v21, 4, v2')
    k('v_mul_u32_u24 v21, 48, v21')
    k('v_and_b32 v22, 15, v2')
    k(f'v_add3_u32 v21, v21, v22, {F_G+24}')
    k('v_lshlrev_b32 v21, 7, v21')
    k('s_mov_b32 s48, 0')
    k.label('UP_POLL')
    k(f'buffer_load_dword v23, v21, s[{S_FLG}:{S_FLG+3}], 0 offen sc1')
    k('s_add_u32 s48, s48, 1')
    k('s_cmp_gt_u32 s48, 0x4000')
    k('s_cbranch_scc1 UP_GO')
    k('s_waitcnt vmcnt(0)')
    k(f'v_cmp_ne_u32 vcc, s{S_NONCE}, v23')
    k('s_nop 1')
    k('s_cmp_lg_u64 vcc, 0')
    k('s_cbranch_scc1 UP_POLL')
    k.label('UP_GO')
    stamp(k, 54)
    srd(k, 8, S_WS, WS_MODP, SZ_MODP)
    k('v_lshlrev_b32 v15, 2, v227')
    k('s_lshl_b32 s46, s45, 2')
    PB = 96
    for vec, idx in ((0, 3), (1, 4)):
        for rq in range(4):
            k(f's_add_u32 s47, s46, {idx*2048 + rq*3072*4}')
            k(f'buffer_load_dwordx4 {vr(PB+32*vec+8*rq,4)}, v15, s[8:11], s47 offen{SC}')
            k(f'buffer_load_dwordx4 {vr(PB+32*vec+8*rq+4,4)}, v15, s[8:11], s47 offen offset:32{SC}')
    k('s_waitcnt vmcnt(0)')
    SB, CB = 32, 40
    for vec, dst in ((0, SB), (1, CB)):
        b = PB + 32*vec
        for j in range(8):
            k(f'v_add_f32 v{b+j}, v{b+j}, v{b+8+j}')
            k(f'v_add_f32 v{b+16+j}, v{b+16+j}, v{b+24+j}')
        for j in range(8): k(f'v_add_f32 v{b+j}, v{b+j}, v{b+16+j}')
        for j in range(8): k(f'v_cvt_pk_bf16_f32 v{b+j}, v{b+j}, v{b+j}')
        for j in range(8): k(f'v_lshlrev_b32 v{dst+j}, 16, v{b+j}')
    for j in range(8): k(f'v_add_f32 v{CB+j}, 1.0, v{CB+j}')
    for j in range(8): k(f'v_cvt_pk_bf16_f32 v{CB+j}, v{CB+j}, v{CB+j}')
    for j in range(8): k(f'v_lshlrev_b32 v{CB+j}, 16, v{CB+j}')
    stamp(k, 49)

def gen_uprime(k, LDSB):
    R = 192
    srd(k, 28, S_WS, WS_W13, SZ_W13)
    k('v_lshrrev_b32 v16, 1, v224')
    k('v_and_b32 v17, 1, v16')
    k('v_lshl_or_b32 v17, v17, 2, v226')
    k('v_lshlrev_b32 v17, 4, v17')
    k('v_and_b32 v16, 1, v16')
    k('v_lshlrev_b32 v16, 11, v16')
    k('v_lshl_add_u32 v16, v226, 9, v16')
    k('v_lshl_add_u32 v16, v225, 8, v16')
    k('v_and_b32 v18, 1, v224')
    k('v_lshl_add_u32 v16, v18, 7, v16')
    k(f's_lshl_b32 s46, s{S_W}, 12')
    k(f's_add_u32 s46, s46, {LDSB}')
    k('v_add_u32 v16, s46, v16')
    SB, CB = 32, 40
    F = 96
    for j in range(8):
        for d in range(4):
            k(f'v_lshlrev_b32 v{F+8*j+2*d}, 16, v{R+4*j+d}')
            k(f'v_and_b32 v{F+8*j+2*d+1}, 0xffff0000, v{R+4*j+d}')
    BP, CS = 48, 56
    for c in range(8): k(f'v_mul_f32 v{BP+c}, v{F+c}, v{SB}')
    for j in range(1, 8):
        for c in range(8): k(f'v_fmac_f32 v{BP+c}, v{F+8*j+c}, v{SB+j}')
    for j in range(8):
        for c in range(8): k(f'v_mul_f32 v{F+8*j+c}, v{F+8*j+c}, v{CB+j}')
    OUT = 160
    for c in range(8):
        for d in range(4): k(f'v_cvt_pk_bf16_f32 v{OUT+4*c+d}, v{F+16*d+c}, v{F+16*d+8+c}')
    k('s_mov_b32 s47, 0x3f803f80')
    for c in range(8):
        k(f'v_dot2_f32_bf16 v{CS+c}, v{OUT+4*c}, s47, 0')
    for d in range(1, 4):
        for c in range(8):
            k(f'v_dot2_f32_bf16 v{CS+c}, v{OUT+4*c+d}, s47, v{CS+c}')
    stamp(k, 50)
    k('v_lshrrev_b32 v18, 5, v2')
    k('v_and_b32 v19, 15, v2')
    k('v_bfe_u32 v24, v2, 4, 1')
    k('v_lshlrev_b32 v24, 8, v24')
    k('v_lshl_add_u32 v24, v18, 9, v24')
    k('v_add_u32 v24, s46, v24')
    for c in range(8):
        k(f'v_xor_b32 v{200+c}, {16*c}, v17')
        k(f'v_add_u32 v{200+c}, v{200+c}, v16')
    k('v_cmp_gt_u32 vcc, 4, v224')
    k('s_nop 1')
    k('s_mov_b64 s[48:49], vcc')
    for ph in range(2):
        if ph == 0: k('s_mov_b64 exec, s[48:49]')
        else:       k('s_andn2_b64 exec, -1, s[48:49]')
        for c in range(8): k(f'ds_write_b128 v{200+c}, {vr(OUT+4*c,4)}')
        k('s_mov_b64 exec, -1')
        k('s_waitcnt lgkmcnt(0)')
        for i in range(4*ph, 4*ph+4):
            ul, s2 = i >> 1, 2*(i & 1)
            k(f'v_or_b32 v25, {s2 | ((ul & 1) << 2)}, v18')
            k('v_xor_b32 v25, v25, v19')
            k('v_lshl_add_u32 v25, v25, 4, v24')
            k(f'ds_read_b128 {vr(F+4*i,4)}, v25 offset:{(ul & 1)*2048 + s2*512}')
        k('s_waitcnt lgkmcnt(0)')
    stamp(k, 51)
    for e in range(16):
        k(f'v_add_f32_dpp v{BP+e}, v{BP+e}, v{BP+e} row_ror:8 row_mask:0xf bank_mask:0xf')
    for op in ('v_permlane16_swap_b32', 'v_permlane32_swap_b32'):
        for e in range(16): k(f'v_mov_b32 v{OUT+e}, v{BP+e}')
        for e in range(16): k(f'{op} v{BP+e}, v{OUT+e}')
        for e in range(16): k(f'v_add_f32 v{BP+e}, v{BP+e}, v{OUT+e}')
    k('v_lshlrev_b32 v26, 10, v18')
    k('v_bfe_u32 v27, v2, 4, 1')
    k('v_lshl_add_u32 v26, v27, 9, v26')
    k('v_lshl_add_u32 v26, v19, 4, v26')
    k(f's_mul_i32 s46, s41, {4*U_STRIDE}')
    k('s_lshl_b32 s47, s44, 12')
    k('s_add_u32 s46, s46, s47')
    k('s_lshl_b32 s47, s43, 8')
    k('s_add_u32 s46, s46, s47')
    k('s_waitcnt lgkmcnt(0)')
    for i in range(8):
        ul, s2 = i >> 1, 2*(i & 1)
        k(f's_add_u32 s47, s46, {ul*U_STRIDE}')
        k(f'buffer_store_dwordx4 {vr(F+4*i,4)}, v26, s[28:31], s47 offen offset:{s2*1024}{SC}')
    stamp(k, 52)
    k(f's_lshl_b32 s46, s{S_W}, 12')
    k(f's_add_u32 s46, s46, {LDSB}')
    k('v_lshlrev_b32 v18, 6, v224')
    k('v_add_u32 v18, s46, v18')
    for q in range(4): k(f'ds_write_b128 v18, {vr(BP+4*q,4)} offset:{16*q}')
    k('v_lshrrev_b32 v19, 3, v2')
    k('v_lshlrev_b32 v19, 6, v19')
    k('v_and_b32 v24, 7, v2')
    k('v_lshl_add_u32 v19, v24, 2, v19')
    k('v_add_u32 v19, s46, v19')
    k('s_waitcnt lgkmcnt(0)')
    k('ds_read_b32 v24, v19')
    k('ds_read_b32 v25, v19 offset:32')
    srd(k, 8, S_WS, WS_CSB, SZ_CSB)
    k('s_lshl_b32 s47, s41, 6')
    k('v_add_u32 v19, s47, v2')
    k('v_cmp_gt_u32 vcc, 1376, v19')
    k('s_mul_i32 s47, s43, 1376')
    k('v_add_u32 v19, s47, v19')
    k('v_lshlrev_b32 v19, 2, v19')
    k('v_mov_b32 v20, 0x40000000')
    k('v_cndmask_b32 v19, v20, v19, vcc')
    k(f's_mul_i32 s47, s44, {2*2752*4}')
    k('s_waitcnt lgkmcnt(0)')
    k(f'buffer_store_dword v25, v19, s[8:11], s47 offen{SC}')
    k(f's_add_u32 s47, s47, {2752*4}')
    k(f'buffer_store_dword v24, v19, s[8:11], s47 offen{SC}')
    stamp(k, 53)
    k('s_waitcnt vmcnt(0)')
    k(f's_add_u32 s40, s40, {F_W13}')
    k('s_lshl_b32 s40, s40, 7')
    k('v_mov_b32 v20, s40')
    k(f'v_mov_b32 v21, s{S_NONCE}')
    k('s_mov_b64 exec, 1')
    k(f'buffer_store_dword v21, v20, s[{S_FLG}:{S_FLG+3}], 0 offen sc1')
    k('s_mov_b64 exec, -1')
    k.label('UP_END')


def gen_tlate(k, LDSB, LCNT):
    k(f's_mov_b32 s25, s{S_VID}')
    k('s_cmp_ge_u32 s25, 59')
    k('s_cbranch_scc1 TL_END')
    k('s_cmp_ge_u32 s25, 16')
    k('s_cbranch_scc1 TL_W2')
    srd(k, 16, S_WO, 0, 512*1024)
    srd(k, 28, S_WS, WS_WO, SZ_WO)
    k(f's_mov_b32 s32, {32*1024}')
    k(f's_add_u32 s35, s25, {F_WO}')
    k('s_branch TL_GO')
    k.label('TL_W2')
    k('s_sub_u32 s25, s25, 16')
    srd(k, 16, S_W2, 0, 1376*1024)
    srd(k, 28, S_WS, WS_W2, SZ_W2)
    k(f's_mov_b32 s32, {86*1024}')
    k(f's_add_u32 s35, s25, {F_W2}')
    k.label('TL_GO')
    k(f's_sub_u32 s36, s{S_W}, 4')
    k('v_and_b32 v8, 31, v2')
    k('v_lshrrev_b32 v9, 5, v2')
    k('v_lshlrev_b32 v10, 12, v9')
    k('v_lshl_add_u32 v10, v8, 3, v10')
    k('s_lshl_b32 s39, s36, 8')
    k('v_add_u32 v10, s39, v10')
    k('s_lshl_b32 s38, s25, 15')
    R = 64
    for rnd in range(2):
        for j in range(8):
            row = 16*rnd + (j % 4) + 8*(j // 4)
            k(f's_add_u32 s39, s38, {row*1024}')
            k(f'buffer_load_dwordx2 {vr(R+16*rnd+2*j,2)}, v10, s[16:19], s39 offen')
    k('v_lshrrev_b32 v11, 3, v8')
    k('v_lshlrev_b32 v11, 10, v11')
    k('v_and_b32 v12, 7, v8')
    k('v_lshl_add_u32 v11, v12, 6, v11')
    k('v_lshl_add_u32 v11, v9, 9, v11')
    k('s_lshl_b32 s38, s36, 12')
    k(f's_add_u32 s38, s38, {LDSB}')
    k('v_add_u32 v11, s38, v11')
    k('v_bfe_u32 v13, v8, 2, 1')
    k('v_lshl_or_b32 v13, v9, 1, v13')
    k('v_lshlrev_b32 v13, 4, v13')
    k('v_bfe_u32 v14, v2, 4, 1')
    k('v_lshrrev_b32 v15, 5, v2')
    k('v_lshl_or_b32 v14, v15, 1, v14')
    k('v_lshlrev_b32 v14, 4, v14')
    k('v_xor_b32 v12, v14, v3')
    k('v_add_u32 v12, s38, v12')
    for c in range(4):
        k(f'v_xor_b32 v{16+c}, {16*c}, v13')
        k(f'v_add_u32 v{16+c}, v{16+c}, v11')
    k('s_lshl_b32 s33, s25, 11')
    k('s_lshl_b32 s38, s36, 2')
    k('s_mul_i32 s38, s38, s32')
    k('s_add_u32 s33, s33, s38')
    k('s_mov_b32 s38, 0x05040100')
    k('s_mov_b32 s39, 0x07060302')
    OUT = 48
    for rnd in range(2):
        k(f's_waitcnt vmcnt({8 if rnd == 0 else 4})')
        for c in range(4):
            for d in range(4):
                k(f'v_perm_b32 v{OUT+4*c+d}, v{R+16*rnd+2*(2*d+1)+(c>>1)}, v{R+16*rnd+2*(2*d)+(c>>1)}, s{38+(c&1)}')
        for c in range(4): k(f'ds_write_b128 v{16+c}, {vr(OUT+4*c,4)}')
        k('s_waitcnt lgkmcnt(0)')
        for f in range(4): k(f'ds_read_b128 {vr(96+16*rnd+4*f,4)}, v12 offset:{1024*f}')
        k('s_mov_b32 s40, s33')
        for f in range(4):
            k(f's_waitcnt lgkmcnt({3-f})')
            k(f'buffer_store_dwordx4 {vr(96+16*rnd+4*f,4)}, v3, s[28:31], s40 offen offset:{1024*rnd}{SC}')
            if f < 3: k('s_add_u32 s40, s40, s32')
    k('s_waitcnt vmcnt(0)')
    k(f'v_mov_b32 v4, {LCNT}')
    k('v_mov_b32 v5, 1')
    k('s_mov_b64 exec, 1')
    k('ds_add_rtn_u32 v6, v4, v5')
    k('s_mov_b64 exec, -1')
    k('s_waitcnt lgkmcnt(0)')
    k('v_readfirstlane_b32 s98, v6')
    k('s_cmp_eq_u32 s98, 3')
    k('s_cbranch_scc0 TL_END')
    wave_publish(k, 35)
    stamp(k, 59)
    k.label('TL_END')
```

```python
from pk_common import *
from pk_p1 import gen_uprime, gen_uprime_pre, gen_tlate

LDS_CNT = 24576
LDS_WQ = 32768
def gen_p2(k):
    k(f's_cmp_ge_u32 s{S_VID}, 192')
    k('s_cbranch_scc1 P2_UP')
    k(f'v_mov_b32 v4, {LDS_CNT}')
    k('v_mov_b32 v5, 0')
    k('ds_write_b32 v4, v5')
    k('ds_write_b32 v4, v5 offset:8')
    srd(k, 8, S_WS, WS_H, SZ_H)
    srd(k, 28, S_WS, WS_Q, 3*SZ_Q)
    def idx_h(k):
        k('s_lshl_b32 s98, s56, 2')
        k(f's_add_u32 s98, s98, {F_H}')
        k('v_and_b32 v250, 3, v2')
        k('v_add_u32 v250, s98, v250')
    stamp(k, 4)
    wait_flags(k, idx_h, pre='s_waitcnt lgkmcnt(0)', share_nonce=LDS_CNT+4)
    stamp(k, 5)
    k(f's_cmp_ge_u32 s{S_W}, 4')
    k('s_cbranch_scc1 P2_HELP')
    k('s_lshl_b32 s20, s56, 2')
    k(f's_add_u32 s23, s20, s{S_W}')
    k('s_lshl_b32 s24, s23, 15')
    XR, WR, ACC = 48, 16, 136
    NRING = 22
    k('v_bfe_u32 v4, v2, 3, 2')
    k('v_xor_b32 v4, v4, v2')
    for q in range(2):
        k(f'v_xor_b32 v{8+q}, {4*q}, v4')
        k(f'v_lshlrev_b32 v{8+q}, 4, v{8+q}')
        k(f'v_add_u32 v{8+q}, {LDS_WQ}, v{8+q}')
        k(f'v_add_u32 v{12+q}, 0x10000, v{8+q}')
    def mainloop(vtype):
        vm = VM(k)
        k('s_mov_b32 s25, s24')
        def ldx(s):
            k(f'buffer_load_dwordx4 {vr(XR+4*(s%NRING),4)}, v3, s[8:11], s25 offen offset:{1024*(s&3)}{SC}')
            if (s & 3) == 3: k('s_add_u32 s25, s25, 4096')
            vm.issue(('x', s))
        PF0, PF = 6, 20
        nxt = [0]
        def more(n):
            for _ in range(n):
                if nxt[0] < 32: ldx(nxt[0]); nxt[0] += 1
        more(PF0)
        def rd1(s, u):
            st = s & 1
            o = (s*4+u)*1024
            k(f'ds_read_b128 {vr(WR+16*st+4*u,4)}, v{8+(u&1)} offset:{o}' if o < 65536 else
              f'ds_read_b128 {vr(WR+16*st+4*u,4)}, v{12+(u&1)} offset:{o-65536}')
        for u in range(4): rd1(0, u)
        NST = 32
        for s in range(NST):
            st = s & 1
            vm.wait(('x', s))
            if not vtype and s in (0, 8, 16, 24): stamp(k, 55 + s//8)
            xf = vr(XR+4*(s%NRING), 4)
            for u in range(4):
                k(f's_waitcnt lgkmcnt({3 if s+1 < NST else 3-u})')
                acc = vr(ACC+16*u, 16); w = vr(WR+16*st+4*u, 4)
                cin = acc if s > 0 else '0'
                if not vtype: k(f'{MF} {acc}, {w}, {xf}, {cin}')
                else:         k(f'{MF} {acc}, {xf}, {w}, {cin}')
                if s + 1 < NST: rd1(s+1, u)
                if u in (1, 3) and nxt[0] < min(NST, s + 1 + PF) : more(1)
    k('s_cmp_ge_u32 s57, 8')
    k('s_cbranch_scc1 P2_V')
    mainloop(False)
    stamp(k, 6)
    k('s_and_b32 s25, s57, 3')
    k('s_lshl_b32 s25, s25, 19')
    k('s_lshr_b32 s26, s57, 2')
    k('s_lshl_b32 s26, s26, 21')
    k('s_add_u32 s25, s25, s26')
    k('s_lshl_b32 s26, s23, 10')
    k('s_add_u32 s25, s25, s26')
    k(f's_mov_b32 s98, {hex(QSCALE)}')
    k('s_cmp_lt_u32 s57, 4')
    k('s_cselect_b32 s98, s98, 1.0')
    for u in range(4):
        for r in range(16): k(f'v_mul_f32 v{ACC+16*u+r}, s98, v{ACC+16*u+r}')
        for d in range(8): k(f'v_cvt_pk_bf16_f32 v{XR+8*u+d}, v{ACC+16*u+2*d}, v{ACC+16*u+2*d+1}')
        for hh in range(2):
            k(f'buffer_store_dwordx4 {vr(XR+8*u+4*hh,4)}, v3, s[28:31], s25 offen{SC}')
            k('s_add_u32 s25, s25, 0x10000')
    k('s_branch P2_CPUB')
    k.label('P2_V')
    mainloop(True)
    k('s_and_b32 s25, s57, 3')
    k('s_lshl_b32 s25, s25, 19')
    k(f's_add_u32 s25, s25, {2*SZ_Q}')
    k('s_lshl_b32 s26, s23, 10')
    k('s_add_u32 s25, s25, s26')
    k('v_bfe_u32 v5, v2, 4, 1')
    k('v_lshlrev_b32 v5, 16, v5')
    k('v_lshrrev_b32 v6, 5, v2')
    k('v_lshl_add_u32 v5, v6, 8, v5')
    k('v_and_b32 v6, 15, v2')
    k('v_lshl_add_u32 v5, v6, 4, v5')
    for u in range(4):
        for d in range(8): k(f'v_cvt_pk_bf16_f32 v{XR+8*u+d}, v{ACC+16*u+2*d}, v{ACC+16*u+2*d+1}')
        k(f'buffer_store_dwordx4 {vr(XR+8*u,4)}, v5, s[28:31], s25 offen{SC}')
        k(f'buffer_store_dwordx4 {vr(XR+8*u+4,4)}, v5, s[28:31], s25 offen offset:512{SC}')
        k('s_add_u32 s25, s25, 0x20000')
    k.label('P2_CPUB')
    k('s_waitcnt vmcnt(0)')
    k(f'v_mov_b32 v4, {LDS_CNT}')
    k('v_mov_b32 v5, 1')
    k('s_mov_b64 exec, 1')
    k('ds_add_rtn_u32 v6, v4, v5')
    k('s_mov_b64 exec, -1')
    k('s_waitcnt lgkmcnt(0)')
    k('v_readfirstlane_b32 s98, v6')
    k('s_cmp_eq_u32 s98, 3')
    k('s_cbranch_scc0 P2_PUB')
    k('s_mul_i32 s22, s56, 12')
    k('s_add_u32 s22, s22, s57')
    k(f's_add_u32 s22, s22, {F_P2}')
    wave_publish(k, 22)
    k('s_branch P2_PUB')
    k.label('P2_HELP')
    gen_tlate(k, 8192, LDS_CNT+8)
    k('s_branch P2_PUB')
    k.label('P2_UP')
    gen_uprime_pre(k)
    gen_uprime(k, 32768)
    k.label('P2_PUB')
    stamp(k, 7)

LDS_ONES = 131072
LDS_CMB  = 131072 + 5120
def gen_p3(k):
    L = 'P3'
    k(f's_and_b32 s6, s{S_ID}, 7')
    k(f's_lshr_b32 s7, s{S_ID}, 3')
    k('s_lshl_b32 s20, s6, 2')
    k('s_lshr_b32 s21, s7, 3')
    k('s_add_u32 s20, s20, s21')
    k('s_and_b32 s36, s7, 7')
    k('s_lshl_b32 s21, s36, 3')
    srd(k, 8, S_WS, WS_Q, 3*SZ_Q)
    srd(k, 12, S_WS, WS_O, SZ_Q)
    QF, KF, VF, S, O, CN, P = 4, 12, 20, 36, 68, 100, 132
    T0 = 148
    vK, vV, vVb, vInc = T0, T0+1, T0+2, T0+3
    t0, t1, t2, t3 = T0+4, T0+5, T0+6, T0+7
    k(f's_lshr_b32 s19, s{S_W}, 2')
    k(f's_and_b32 s22, s{S_W}, 3')
    k('s_lshl_b32 s22, s22, 1')
    k('s_add_u32 s21, s21, s22')
    k('s_add_u32 s28, s21, s19')
    k('s_xor_b32 s29, s19, 1')
    k('s_add_u32 s29, s21, s29')
    k(f'v_lshrrev_b32 v{t0}, 5, v2')
    k(f'v_lshlrev_b32 v{t0}, 8, v{t0}')
    k(f'v_and_b32 v{t1}, 15, v2')
    k(f'v_lshl_add_u32 v{t0}, v{t1}, 4, v{t0}')
    k(f'v_bfe_u32 v{t1}, v2, 4, 1')
    k(f'v_sub_u32 v{t2}, 1, v{t1}')
    k(f'v_lshlrev_b32 v{vInc}, 12, v{t2}')
    k('s_lshl_b32 s26, s19, 15')
    k(f's_add_u32 s26, s26, 0x10000')
    k(f'v_mul_lo_u32 v{t2}, v{t2}, s26')
    k(f'v_lshlrev_b32 v{t1}, 17, v{t1}')
    k(f'v_add3_u32 v{vVb}, v{t0}, v{t1}, v{t2}')
    k('s_lshl_b32 s26, s19, 15')
    k(f'v_add_u32 v{vK}, s26, v3')
    k(f'v_mov_b32 v{vV}, v{vVb}')
    for i in range(32): k(f'v_mov_b32 v{O+i}, 0')
    for i in range(4): k(f'v_mov_b32 v{P+8+4+i}, 0')
    for i in range(4): k(f'v_mov_b32 v{VF+8+4+i}, 0')
    def idx_p3(k):
        k('v_and_b32 v250, 15, v2')
        k('v_mul_u32_u24 v250, 12, v250')
        k('v_lshrrev_b32 v252, 4, v2')
        k('v_lshl_add_u32 v250, v252, 2, v250')
        k('s_lshr_b32 s98, s20, 3')
        k(f's_add_u32 s98, s98, {F_P2}')
        k('v_add_u32 v250, s98, v250')
        k('v_mov_b32 v252, s98')
        k('v_cmp_le_u32 vcc, 48, v2')
        k('s_nop 1')
        k('v_cndmask_b32 v250, v250, v252, vcc')
    def idx_ga(k):
        k('v_bfe_u32 v252, v2, 3, 2')
        k('v_mul_u32_u24 v252, 48, v252')
        k('v_and_b32 v253, 7, v2')
        k(f'v_add3_u32 v250, v252, v253, {F_G+16}')
    wait_flags(k, idx_p3, idxcode2=idx_ga)
    stamp(k, 8)
    k(f'v_and_b32 v{t0}, 31, v0')
    k(f'v_cmp_gt_u32 vcc, 2, v{t0}')
    k(f'v_mov_b32 v{t1}, 0x3f803f80')
    k(f'v_lshlrev_b32 v{t2}, 3, v0')
    k(f'v_cndmask_b32 v{t0}, 0, v{t1}, vcc')
    k(f'v_add_u32 v{t2}, {hex(LDS_ONES)}, v{t2}')
    k(f'v_mov_b32 v{t1}, v{t0}')
    k(f'ds_write_b64 v{t2}, v[{t0}:{t1}]')
    k(f'ds_write_b64 v{t2}, v[{t0}:{t1}] offset:1024')
    k('s_lshl_b32 s22, s20, 16')
    k('s_lshl_b32 s23, s28, 10')
    k('s_add_u32 s23, s23, s22')
    k(f'buffer_load_dwordx4 {vr(QF,4)}, v3, s[8:11], s23 offen{SC}')
    k('s_lshl_b32 s23, s29, 10')
    k('s_add_u32 s23, s23, s22')
    k(f'buffer_load_dwordx4 {vr(QF+4,4)}, v3, s[8:11], s23 offen{SC}')
    k(f's_lshl_b32 s24, s{S_W}, 10')
    k('s_add_u32 s25, s22, s24')
    k(f's_add_u32 s25, s25, {SZ_Q}')
    def dma(c, which):
        if which == 0:
            k(f's_add_u32 m0, s24, {c*8192}')
            k(f's_add_u32 s26, s25, {c*8192}')
        else:
            k(f's_add_u32 m0, s24, {c*8192 + 65536}')
            k(f's_add_u32 s26, s25, {c*8192 + SZ_Q}')
        k(f'buffer_load_dwordx4 v3, s[8:11], s26 offen{SC} lds')
    for c in (0, 4):
        dma(c, 0); dma(c, 1)
    k('s_waitcnt vmcnt(0) lgkmcnt(0)')
    k('s_barrier')
    k(f'ds_read_b128 {vr(VF,4)}, v3')
    k(f'ds_read_b128 {vr(KF,4)}, v{vK}')
    k(f'ds_read_b128 {vr(KF+4,4)}, v{vK} offset:1024')
    k('s_waitcnt lgkmcnt(2)')
    for x in range(2):
        k(f'{MF} {vr(S+16*x,16)}, {vr(VF,4)}, {vr(QF+4*x,4)}, 0')
    k(f'ds_read_b128 {vr(VF,4)}, v{vV}')
    k(f'ds_read_b128 {vr(VF+4,4)}, v{vV} offset:512')
    for x in range(2):
        m = t0 + x; b = S + 16*x
        k(f'v_max3_f32 v{m}, v{b}, v{b+1}, v{b+2}')
        for i in range(3, 15, 2): k(f'v_max3_f32 v{m}, v{m}, v{b+i}, v{b+i+1}')
        k(f'v_max_f32 v{m}, v{m}, v{b+15}')
    k(f'v_mov_b32 v{t2}, v{t0}')
    k(f'v_mov_b32 v{t3}, v{t1}')
    k(f'v_permlane32_swap_b32 v{t0}, v{t2}')
    k(f'v_permlane32_swap_b32 v{t1}, v{t3}')
    k(f'v_max_f32 v{t0}, v{t0}, v{t2}')
    k(f'v_max_f32 v{t1}, v{t1}, v{t3}')
    k(f'v_sub_f32 v{t0}, {hex(f2u(-40.0))}, v{t0}')
    k(f'v_sub_f32 v{t1}, {hex(f2u(-40.0))}, v{t1}')
    for i in range(16): k(f'v_mov_b32 v{CN+i}, v{t0}')
    k('s_waitcnt lgkmcnt(2)')
    k(f'{MF} {vr(S,16)}, {vr(KF,4)}, {vr(QF,4)}, {vr(CN,16)}')
    for i in range(16): k(f'v_mov_b32 v{CN+16+i}, v{t1}')
    k(f'{MF} {vr(S+16,16)}, {vr(KF,4)}, {vr(QF+4,4)}, {vr(CN+16,16)}')
    srd(k, 40, S_WS, WS_WO, SZ_WO)
    k('s_and_b32 s37, s7, 3')
    k('s_lshl_b32 s37, s37, 2')
    k(f's_and_b32 s38, s{S_W}, 3')
    k('s_add_u32 s37, s37, s38')
    k('s_lshl_b32 s37, s37, 15')
    k('s_lshl_b32 s38, s19, 14')
    k('s_add_u32 s37, s37, s38')
    k('s_lshl_b32 s38, s19, 4')
    k('v_xor_b32 v156, s38, v2')
    k('v_lshlrev_b32 v156, 4, v156')
    k('s_mov_b32 s31, 0')
    k('s_nop 1')
    stamp(k, 9)
    def step(u, extra):
        kc, kn = KF + 4*(u & 1), KF + 4*((u+1) & 1)
        vc, vn = VF + 8*(u & 1), VF + 8*((u+1) & 1)
        ex = list(extra) if extra else []
        def X():
            if ex: ex.pop(0)()
        for x in range(2):
            cur = S + 16*x; o = O + 16*x; p = P + 8*x
            E = lambda i: k(f'v_exp_f32 v{cur+i}, v{cur+i}')
            if x == 0: k('s_waitcnt lgkmcnt(0)')
            E(0)
            if x == 0: k(f'ds_read_b128 {vr(kc,4)}, v{vK} offset:{1024*(u+2)}')
            E(1)
            if x == 0: k(f'ds_read_b128 {vr(vn,4)}, v{vV} offset:{1024*(u+1)}')
            E(2); X(); E(3)
            if x == 0: k(f'{MF} {vr(O+16,16)}, {vr(vn+4,4)}, {vr(P+8+4,4)}, {vr(O+16,16)}')
            else:      k(f'{MF} {vr(O,16)}, {vr(vc+4,4)}, {vr(P+4,4)}, {vr(O,16)}')
            E(4)
            if x == 0: k(f'ds_read_b128 {vr(vn+4,4)}, v{vV} offset:{1024*(u+1)+512}')
            E(5); X(); E(6); E(7)
            for d in range(4): k(f'v_cvt_pk_bf16_f32 v{p+d}, v{cur+2*d}, v{cur+2*d+1}')
            E(8); E(9)
            k(f'{MF} {vr(o,16)}, {vr(vc,4)}, {vr(p,4)}, {vr(o,16)}')
            for i in range(10, 16): E(i)
            for d in range(4): k(f'v_cvt_pk_bf16_f32 v{p+4+d}, v{cur+8+2*d}, v{cur+8+2*d+1}')
            k(f'{MF} {vr(cur,16)}, {vr(kn,4)}, {vr(QF+4*x,4)}, {vr(CN+16*x,16)}')
    def tail():
        k(f'v_add_u32 v{vK}, 0x1000, v{vK}')
        k(f'v_add_u32 v{vV}, v{vV}, v{vInc}')
    seq = []
    for c in (1, 5, 2, 6, 3, 7):
        seq += [(lambda c=c: dma(c, 0)), (lambda c=c: dma(c, 1))]
    for u in range(4): step(u, seq[3*u:3*u+3])
    tail()
    def idx_wo(k):
        k('v_and_b32 v250, 15, v2')
        k(f'v_add_u32 v250, {F_WO}, v250')
    wait_flags(k, idx_wo, pre='s_waitcnt vmcnt(0)')
    def wo(i):
        k(f'buffer_load_dwordx4 {vr(160+4*i,4)}, v156, s[40:43], s37 offen offset:{1024*(i&3)}{SC}')
        if (i & 3) == 3: k('s_add_u32 s37, s37, 4096')
    seq = [(lambda i=i: wo(i)) for i in range(16)]
    for u in range(4): step(u, seq[4*u:4*u+4])
    tail()
    k('s_mov_b32 s31, 2')
    k.label(f'{L}_LOOP')
    for u in range(4): step(u, None)
    tail()
    k('s_add_u32 s31, s31, 1')
    k('s_cmp_lt_u32 s31, 8')
    k(f's_cbranch_scc1 {L}_LOOP')
    stamp(k, 10)
    k('s_waitcnt lgkmcnt(0)')
    k(f'{MF} {vr(O+16,16)}, {vr(VF+8+4,4)}, {vr(P+8+4,4)}, {vr(O+16,16)}')
    k(f's_and_b32 s22, s{S_W}, 3')
    k('s_lshl_b32 s22, s22, 1')
    k('s_xor_b32 s23, s19, 1')
    k('s_add_u32 s23, s23, s22')
    k('s_mul_i32 s23, s23, 2304')
    k(f's_add_u32 s23, s23, {LDS_CMB}')
    k(f'v_lshlrev_b32 v{t0}, 2, v2')
    k(f'v_add_u32 v{t1}, s23, v{t0}')
    k('s_add_u32 s22, s22, s19')
    k('s_mul_i32 s22, s22, 2304')
    k(f's_add_u32 s22, s22, {LDS_CMB}')
    k(f'v_add_u32 v{t2}, s22, v{t0}')
    for r in range(9): k(f'ds_write_b32 v{t1}, v{O+16+r} offset:{256*r}')
    k('s_waitcnt lgkmcnt(0)')
    k('s_barrier')
    for r in range(9): k(f'ds_read_b32 v{S+r}, v{t2} offset:{256*r}')
    k('s_waitcnt lgkmcnt(0)')
    for r in range(9): k(f'v_add_f32 v{O+r}, v{O+r}, v{S+r}')
    k(f'v_mov_b32 v{t3}, v{O+8}')
    k(f'v_permlane32_swap_b32 v{t3}, v{O+8}')
    k(f'v_mul_f32 v{t0}, 0, v{t3}')
    for r in range(8): k(f'v_fmac_f32 v{t0}, 0, v{O+r}')
    k(f'v_mov_b32 v{t1}, {hex(f2u(2.0**64))}')
    k(f'v_cmp_u_f32 vcc, v{t0}, v{t0}')
    k(f'v_cmp_nlt_f32 s[34:35], v{t3}, v{t1}')
    k('s_or_b64 s[34:35], vcc, s[34:35]')
    k(f's_cbranch_scc0 {L}_FIN')
    k(f'v_mov_b32 v{vK}, v3')
    k(f'v_mov_b32 v{t0}, 0xff800000')
    k('s_mov_b32 s31, 0')
    k.label(f'{L}_MAXL')
    k(f'ds_read_b128 {vr(KF,4)}, v{vK}')
    k('s_waitcnt lgkmcnt(0)')
    k(f'{MF} {vr(S,16)}, {vr(KF,4)}, {vr(QF,4)}, 0')
    k(f'v_add_u32 v{vK}, 0x400, v{vK}')
    for i in range(0, 16, 2): k(f'v_max3_f32 v{t0}, v{t0}, v{S+i}, v{S+i+1}')
    k('s_add_u32 s31, s31, 1')
    k('s_cmp_lt_u32 s31, 64')
    k(f's_cbranch_scc1 {L}_MAXL')
    k(f'v_mov_b32 v{t1}, v{t0}')
    k(f'v_permlane32_swap_b32 v{t0}, v{t1}')
    k(f'v_max_f32 v{t0}, v{t0}, v{t1}')
    for i in range(16): k(f'v_sub_f32 v{CN+i}, 0, v{t0}')
    for i in range(16): k(f'v_mov_b32 v{O+i}, 0')
    k(f'v_mov_b32 v{vK}, v3')
    k('s_lshl_b32 s26, s19, 15')
    k(f'v_lshrrev_b32 v{t1}, 12, v{vInc}')
    k(f'v_mul_lo_u32 v{t1}, v{t1}, s26')
    k(f'v_sub_u32 v{vV}, v{vVb}, v{t1}')
    k(f'v_lshrrev_b32 v{t2}, 2, v{vInc}')
    k('s_mov_b32 s31, 0')
    k.label(f'{L}_FBL')
    k(f'ds_read_b128 {vr(KF,4)}, v{vK}')
    k(f'ds_read_b128 {vr(VF,4)}, v{vV}')
    k(f'ds_read_b128 {vr(VF+4,4)}, v{vV} offset:512')
    k('s_waitcnt lgkmcnt(0)')
    k(f'{MF} {vr(S,16)}, {vr(KF,4)}, {vr(QF,4)}, {vr(CN,16)}')
    k(f'v_add_u32 v{vK}, 0x400, v{vK}')
    k(f'v_add_u32 v{vV}, v{vV}, v{t2}')
    for i in range(16): k(f'v_exp_f32 v{S+i}, v{S+i}')
    for d in range(8): k(f'v_cvt_pk_bf16_f32 v{P+d}, v{S+2*d}, v{S+2*d+1}')
    k(f'{MF} {vr(O,16)}, {vr(VF,4)}, {vr(P,4)}, {vr(O,16)}')
    k(f'{MF} {vr(O,16)}, {vr(VF+4,4)}, {vr(P+4,4)}, {vr(O,16)}')
    k('s_add_u32 s31, s31, 1')
    k('s_cmp_lt_u32 s31, 64')
    k('s_nop 7')
    k(f's_cbranch_scc1 {L}_FBL')
    k('s_nop 7')
    k(f'v_mov_b32 v{t3}, v{O+8}')
    k(f'v_permlane32_swap_b32 v{t3}, v{O+8}')
    k.label(f'{L}_FIN')
    k(f'v_rcp_f32 v{t0}, v{t3}')
    for r in range(8): k(f'v_mul_f32 v{O+r}, v{O+r}, v{t0}')
    for d in range(4): k(f'v_cvt_pk_bf16_f32 v{P+d}, v{O+2*d}, v{O+2*d+1}')
    k('s_lshl_b32 s22, s28, 15')
    k('s_lshl_b32 s23, s20, 10')
    k('s_add_u32 s22, s22, s23')
    k(f'buffer_store_dwordx4 {vr(P,4)}, v3, s[12:15], s22 offen{SC}')
    k('s_lshl_b32 s22, s36, 5')
    k('s_add_u32 s22, s22, s20')
    k(f's_add_u32 s22, s22, {F_P3}')
    publish(k, 22)
    stamp(k, 11)
```

```python
from pk_common import *

LDS_W13 = 49152
LDS_EX4 = 32768
LDS_ST4 = LDS_W13 + 99*1024

def p5_decode(k):
    k(f's_and_b32 s6, s{S_ID}, 7')
    k(f's_lshr_b32 s7, s{S_ID}, 3')
    k('s_cmp_lt_u32 s7, 29')
    k('s_cselect_b32 s52, 1, 0')
    k('s_min_u32 s7, s7, 28')
    k('s_mul_i32 s6, s6, 29')
    k('s_add_u32 s6, s6, s7')
    k('s_cmp_ge_u32 s6, 116')
    k('s_cselect_b32 s7, 116, 0')
    k('s_cselect_b32 s19, 4, 0')
    k('s_sub_u32 s6, s6, s7')
    k('s_and_b32 s50, s6, 3')
    k('s_add_u32 s50, s50, s19')
    k('s_lshr_b32 s53, s6, 2')
    k('s_mul_i32 s51, s53, 3')
    k('s_min_u32 s51, s51, 83')

def sum_partials8(k, G, dst):
    for j in range(8):
        k(f'v_add_f32 v{G+j}, v{G+j}, v{G+8+j}')
        k(f'v_add_f32 v{G+16+j}, v{G+16+j}, v{G+24+j}')
    for j in range(8): k(f'v_add_f32 v{G+j}, v{G+j}, v{G+16+j}')
    for j in range(8): k(f'v_cvt_pk_bf16_f32 v{G+j}, v{G+j}, v{G+j}')
    for j in range(8): k(f'v_lshlrev_b32 v{dst+j}, 16, v{G+j}')

def gen_p4(k):
    k(f's_and_b32 s6, s{S_ID}, 7')
    k(f's_lshr_b32 s7, s{S_ID}, 3')
    k('s_lshl_b32 s20, s6, 3')
    k('s_lshr_b32 s21, s7, 2')
    k('s_add_u32 s20, s20, s21')
    k('s_and_b32 s21, s7, 3')
    k(f's_and_b32 s22, s{S_W}, 3')
    k('s_lshl_b32 s23, s21, 2')
    k('s_add_u32 s23, s23, s22')
    k(f's_lshr_b32 s24, s{S_W}, 2')
    p5_decode(k)
    srd(k, 8, S_WS, WS_O, SZ_Q)
    srd(k, 12, S_WS, WS_WO, SZ_WO)
    srd(k, 28, S_WS, WS_MODP, SZ_MODP)
    srd(k, 32, S_X, 0, 2048*1024)
    srd(k, 36, S_WS, WS_X1, SZ_Q)
    srd(k, 40, S_WS, WS_W13, SZ_W13)
    vm = VM(k)
    WR, G, RES, ACC, TB = 160, 128, 124, 16, 32
    k('v_and_b32 v4, 31, v2')
    k('v_lshrrev_b32 v5, 5, v2')
    k('v_lshlrev_b32 v7, 10, v4')
    k('v_lshl_add_u32 v7, v5, 3, v7')
    k('s_lshl_b32 s25, s20, 15')
    k('s_lshl_b32 s26, s23, 6')
    k('s_add_u32 s25, s25, s26')
    k('s_lshl_b32 s26, s24, 5')
    k('s_add_u32 s25, s25, s26')
    k(f'buffer_load_dwordx2 {vr(RES,2)}, v7, s[32:35], s25 offen')
    k(f'buffer_load_dwordx2 {vr(RES+2,2)}, v7, s[32:35], s25 offen offset:16')
    k('v_lshlrev_b32 v8, 4, v5')
    k('s_lshl_b32 s25, s23, 7')
    k('s_lshl_b32 s26, s24, 6')
    k('s_add_u32 s25, s25, s26')
    for rq in range(4):
        k(f's_add_u32 s26, s25, {2*2048 + rq*3072*4}')
        k(f'buffer_load_dwordx4 {vr(G+8*rq,4)}, v8, s[28:31], s26 offen{SC}')
        k(f'buffer_load_dwordx4 {vr(G+8*rq+4,4)}, v8, s[28:31], s26 offen offset:32{SC}')
    vm.issue('e', 10)
    def idx_p4(k):
        k('s_lshr_b32 s98, s20, 3')
        k('s_lshl_b32 s98, s98, 5')
        k(f's_add_u32 s98, s98, {F_P3}')
        k('v_add_u32 v250, s98, v2')
        k('s_lshr_b32 s98, s51, 2')
        k('s_lshl_b32 s98, s98, 4')
        k('v_mov_b32 v253, s98')
        k('s_add_u32 s98, s51, 2')
        k('s_lshr_b32 s98, s98, 2')
        k('s_lshl_b32 s98, s98, 4')
        k('v_mov_b32 v252, s98')
        k('v_cmp_le_u32 vcc, 48, v2')
        k('s_nop 1')
        k('v_cndmask_b32 v252, v253, v252, vcc')
        k('v_and_b32 v253, 15, v2')
        k('v_add_u32 v252, v252, v253')
        k(f'v_add_u32 v252, {F_W13}, v252')
        k('v_cmp_le_u32 vcc, 32, v2')
        k('s_nop 1')
        k('v_cndmask_b32 v250, v250, v252, vcc')
    def idx_w2(k):
        k('v_min_u32 v250, 42, v2')
        k(f'v_add_u32 v250, {F_W2}, v250')
    stamp(k, 12)
    wait_flags(k, idx_p4, idxcode2=idx_w2)
    stamp(k, 13)
    k('s_lshl_b32 s25, s20, 15')
    k(f's_lshl_b32 s26, s{S_W}, 12')
    k('s_add_u32 s25, s25, s26')
    k('s_mov_b32 m0, s26')
    k('s_nop 0')
    for i in range(4):
        k(f'buffer_load_dwordx4 v3, s[8:11], s25 offen offset:{1024*i}{SC} lds')
    vm.issue('t', 4)
    vm.wait('e')
    sum_partials8(k, G, G+8)
    GA = G + 8
    vm.wait('t')
    k('s_barrier')
    k('s_lshl_b32 s25, s24, 14')
    k('v_add_u32 v9, s25, v3')
    for i in range(2): k(f'ds_read_b128 {vr(TB+4*i,4)}, v9 offset:{1024*i}')
    k(f's_mul_i32 s25, s51, {U_STRIDE}')
    k(f's_lshl_b32 s26, s{S_W}, 10')
    k('s_add_u32 s25, s25, s26')
    k(f's_mul_i32 s26, s{S_W}, 3072')
    for i in range(16):
        if i + 2 < 16: k(f'ds_read_b128 {vr(TB+4*((i+2)%4),4)}, v9 offset:{1024*(i+2)}')
        if i < 12:
            c, u = divmod(i, 3)
            k(f's_add_u32 m0, s26, {LDS_W13 + c*8*3072 + u*1024}')
            k(f's_add_u32 s27, s25, {c*8*1024 + u*U_STRIDE}')
        k(f's_waitcnt lgkmcnt({min(2, 15-i)})')
        k(f'{MF} {vr(ACC,16)}, {vr(WR+4*i,4)}, {vr(TB+4*(i%4),4)}, {vr(ACC,16) if i else 0}')
        if i < 12: k(f'buffer_load_dwordx4 v3, s[40:43], s27 offen{SC} lds')
    stamp(k, 14)
    k(f's_lshl_b32 s25, s{S_W}, 11')
    k(f's_add_u32 s25, s25, {LDS_EX4}')
    k('v_add_u32 v10, s25, v3')
    k(f's_xor_b32 s25, s{S_W}, 4')
    k('s_lshl_b32 s25, s25, 11')
    k(f's_add_u32 s25, s25, {LDS_EX4}')
    k('v_add_u32 v11, s25, v3')
    k(f'ds_write_b128 v10, {vr(ACC+8,4)}')
    k(f'ds_write_b128 v10, {vr(ACC+12,4)} offset:1024')
    for d in range(4):
        k(f'v_lshlrev_b32 v{48+2*d}, 16, v{RES+d}')
        k(f'v_and_b32 v{48+2*d+1}, 0xffff0000, v{RES+d}')
    k('s_waitcnt lgkmcnt(0)')
    k('s_barrier')
    k(f'ds_read_b128 {vr(56,4)}, v11')
    k(f'ds_read_b128 {vr(60,4)}, v11 offset:1024')
    k('s_waitcnt lgkmcnt(0)')
    for j in range(8): k(f'v_add_f32 v{ACC+j}, v{ACC+j}, v{56+j}')
    for j in range(8): k(f'v_fma_f32 v{ACC+j}, v{ACC+j}, v{GA+j}, v{48+j}')
    for d in range(4): k(f'v_cvt_pk_bf16_f32 v{56+d}, v{ACC+2*d}, v{ACC+2*d+1}')
    k('s_lshl_b32 s25, s20, 15')
    k('s_lshl_b32 s26, s23, 11')
    k('s_add_u32 s25, s25, s26')
    k('s_lshl_b32 s26, s24, 10')
    k('s_add_u32 s25, s25, s26')
    k(f'buffer_store_dwordx4 {vr(56,4)}, v3, s[36:39], s25 offen{SC}')
    for d in range(4):
        k(f'v_lshlrev_b32 v{48+2*d}, 16, v{56+d}')
        k(f'v_and_b32 v{48+2*d+1}, 0xffff0000, v{56+d}')
    k('v_add_f32 v12, v48, v49')
    k('v_mul_f32 v13, v48, v48')
    k('v_fmac_f32 v13, v49, v49')
    for j in range(2, 8):
        k(f'v_add_f32 v12, v12, v{48+j}')
        k(f'v_fmac_f32 v13, v{48+j}, v{48+j}')
    k('v_mov_b32 v14, v12')
    k('v_mov_b32 v15, v13')
    k('v_permlane32_swap_b32 v12, v14')
    k('v_permlane32_swap_b32 v13, v15')
    k('v_add_f32 v12, v12, v14')
    k('v_add_f32 v13, v13, v15')
    k(f's_lshl_b32 s25, s{S_W}, 8')
    k(f's_add_u32 s25, s25, {LDS_ST4}')
    k('v_lshlrev_b32 v14, 3, v4')
    k('v_add_u32 v15, s25, v14')
    k('ds_write_b64 v15, v[12:13]')
    k('s_waitcnt lgkmcnt(0)')
    k('s_barrier')

    k(f's_cmp_eq_u32 s{S_W}, 0')
    k('s_cbranch_scc0 P4_PUB')
    k(f'v_add_u32 v15, {LDS_ST4}, v14')
    for i in range(8): k(f'ds_read_b64 {vr(32+2*i,2)}, v15 offset:{256*i}')
    k('s_waitcnt lgkmcnt(0)')
    for st in (4, 2, 1):
        for i in range(st):
            k(f'v_add_f32 v{32+2*i}, v{32+2*i}, v{32+2*(i+st)}')
            k(f'v_add_f32 v{33+2*i}, v{33+2*i}, v{33+2*(i+st)}')
    srd(k, 28, S_WS, WS_STATS, SZ_STATS)
    k('s_lshl_b32 s25, s21, 14')
    k('s_lshl_b32 s26, s20, 8')
    k('s_add_u32 s25, s25, s26')
    k(f'buffer_store_dwordx2 v[32:33], v14, s[28:31], s25 offen{SC}')
    k.label('P4_PUB')
    k('s_lshl_b32 s22, s20, 2')
    k('s_add_u32 s22, s22, s21')
    k(f's_add_u32 s22, s22, {F_P4}')
    publish(k, 22)
    stamp(k, 15)
    k(f's_mul_i32 s26, s{S_W}, 0x5556')
    k('s_lshr_b32 s26, s26, 16')
    k('s_mul_i32 s26, s26, 3')
    k(f's_sub_u32 s26, s{S_W}, s26')
    k('s_add_u32 s27, s51, s26')
    k('s_lshl_b32 s27, s27, 4')
    k('v_and_b32 v36, 15, v2')
    k('v_bfe_u32 v37, v2, 4, 1')
    k('v_mul_u32_u24 v37, 1376, v37')
    k('v_add3_u32 v36, v36, v37, s27')
    k('v_lshlrev_b32 v36, 2, v36')
    srd(k, 44, S_WS, WS_CSB, SZ_CSB)
    for q in range(16):
        k(f's_mov_b32 s27, {q*2752*4}')
        k(f'buffer_load_dword v{48+q}, v36, s[44:47], s27 offen{SC}')
    k('s_waitcnt vmcnt(0)')
    for st in (8, 4, 2):
        for i in range(st): k(f'v_add_f32 v{48+i}, v{48+i}, v{48+i+st}')
    k('v_mov_b32 v40, v48')
    k('v_mov_b32 v41, v49')
    k('v_cvt_pk_bf16_f32 v42, v40, v41')
    k('v_lshlrev_b32 v43, 16, v42')
    k('v_and_b32 v44, 0xffff0000, v42')
    k('v_sub_f32 v43, v40, v43')
    k('v_sub_f32 v44, v41, v44')
    k('v_cvt_pk_bf16_f32 v43, v43, v44')
    k('s_mov_b32 s27, 0x05040100')
    k('s_mov_b32 s25, 0x07060302')
    k('v_perm_b32 v44, v43, v42, s27')
    k('v_mov_b32 v45, v42')
    k('v_perm_b32 v46, v42, v43, s25')
    k('v_mov_b32 v47, 0')
    k('v_cmp_gt_u32 vcc, 32, v2')
    k('s_lshl_b32 s26, s26, 10')
    k(f's_add_u32 s26, s26, {LDS_W13 + 96*1024}')
    k('v_add_u32 v36, s26, v3')
    for i in range(3): k(f'v_cndmask_b32 v{44+i}, 0, v{44+i}, vcc')
    k('ds_write_b128 v36, v[44:47]')


def gen_p5(k):
    srd(k, 8, S_WS, WS_X1, SZ_Q)
    srd(k, 28, S_WS, WS_STATS, SZ_STATS)
    srd(k, 32, S_WS, WS_HM, SZ_HM)
    k('s_lshl_b32 s20, s50, 3')
    k(f's_add_u32 s20, s20, s{S_W}')
    k('v_and_b32 v4, 31, v2')
    k('v_lshrrev_b32 v5, 5, v2')
    def idx_p5(k):
        k('s_lshl_b32 s98, s50, 5')
        k(f's_add_u32 s98, s98, {F_P4}')
        k('v_add_u32 v250, s98, v2')
        k('v_bfe_u32 v252, v2, 3, 2')
        k('v_mul_u32_u24 v252, 48, v252')
        k('v_and_b32 v253, 7, v2')
        k(f'v_add3_u32 v252, v252, v253, {F_G+40}')
        k('v_cmp_le_u32 vcc, 32, v2')
        k('s_nop 1')
        k('v_cndmask_b32 v250, v250, v252, vcc')
    srd(k, 12, S_WS, WS_W2, SZ_W2)
    k(f's_lshr_b32 s7, s{S_ID}, 3')
    k('s_and_b32 s21, s7, 7')
    k('s_lshl_b32 s21, s21, 1')
    k(f's_and_b32 s22, s{S_W}, 1')
    k('s_add_u32 s21, s21, s22')
    k(f's_lshr_b32 s23, s{S_W}, 1')
    k(f's_mul_i32 s61, s21, {86*1024}')
    k(f's_mul_i32 s22, s23, {22*1024}')
    k('s_add_u32 s61, s61, s22')
    k('s_cmp_eq_u32 s23, 3')
    k('s_cselect_b32 s56, 0x40000000, 0')
    k('s_and_b32 s23, s23, 1')
    k('s_lshl_b32 s23, s23, 4')
    k('v_xor_b32 v9, s23, v2')
    k('v_lshlrev_b32 v9, 4, v9')
    def w2(i, vm=None):
        if vm: vm.issue('w2')
        if i == 20: k('s_add_u32 s61, s61, s56')
        k(f'buffer_load_dwordx4 {vr(64+4*i,4)}, v9, s[12:15], s61 offen offset:{1024*(i&3)}{SC}')
        if (i & 3) == 3: k('s_add_u32 s61, s61, 4096')
    stamp(k, 16)
    wait_flags(k, idx_p5, pre='s_waitcnt vmcnt(0) lgkmcnt(0)')
    stamp(k, 17)
    k('s_cmp_eq_u32 s52, 0')
    k('s_cbranch_scc1 P5_SKIP')
    vm = VM(k)
    XR, WR, ACC, AUG, ST = 64, 16, 192, 40, 44
    k('v_lshlrev_b32 v6, 3, v4')
    k('v_lshl_add_u32 v6, v5, 15, v6')
    k('s_lshl_b32 s26, s20, 8')
    k(f'buffer_load_dwordx2 {vr(ST,2)}, v6, s[28:31], s26 offen{SC}')
    k('s_add_u32 s26, s26, 16384')
    k(f'buffer_load_dwordx2 {vr(ST+2,2)}, v6, s[28:31], s26 offen{SC}')
    vm.issue('st', 2)
    k('s_lshl_b32 s24, s20, 15')
    def ldx(s):
        k(f'buffer_load_dwordx4 {vr(XR+4*s,4)}, v3, s[8:11], s24 offen offset:{1024*(s&3)}{SC}')
        if (s & 3) == 3: k('s_add_u32 s24, s24, 4096')
        vm.issue(('x', s))
    PF = 6
    for s in range(PF): ldx(s)
    k(f'v_add_u32 v7, {LDS_W13}, v3')
    k(f'v_add_u32 v8, {LDS_W13 + 65536}, v3')
    def rd1(s, u):
        st = s & 1
        o = (s*3+u)*1024
        k(f'ds_read_b128 {vr(WR+12*st+4*u,4)}, v7 offset:{o}' if o < 65536 else
          f'ds_read_b128 {vr(WR+12*st+4*u,4)}, v8 offset:{o-65536}')
    for u in range(3): rd1(0, u)
    vm.wait('st')
    k(f'v_add_f32 v{ST}, v{ST}, v{ST+2}')
    k(f'v_add_f32 v{ST+1}, v{ST+1}, v{ST+3}')
    k(f'v_mov_b32 v12, v{ST}')
    k(f'v_mov_b32 v13, v{ST+1}')
    k(f'v_permlane32_swap_b32 v{ST}, v12')
    k(f'v_permlane32_swap_b32 v{ST+1}, v13')
    k(f'v_add_f32 v12, v12, v{ST}')
    k(f'v_add_f32 v13, v13, v{ST+1}')
    k(f'v_mul_f32 v12, {hex(f2u(-1/512))}, v12')
    k(f'v_mul_f32 v13, {hex(f2u(1/512))}, v13')
    k('v_fma_f32 v13, -v12, v12, v13')
    k('v_max_f32 v13, 0, v13')
    k(f'v_add_f32 v13, {hex(f2u(1e-5))}, v13')
    k('v_rsq_f32 v10, v13')
    k('s_nop 0')
    k('v_mul_f32 v13, v13, v10')
    k('v_cvt_pk_bf16_f32 v11, v12, v13')
    k('v_lshlrev_b32 v14, 16, v11')
    k('v_and_b32 v15, 0xffff0000, v11')
    k('v_sub_f32 v14, v12, v14')
    k('v_sub_f32 v15, v13, v15')
    k('v_cvt_pk_bf16_f32 v12, v14, v15')
    k('s_mov_b32 s36, 0x01000100')
    k('s_mov_b32 s37, 0x07060100')
    k('s_mov_b32 s38, 0x07060302')
    k(f'v_perm_b32 v{AUG}, v11, v11, s36')
    k(f'v_perm_b32 v{AUG+1}, v11, v12, s37')
    k(f'v_perm_b32 v{AUG+2}, v12, v11, s38')
    k(f'v_mov_b32 v{AUG+3}, 0')
    k('v_cmp_gt_u32 vcc, 32, v2')
    k('s_nop 1')
    for i in range(3): k(f'v_cndmask_b32 v{AUG+i}, 0, v{AUG+i}, vcc')
    NST = 33
    for s in range(NST):
        st = s & 1
        if s < 32: vm.wait(('x', s))
        xf = vr(XR+4*s, 4) if s < 32 else vr(AUG, 4)
        for u in range(3):
            k(f's_waitcnt lgkmcnt({2 if s+1 < NST else 2-u})')
            acc = vr(ACC+16*u, 16); w = vr(WR+12*st+4*u, 4)
            k(f'{MF} {acc}, {w}, {xf}, {acc if s > 0 else 0}')
            if s + 1 < NST: rd1(s+1, u)
            if u == 0 and s + PF < 32: ldx(s + PF)
            if s >= 26:
                i = 3*(s-26) + u
                if i < 22 - 1: w2(i, vm)
    w2(21)
    stamp(k, 18)
    k(f'v_mul_f32 v11, {hex(f2u(-LOG2E))}, v10')
    k('v_mul_f32 v12, v10, v10')
    k('s_mul_i32 s24, s20, 86')
    k('s_add_u32 s24, s24, s51')
    k('s_lshl_b32 s24, s24, 10')
    T = 16
    for u in range(3):
        a = ACC + 16*u
        for r in range(8): k(f'v_mul_f32 v{T+r}, v{a+r}, v11')
        for r in range(8): k(f'v_exp_f32 v{T+r}, v{T+r}')
        for r in range(8): k(f'v_mul_f32 v{a+r}, v{a+r}, v{a+8+r}')
        for r in range(8): k(f'v_add_f32 v{T+r}, 1.0, v{T+r}')
        for r in range(8): k(f'v_rcp_f32 v{T+r}, v{T+r}')
        for r in range(8): k(f'v_mul_f32 v{a+r}, v{a+r}, v12')
        for r in range(8): k(f'v_mul_f32 v{a+r}, v{a+r}, v{T+r}')
        for d in range(4): k(f'v_cvt_pk_bf16_f32 v{T+8+4*u+d}, v{a+2*d}, v{a+2*d+1}')
        k(f'buffer_store_dwordx4 {vr(T+8+4*u,4)}, v3, s[32:35], s24 offen offset:{1024*u}{SC}')
    k('s_lshl_b32 s22, s50, 5')
    k('s_add_u32 s22, s22, s53')
    k(f's_add_u32 s22, s22, {F_P5}')
    publish(k, 22)
    k('s_branch P5_DONE')
    k.label('P5_SKIP')
    for i in range(22): w2(i)
    k.label('P5_DONE')
    stamp(k, 19)

def gen_p6(k):
    k(f's_and_b32 s6, s{S_ID}, 7')
    k(f's_lshr_b32 s7, s{S_ID}, 3')
    k('s_lshl_b32 s20, s6, 2')
    k('s_lshr_b32 s21, s7, 3')
    k('s_add_u32 s20, s20, s21')
    k('s_and_b32 s21, s7, 7')
    k(f's_and_b32 s22, s{S_W}, 1')
    k(f's_lshr_b32 s23, s{S_W}, 1')
    k('s_lshl_b32 s24, s21, 1')
    k('s_add_u32 s24, s24, s22')
    k('s_lshr_b32 s25, s23, 1')
    k('s_and_b32 s26, s23, 1')
    k('s_lshl_b32 s27, s20, 1')
    k('s_add_u32 s54, s27, s25')
    k('s_xor_b32 s55, s25, 1')
    k('s_add_u32 s55, s27, s55')
    srd(k, 8, S_WS, WS_HM, SZ_HM)
    srd(k, 12, S_WS, WS_W2, SZ_W2)
    srd(k, 28, S_WS, WS_MODP, SZ_MODP)
    srd(k, 32, S_OUT, 0, 2048*1024)
    srd(k, 36, S_WS, WS_X1, SZ_Q)
    vm = VM(k)
    ACC, TB, WR, TD, G, RES = 16, 48, 64, 152, 168, 200
    k('v_and_b32 v4, 31, v2')
    k('v_lshrrev_b32 v5, 5, v2')
    k('s_cmp_eq_u32 s23, 3')
    k('s_cselect_b32 s56, 0x40000000, 0')
    k(f's_mul_i32 s58, s23, {22*1024}')
    k('v_lshlrev_b32 v8, 4, v5')
    k('s_lshl_b32 s57, s24, 7')
    k('s_lshl_b32 s59, s26, 6')
    k('s_add_u32 s57, s57, s59')
    for rq in range(4):
        k(f's_add_u32 s59, s57, {5*2048 + rq*3072*4}')
        k(f'buffer_load_dwordx4 {vr(G+8*rq,4)}, v8, s[28:31], s59 offen{SC}')
        k(f'buffer_load_dwordx4 {vr(G+8*rq+4,4)}, v8, s[28:31], s59 offen offset:32{SC}')
    vm.issue('e', 8)
    def idx_p6(k):
        k('s_lshr_b32 s98, s20, 2')
        k('s_lshl_b32 s98, s98, 5')
        k(f's_add_u32 s98, s98, {F_P5}')
        k('v_min_u32 v250, 28, v2')
        k('v_add_u32 v250, s98, v250')
    stamp(k, 20)
    wait_flags(k, idx_p6)
    stamp(k, 21)
    k('s_add_u32 s57, s27, s22')
    k(f's_mul_i32 s57, s57, {86*1024}')
    k('s_add_u32 s57, s57, s58')
    k('s_mul_i32 s59, s23, 40960')
    k('s_mul_i32 s60, s22, 20480')
    k('s_add_u32 s59, s59, s60')
    def dma(g):
        k(f's_add_u32 m0, s59, {4096*g}')
        k(f's_add_u32 s60, s57, {4096*g}')
        for i in range(4):
            k(f'buffer_load_dwordx4 v3, s[8:11], s60 offen offset:{1024*i}{SC} lds')
        vm.issue(('g', g), 4)
    dma(0); dma(1)
    def tail_loads():
        k(f's_mul_i32 s60, s54, {86*1024}')
        k('s_add_u32 s60, s60, s58')
        k(f's_add_u32 s60, s60, {20*1024}')
        k('s_add_u32 s60, s60, s56')
        k(f'buffer_load_dwordx4 {vr(TD,4)}, v3, s[8:11], s60 offen{SC}')
        k(f'buffer_load_dwordx4 {vr(TD+8,4)}, v3, s[8:11], s60 offen offset:1024{SC}')
        k(f's_mul_i32 s60, s55, {86*1024}')
        k('s_add_u32 s60, s60, s58')
        k(f's_add_u32 s60, s60, {20*1024}')
        k('s_add_u32 s60, s60, s56')
        k(f'buffer_load_dwordx4 {vr(TD+4,4)}, v3, s[8:11], s60 offen{SC}')
        k(f'buffer_load_dwordx4 {vr(TD+12,4)}, v3, s[8:11], s60 offen offset:1024{SC}')
        k('s_lshl_b32 s60, s54, 15')
        k('s_lshl_b32 s61, s24, 11')
        k('s_add_u32 s60, s60, s61')
        k('s_lshl_b32 s61, s26, 10')
        k('s_add_u32 s60, s60, s61')
        k(f'buffer_load_dwordx4 {vr(RES,4)}, v3, s[36:39], s60 offen{SC}')
        vm.issue('tail', 5)
    k('s_mul_i32 s60, s23, 40960')
    k('s_mul_i32 s61, s25, 20480')
    k('s_add_u32 s61, s61, s60')
    k('v_add_u32 v9, s61, v3')
    k('s_xor_b32 s61, s25, 1')
    k('s_mul_i32 s61, s61, 20480')
    k('s_add_u32 s61, s61, s60')
    k('v_add_u32 v10, s61, v3')
    vm.wait('e')
    sum_partials8(k, G, G+8)
    GB = G + 8
    for g in range(5):
        vm.wait(('g', g))
        k('s_barrier')
        if g + 2 < 5: dma(g + 2)
        if g == 3: tail_loads()
        k(f'ds_read_b128 {vr(TB,4)}, v9 offset:{4096*g}')
        k(f'ds_read_b128 {vr(TB+4,4)}, v10 offset:{4096*g}')
        for i in range(4):
            s = 4*g + i
            b = TB + 8*(i & 1); nb = TB + 8*((i+1) & 1)
            if i < 3:
                k(f'ds_read_b128 {vr(nb,4)}, v9 offset:{4096*g + 1024*(i+1)}')
                k(f'ds_read_b128 {vr(nb+4,4)}, v10 offset:{4096*g + 1024*(i+1)}')
                k('s_waitcnt lgkmcnt(2)')
            else:
                k('s_waitcnt lgkmcnt(0)')
            k(f'{MF} {vr(ACC,16)}, {vr(WR+4*s,4)}, {vr(b,4)}, {vr(ACC,16) if s else 0}')
            k(f'{MF} {vr(ACC+16,16)}, {vr(WR+4*s,4)}, {vr(b+4,4)}, {vr(ACC+16,16) if s else 0}')
    vm.wait('tail')
    for i in range(2):
        k(f'{MF} {vr(ACC,16)}, {vr(WR+4*(20+i),4)}, {vr(TD+8*i,4)}, {vr(ACC,16)}')
        k(f'{MF} {vr(ACC+16,16)}, {vr(WR+4*(20+i),4)}, {vr(TD+8*i+4,4)}, {vr(ACC+16,16)}')
    stamp(k, 22)
    k('s_barrier')
    for x, src in ((1, ACC+8), (2, ACC+16), (3, ACC+24)):
        k(f's_xor_b32 s60, s23, {x}')
        k('s_lshl_b32 s60, s60, 1')
        k('s_add_u32 s60, s60, s22')
        k('s_mul_i32 s60, s60, 6144')
        k(f's_add_u32 s60, s60, {(x-1)*2048}')
        k(f'v_add_u32 v{10+x}, s60, v3')
    for x, src in ((1, ACC+8), (2, ACC+16), (3, ACC+24)):
        k(f'ds_write_b128 v{10+x}, {vr(src,4)}')
        k(f'ds_write_b128 v{10+x}, {vr(src+4,4)} offset:1024')
    k(f's_mul_i32 s60, s{S_W}, 6144')
    k('v_add_u32 v9, s60, v3')
    for d in range(4):
        k(f'v_lshlrev_b32 v{48+2*d}, 16, v{RES+d}')
        k(f'v_and_b32 v{48+2*d+1}, 0xffff0000, v{RES+d}')
    k('s_waitcnt lgkmcnt(0)')
    k('s_barrier')
    for j in range(6): k(f'ds_read_b128 {vr(64+4*j,4)}, v9 offset:{1024*j}')
    k('s_waitcnt lgkmcnt(0)')
    for x in range(3):
        for j in range(8): k(f'v_add_f32 v{ACC+j}, v{ACC+j}, v{64+8*x+j}')
    for j in range(8): k(f'v_fma_f32 v{ACC+j}, v{ACC+j}, v{GB+j}, v{48+j}')
    for d in range(4): k(f'v_cvt_pk_bf16_f32 v{56+d}, v{ACC+2*d}, v{ACC+2*d+1}')
    k('v_lshlrev_b32 v7, 10, v4')
    k('v_lshl_add_u32 v7, v5, 4, v7')
    k('v_permlane32_swap_b32 v56, v58')
    k('v_permlane32_swap_b32 v57, v59')
    k('s_lshl_b32 s60, s54, 15')
    k('s_lshl_b32 s61, s24, 6')
    k('s_add_u32 s60, s60, s61')
    k('s_lshl_b32 s61, s26, 5')
    k('s_add_u32 s60, s60, s61')
    k('buffer_store_dwordx4 v[56:59], v7, s[32:35], s60 offen')
    stamp(k, 23)
```
